```python
import torch

def _softmax(x, axis=-1):
    return torch.softmax(x, dim=axis)
def _gelu(x):
    return torch.nn.functional.gelu(x, approximate="tanh")
def _silu(x):
    return torch.nn.functional.silu(x)
def _sigmoid(x):
    return torch.sigmoid(x)
def _layernorm(x, axis=-1, eps=1e-5):
    m = x.mean(dim=axis, keepdim=True)
    v = x.var(dim=axis, keepdim=True, unbiased=False)
    return (x - m) / torch.sqrt(v + eps)
def _scatter_add(tgt, idx, src, axis=0):
    return tgt.clone().index_add_(axis, idx, src)
def _segment_sum(src, seg, n):
    out = torch.zeros((n,) + src.shape[1:], dtype=src.dtype)
    return out.index_add_(0, seg, src)
def _pad(x, pw):
    flat = tuple(v for pair in reversed(pw) for v in pair)
    return torch.nn.functional.pad(x, flat)

kernel_name = 'gated_mix__ssm_conv_s4d__mha_block__prompt'

def setup_inputs():

    _w = (lambda a: (lambda t: t.to(torch.bfloat16) if t.is_floating_point() else t)(torch.as_tensor(a)))
    def _A_setup():
        Bsz, L, D, N = 1, 2048, 576, 128
        return {
            "u": _w((lambda *s: torch.randn(*s, dtype=torch.bfloat16) * 0.05)(Bsz, L, D)),
            "log_A_real": _w((lambda *s: torch.randn(*s, dtype=torch.bfloat16) * 6.4)(D, N) * 0.5),
            "A_imag": _w((lambda *s: torch.randn(*s, dtype=torch.bfloat16) * 0.1)(D, N) * 3.14),
            "C_real": _w((lambda *s: torch.randn(*s, dtype=torch.bfloat16) * 0.4)(D, N) / N ** 0.5),
            "C_imag": _w((lambda *s: torch.randn(*s, dtype=torch.bfloat16) * 0.4)(D, N) / N ** 0.5),
            "log_dt": _w((lambda *s: torch.randn(*s, dtype=torch.bfloat16) * 0.1)(D) * 0.5 - 4.0),
            "D_skip": _w((lambda *s: torch.randn(*s, dtype=torch.bfloat16) * 0.1)(D)),
        }
    _A_in = _A_setup()

    def _B_setup():
        B, S, D, H = 1, 2048, 576, 32
        return {
            "x": _w((lambda *s: torch.randn(*s, dtype=torch.bfloat16) * 0.05)(B, S, D)),
            "wqkv": _w((lambda *s: torch.randn(*s, dtype=torch.bfloat16) * 0.8)(D, 3 * D)),
            "wo": _w((lambda *s: torch.randn(*s, dtype=torch.bfloat16) * 0.05)(D, D)),
        }
    _B_in = _B_setup()

    return {
        "A_u": _A_in["u"],
        "A_log_A_real": _A_in["log_A_real"],
        "A_A_imag": _A_in["A_imag"],
        "A_C_real": _A_in["C_real"],
        "A_C_imag": _A_in["C_imag"],
        "A_log_dt": _A_in["log_dt"],
        "A_D_skip": _A_in["D_skip"],
        "B_x": _B_in["x"],
        "B_wqkv": _B_in["wqkv"],
        "B_wo": _B_in["wo"],
        "gate_w": _w((lambda *s: torch.randn(*s, dtype=torch.bfloat16) * 0.05)(576) * 16.0),
    }

def reference(A_u, A_log_A_real, A_A_imag, A_C_real, A_C_imag, A_log_dt, A_D_skip, B_x, B_wqkv, B_wo, gate_w):
    def _A_ref(u, log_A_real, A_imag, C_real, C_imag, log_dt, D_skip):
        L = u.shape[1]
        dt = torch.exp(log_dt)
        A = -torch.exp(log_A_real) + 1j * A_imag
        C = (C_real + 1j * C_imag) * dt[:, None]
        pos = (lambda x, dt: x.to(dt))(torch.arange(L), log_dt.dtype)
        P = torch.exp((A * dt[:, None])[:, :, None] * pos[None, None, :])
        K = 2.0 * torch.einsum("dn,dnl->dl", C, P).real
        L2 = 2 * L
        u_t = (lambda x, *d: x.permute(*d))(u, 0, 2, 1)
        Kf = (lambda x, *a, **k: torch.fft.rfft(x.float(), *a, **k))(K, L2)
        Uf = (lambda x, *a, **k: torch.fft.rfft(x.float(), *a, **k))(u_t, L2)
        y = (lambda x, *a, **k: torch.fft.irfft(x, *a, **k).to(torch.bfloat16))(Uf * Kf[None, :, :], L2)[:, :, :L]
        y = (lambda x, *d: x.permute(*d))(y, 0, 2, 1)
        return y + u * D_skip[None, None, :]

    def _B_ref(x, wqkv, wo):
        B, S, D = x.shape
        H = 32
        Dh = D // H
        qkv = (lambda x, *d: x.permute(*d))((x @ wqkv).reshape(B, S, 3, H, Dh), 2, 0, 3, 1, 4)
        q, k, v = qkv[0], qkv[1], qkv[2]
        scores = torch.einsum("bhqd,bhkd->bhqk", q, k) * (Dh ** -0.5)
        p = _softmax(scores, axis=-1)
        o = torch.einsum("bhqk,bhkd->bhqd", p, v)
        return (lambda x, *d: x.permute(*d))(o, 0, 2, 1, 3).reshape(B, S, D) @ wo

    x = A_u
    g = _sigmoid((x * gate_w).sum(-1, keepdims=True))
    a = _A_ref(x, A_log_A_real, A_A_imag, A_C_real, A_C_imag, A_log_dt, A_D_skip)
    b = _B_ref(x, B_wqkv, B_wo)
    return g * a + (1 - g) * b
```

```python
class Asm:
    def __init__(self):
        self.lines = []
        self._lab = 0
    def __call__(self, s=""):
        for ln in s.split("\n"):
            ln = ln.strip()
            if ln == "": continue
            if ln.endswith(":") or ln.startswith(".") or ln.startswith(";"):
                self.lines.append(ln)
            else:
                self.lines.append("    " + ln)
    def label(self, name): self.lines.append(name + ":")
    def newlabel(self, base="L"):
        self._lab += 1
        return f"{base}_{self._lab}"
    def text(self): return "\n".join(self.lines) + "\n"

def vr(b, n=1):
    return f"v{b}" if n == 1 else f"v[{b}:{b+n-1}]"
def sr(b, n=1):
    return f"s{b}" if n == 1 else f"s[{b}:{b+n-1}]"
def ar(b, n=1):
    return f"a{b}" if n == 1 else f"a[{b}:{b+n-1}]"

def srd(a, d, base, nbytes):
    if d != base:
        a(f"s_mov_b32 s{d}, s{base}")
        a(f"s_mov_b32 s{d+1}, s{base+1}")
    a(f"s_mov_b32 s{d+2}, {nbytes}")
    a(f"s_mov_b32 s{d+3}, 0x20000")

import struct
def f2u(x): return struct.unpack("<I", struct.pack("<f", x))[0]
def fhex(x): return "0x%08x" % f2u(x)

def kernel_begin(a, name):
    a(f".globl {name}")
    a(".p2align 8")
    a(f".type {name},@function")
    a.label(name)

def kernel_desc(name, vgpr, sgpr=102, accum=None):
    if accum is None: accum = (vgpr + 3) // 4 * 4
    return f""".p2align 6
.amdhsa_kernel {name}
  .amdhsa_next_free_vgpr {vgpr}
  .amdhsa_next_free_sgpr {sgpr}
  .amdhsa_accum_offset {accum}
  .amdhsa_group_segment_fixed_size 0
  .amdhsa_kernarg_size 112
  .amdhsa_user_sgpr_count 2
  .amdhsa_user_sgpr_kernarg_segment_ptr 1
  .amdhsa_system_sgpr_workgroup_id_x 1
.end_amdhsa_kernel
"""
```

```python
from asmlib import *
from layout import *
import math

LOG2E = math.log2(math.e)
LDS_W = 0
LDS_AUX = 147456
LDS_FLAG = 147456 + 3*4352
K1_LDS = 163840

def load_kernargs(a):
    a("s_load_dwordx16 s[32:47], s[0:1], 0")
    a("s_load_dwordx8 s[48:55], s[0:1], 64")
    a("s_load_dwordx4 s[56:59], s[0:1], 96")

def emit_tau(a, dst, src, t):
    a(f"v_lshrrev_b32 v{t}, 1, v{src}")
    a(f"v_xor_b32 v{t}, v{t}, v{src}")
    a(f"v_and_b32 v{t}, 4, v{t}")
    a(f"v_mul_u32_u24 v{t}, 3, v{t}")
    a(f"v_xor_b32 v{dst}, v{src}, v{t}")

def emit_ident(a, dst, e, t0, t1, n=4):
    a(f"v_and_b32 v{t0}, 1, v{e}")
    a(f"v_lshlrev_b32 v{t0}, 4, v{t0}")
    a(f"v_mov_b32 v{t1}, 0x3f80")
    a(f"v_lshlrev_b32 v{t0}, v{t0}, v{t1}")
    a(f"v_ashrrev_i32 v{t1}, 1, v{e}")
    for q in range(n):
        a(f"v_cmp_eq_u32 s[{60+2*q}:{61+2*q}], {q}, v{t1}")
    a("s_nop 1")
    for q in range(n):
        a(f"v_cndmask_b32 v{dst+q}, 0, v{t0}, s[{60+2*q}:{61+2*q}]")

def exp_precise(a, dst, x, t0, t1):
    a(f"v_mul_f32 v{t0}, s70, v{x}")
    a(f"v_fma_f32 v{t1}, v{x}, s70, -v{t0}")
    a(f"v_fma_f32 v{t1}, v{x}, s71, v{t1}")
    a(f"v_exp_f32 v{t0}, v{t0}")
    a(f"v_mul_f32 v{t1}, s72, v{t1}")
    a(f"v_fma_f32 v{dst}, v{t0}, v{t1}, v{t0}")

def gen_k1(a, name):
    kernel_begin(a, name)
    a("s_cmp_ge_u32 s2, 256")
    a("s_cbranch_scc1 K1_END")
    load_kernargs(a)
    a("v_lshrrev_b32 v1, 6, v0")
    a("v_and_b32 v0, 63, v0")
    a("v_readfirstlane_b32 s3, v1")
    a("v_mov_b32 v2, 0")
    a("v_lshlrev_b32 v3, 2, v0")
    a("v_and_b32 v3, 60, v3")
    a(f"v_add_u32 v3, {LDS_FLAG}, v3")
    a("ds_write_b32 v3, v2")
    a("v_and_b32 v4, 31, v0")
    a("v_lshrrev_b32 v5, 5, v0")
    a("s_waitcnt lgkmcnt(0)")
    a("s_barrier")
    srd(a, 16, S_WS, WS_USED)
    a("s_cmp_ge_u32 s3, 4")
    a("s_cbranch_scc1 K1_AUX")
    gen_gemm(a)
    a.label("K1_AUX")
    a("s_cmp_eq_u32 s3, 7")
    a("s_cbranch_scc1 K1_MISC")
    a("s_cmp_ge_u32 s2, 192")
    a("s_cbranch_scc1 K1_WO")
    gen_kgen(a)
    a.label("K1_WO")
    gen_wo(a)
    a.label("K1_MISC")
    gen_misc(a)
    a.label("K1_END")
    a("s_endpgm")

ACC = 16; WF = 80; XF = 112
def gen_gemm(a):
    srd(a, 8, S_X, X_BYTES)
    srd(a, 12, S_W, W_BYTES)
    a("s_and_b32 s4, s2, 1")
    a("s_lshl_b32 s4, s4, 3")
    a("s_bfe_u32 s5, s2, 0x30003")
    a("s_add_u32 s4, s4, s5")
    a("s_bfe_u32 s5, s2, 0x20001")
    a("s_lshl_b32 s5, s5, 2")
    a("s_lshr_b32 s6, s2, 6")
    a("s_add_u32 s5, s5, s6")
    a("s_lshl_b32 s6, s4, 2")
    a("s_add_u32 s6, s6, s3")
    a("v_lshrrev_b32 v7, 4, v0")
    a("v_bfe_u32 v8, v0, 2, 2")
    a("v_and_b32 v9, 3, v0")
    a("v_lshrrev_b32 v10, 1, v9")
    a("v_lshlrev_b32 v10, 3, v10")
    a("v_lshl_add_u32 v10, v9, 4, v10")
    a("v_mul_u32_u24 v11, 72, v7")
    a("v_add_u32 v10, v10, v11")
    a("v_min_u32 v11, 2, v9")
    a("v_mul_u32_u24 v11, 72, v11")
    a("v_add_u32 v11, 32, v11")
    a("v_cmp_eq_u32 vcc, 3, v7")
    a("v_mul_u32_u24 v12, 3456, v8")
    a("s_nop 0")
    a("v_cndmask_b32 v10, v10, v11, vcc")
    a("v_add_u32 v6, v10, v12")
    a("s_lshl_b32 s7, s6, 5")
    a("v_add_u32 v7, s7, v4")
    a("v_mul_u32_u24 v7, 1152, v7")
    a("v_lshl_add_u32 v7, v5, 4, v7")
    a("s_mul_i32 s20, s5, 216")
    a("s_mul_i32 s21, s3, 6*13824")
    a("s_add_u32 s20, s20, s21")
    a("s_mul_i32 s21, s3, 6*1024")
    def issue_chunk(c):
        for i in range(6):
            a(f"s_add_u32 m0, s21, {(24*c+i)*1024}")
            a(f"s_add_u32 s22, s20, {(24*c+i)*13824}")
            a("buffer_load_dwordx4 v6, s[12:15], s22 offen lds")
        for i in range(6):
            s = 6*c+i
            a(f"buffer_load_dwordx4 {vr(XF+4*s,4)}, v7, s[8:11], 0 offen offset:{32*s}")
    for c in range(5): issue_chunk(c)
    a("v_bfe_u32 v10, v0, 2, 2")
    a("v_bfe_u32 v11, v0, 4, 1")
    a("v_and_b32 v12, 3, v0")
    a("v_lshlrev_b32 v8, 11, v5")
    a("v_lshl_add_u32 v8, v10, 6, v8")
    a("v_lshrrev_b32 v9, 1, v12")
    a("v_lshl_add_u32 v9, v11, 1, v9")
    a("v_lshl_add_u32 v9, v9, 4, v8")
    a("v_add_u32 v9, 768, v9")
    a("v_lshl_add_u32 v8, v11, 5, v8")
    a("v_lshl_add_u32 v8, v12, 3, v8")
    a(f"v_mov_b32 v10, {LDS_FLAG}")
    a("v_mov_b32 v11, 1")
    def signal(c):
        a("s_mov_b64 exec, 1")
        a(f"ds_add_u32 v10, v11 offset:{4*c}")
        a("s_mov_b64 exec, -1")
    def poll(c, first_read_done):
        lab = a.newlabel("K1_POLL"); ok = a.newlabel("K1_OK")
        if first_read_done:
            a("v_readfirstlane_b32 s23, v12")
            a("s_cmp_eq_u32 s23, 4")
            a(f"s_cbranch_scc1 {ok}")
        a.label(lab)
        a(f"ds_read_b32 v12, v10 offset:{4*c}")
        a("s_waitcnt lgkmcnt(0)")
        a("v_readfirstlane_b32 s23, v12")
        a("s_cmp_eq_u32 s23, 4")
        a(f"s_cbranch_scc0 {lab}")
        a.label(ok)
    def trreads(s):
        buf = WF + 16*(s & 1)
        out = []
        so = (s % 16) * 4096
        for p in range(3):
            for j in range(2):
                out.append(f"ds_read_b64_tr_b16 {vr(buf+4*p+2*j,2)}, v8 offset:{so+j*1024+p*256}")
        for j in range(2):
            out.append(f"ds_read_b64_tr_b16 {vr(buf+12+2*j,2)}, v9 offset:{so+j*1024}")
        return out
    a("s_waitcnt vmcnt(48)")
    signal(0)
    poll(0, False)
    for ln in trreads(0): a(ln)
    issue_chunk(5)
    for s in range(36):
        c = s // 6
        a("s_waitcnt lgkmcnt(0)")
        if s % 6 == 5 and s < 35:
            poll(c+1, True)
        rd = []
        if s < 35:
            if (s+1) % 16 == 0:
                a("v_add_u32 v8, 0x10000, v8")
                a("v_add_u32 v9, 0x10000, v9")
            rd = trreads(s+1)
        buf = WF + 16*(s & 1)
        for p in range(4):
            cin = "0" if s == 0 else vr(ACC+16*p,16)
            a(f"v_mfma_f32_32x32x16_bf16 {vr(ACC+16*p,16)}, {vr(buf+4*p,4)}, {vr(XF+4*s,4)}, {cin}")
            for ln in rd[2*p:2*p+2]: a(ln)
        if s % 6 == 2 and c < 5:
            a(f"s_waitcnt vmcnt({48-12*c})")
            signal(c+1)
        if s % 6 == 4 and c < 5:
            a(f"ds_read_b32 v12, v10 offset:{4*(c+1)}")
    T0 = 112
    emit_tau(a, 6, 4, 7)
    a("v_lshl_add_u32 v7, v5, 5, v6")
    a("v_lshlrev_b32 v7, 4, v7")
    a("v_lshlrev_b32 v8, 2, v6")
    a("v_add_u32 v8, 1024, v8")
    a("v_mul_u32_u24 v9, 288, v5")
    a("v_lshl_add_u32 v9, v4, 4, v9")
    a("v_add_u32 v9, 1152, v9")
    a("v_lshlrev_b32 v10, 3, v5")
    a("v_sub_u32 v10, v6, v10")
    emit_ident(a, 96, 10, 11, 12)
    a("v_lshlrev_b32 v10, 6, v5")
    a("v_add_u32 v10, v10, v4")
    a("v_subrev_u32 v10, 16, v10")
    emit_ident(a, 100, 10, 11, 12, n=1)
    a("v_mov_b32 v101, 0")
    a("v_mov_b32 v102, 0")
    a("v_mov_b32 v103, v100")
    a("v_cmp_eq_u32 s[68:69], 1, v5")
    a("s_mul_i32 s24, s5, 3")
    for p in range(3):
        lv = a.newlabel("K1_V"); ld = a.newlabel("K1_SD")
        A0 = ACC+16*p; E0 = ACC+48+4*p
        a(f"s_add_u32 s25, s24, {p}")
        a("s_and_b32 s26, s25, 15")
        a("s_lshl_b32 s26, s26, 7")
        a("s_add_u32 s26, s26, s6")
        a("s_cmp_ge_u32 s25, 32")
        a(f"s_cbranch_scc1 {lv}")
        a("s_cmp_ge_u32 s25, 16")
        a(f"s_movk_i32 s27, {QT_BYTES}")
        a(f"s_cselect_b32 s27, {KVT_BYTES}, s27")
        a(f"s_cselect_b32 s28, {KV_OFF}, {QF_OFF}")
        a(f"s_cselect_b32 s29, 1.0, {fhex(QSCALE)}")
        a("s_mul_i32 s26, s26, s27")
        a("s_add_u32 s26, s26, s28")
        a("s_lshl_b32 s27, s27, 6")
        a("s_add_u32 s28, s26, s27")
        for r in range(16):
            a(f"v_mul_f32 v{A0+r}, s29, v{A0+r}")
        for r in range(4):
            a(f"v_mul_f32 v{E0+r}, s29, v{E0+r}")
        for r in range(8):
            a(f"v_cvt_pk_bf16_f32 v{T0+r}, v{A0+2*r}, v{A0+2*r+1}")
        a(f"v_cvt_pk_bf16_f32 v{T0+8}, v{E0}, v{E0+1}")
        a(f"v_cvt_pk_bf16_f32 v{T0+9}, v{E0+2}, v{E0+3}")
        a(f"buffer_store_dwordx4 {vr(T0,4)}, v7, s[16:19], s26 offen")
        a(f"buffer_store_dwordx4 {vr(T0+4,4)}, v7, s[16:19], s28 offen")
        a(f"v_mad_u32_u24 v{T0+10}, v5, s27, v8")
        a(f"v_cndmask_b32 v{T0+8}, v{T0+8}, v{T0+9}, s[68:69]")
        a(f"buffer_store_dword v{T0+8}, v{T0+10}, s[16:19], s26 offen")
        a(f"s_branch {ld}")
        a.label(lv)
        a(f"s_mul_i32 s26, s26, {KVT_BYTES}")
        a(f"s_add_u32 s26, s26, {KV_OFF}")
        a(f"s_add_u32 s28, s26, {64*KVT_BYTES}")
        for r in range(8):
            a(f"v_cvt_pk_bf16_f32 v{T0+r}, v{A0+2*r}, v{A0+2*r+1}")
        a(f"v_cvt_pk_bf16_f32 v{T0+8}, v{E0}, v{E0+1}")
        a(f"v_cvt_pk_bf16_f32 v{T0+9}, v{E0+2}, v{E0+3}")
        a("s_nop 1")
        D0 = T0+12; D1 = T0+28
        a(f"v_mfma_f32_32x32x16_bf16 {vr(D0,16)}, {vr(T0,4)}, v[96:99], 0")
        a(f"v_mfma_f32_32x32x16_bf16 {vr(D1,16)}, {vr(T0+4,4)}, v[96:99], 0")
        a(f"v_mfma_f32_32x32x8_bf16 {vr(D0,16)}, {vr(T0+8,2)}, v[100:101], {vr(D0,16)}")
        a(f"v_mfma_f32_32x32x8_bf16 {vr(D1,16)}, {vr(T0+8,2)}, v[102:103], {vr(D1,16)}")
        a("s_nop 15")
        for r in range(8):
            a(f"v_cvt_pk_bf16_f32 v{D0+r}, v{D0+2*r}, v{D0+2*r+1}")
        for r in range(8):
            a(f"v_cvt_pk_bf16_f32 v{D1+r}, v{D1+2*r}, v{D1+2*r+1}")
        a("s_mov_b32 exec_lo, 0x3ffff")
        a("s_mov_b32 exec_hi, 0x3ffff")
        a(f"buffer_store_dwordx4 {vr(D0,4)}, v9, s[16:19], s26 offen")
        a(f"buffer_store_dwordx4 {vr(D0+4,4)}, v9, s[16:19], s26 offen offset:576")
        a(f"buffer_store_dwordx4 {vr(D1,4)}, v9, s[16:19], s28 offen")
        a(f"buffer_store_dwordx4 {vr(D1+4,4)}, v9, s[16:19], s28 offen offset:576")
        a("s_mov_b64 exec, -1")
        a.label(ld)
        T0 += 48
    a("s_endpgm")

def cmul(a, d, x, w):
    a(f"v_pk_mul_f32 {vr(d,2)}, {vr(x,2)}, {vr(w,2)} op_sel:[0,0] op_sel_hi:[0,1]")
    a(f"v_pk_fma_f32 {vr(d,2)}, {vr(x,2)}, {vr(w,2)}, {vr(d,2)} op_sel:[1,1,0] op_sel_hi:[1,0,1] neg_lo:[0,1,0]")

def gen_kgen(a):
    a("s_mul_i32 s4, s2, 3")
    a("s_add_u32 s4, s4, s3")
    a("s_sub_u32 s4, s4, 4")
    a("s_lshl_b32 s5, s4, 8")
    a("v_lshl_add_u32 v6, v0, 2, s5")
    a("s_lshl_b32 s5, s4, 1")
    a("v_mov_b32 v7, s5")
    a(f"global_load_ushort v8, v7, s[{S_LOGDT}:{S_LOGDT+1}]")
    a(f"global_load_dword v9, v6, s[{S_LOGA}:{S_LOGA+1}]")
    a(f"global_load_dword v10, v6, s[{S_AIM}:{S_AIM+1}]")
    a(f"global_load_dword v11, v6, s[{S_CR}:{S_CR+1}]")
    a(f"global_load_dword v12, v6, s[{S_CI}:{S_CI+1}]")
    a("v_mov_b32 v14, 0")
    a("v_mov_b32 v15, 0")
    a(f"s_mul_i32 s6, s4, {UT_STRIDE}")
    a(f"s_add_u32 s6, s6, {UT_OFF}")
    a("v_lshlrev_b32 v13, 3, v0")
    a("buffer_store_dwordx2 v[14:15], v13, s[16:19], s6 offen")
    a(f"s_mul_i32 s7, s4, {KR_STRIDE}")
    a(f"s_add_u32 s7, s7, {KR_OFF}")
    a("s_add_u32 s6, s7, 4096")
    a("v_lshlrev_b32 v13, 1, v0")
    a("buffer_store_short v14, v13, s[16:19], s6 offen")
    hi = struct.unpack("<f", struct.pack("<f", LOG2E))[0]
    a(f"s_mov_b32 s70, {fhex(hi)}")
    a(f"s_mov_b32 s71, {fhex(LOG2E-hi)}")
    a(f"s_mov_b32 s72, {fhex(math.log(2.0))}")
    a("s_mov_b32 s73, 0xffff0000")
    a("s_sub_u32 s5, s3, 4")
    a("s_mul_i32 s5, s5, 4352")
    a(f"s_add_u32 s5, s5, {LDS_AUX}")
    a("v_lshl_add_u32 v16, v0, 2, s5")
    a("v_and_b32 v18, 15, v0")
    a("v_lshrrev_b32 v19, 4, v0")
    a("v_mul_u32_u24 v17, 272, v18")
    a("v_lshl_add_u32 v17, v19, 4, v17")
    a("v_add_u32 v17, s5, v17")
    a("s_waitcnt vmcnt(6)")
    a("v_lshlrev_b32 v8, 16, v8")
    exp_precise(a, 8, 8, 20, 21)
    a("v_cvt_pk_bf16_f32 v8, v8, v8")
    a("v_and_b32 v8, s73, v8")
    a("s_waitcnt vmcnt(2)")
    Y = 24; G = 40; Z = 58; T = 74; W1 = 90; W8 = 92
    YF = 96; XFr = 112; AC = 128; CT = 140
    tcount = [0]
    def put(row, src):
        t = CT + (tcount[0] % 8); tcount[0] += 1
        a(f"v_cvt_pk_bf16_f32 v{t}, v{src}, v{src+1}")
        a(f"ds_write_b32 v16, v{t} offset:{row*272}")
    def reads(dst):
        for ks in range(4):
            a(f"ds_read_b128 {vr(dst+4*ks,4)}, v17 offset:{ks*64}")
    def mm(acc, first):
        a("s_waitcnt lgkmcnt(0)")
        for ks in range(4):
            cin = "0" if (first and ks == 0) else vr(acc,4)
            a(f"v_mfma_f32_16x16x32_bf16 {vr(acc,4)}, {vr(XFr+4*ks,4)}, {vr(YF+4*ks,4)}, {cin}")
    for ps in range(2):
        def ext(dst, src):
            if ps == 0: a(f"v_lshlrev_b32 v{dst}, 16, v{src}")
            else: a(f"v_and_b32 v{dst}, s73, v{src}")
        ext(20, 9)
        exp_precise(a, 20, 20, 21, 22)
        a("v_cvt_pk_bf16_f32 v20, v20, v20")
        a("v_and_b32 v20, s73, v20")
        a("v_mul_f32 v20, v20, v8")
        a("v_mul_f32 v20, s70, v20")
        ext(21, 10)
        a("v_mul_f32 v21, v21, v8")
        a("v_mul_f32 v21, 0.15915494, v21")
        ext(Z, 11); ext(Z+1, 12)
        a(f"v_mul_f32 v{Z}, v{Z}, v8")
        a(f"v_mul_f32 v{Z+1}, v{Z+1}, v8")
        a(f"v_add_f32 v{Z}, v{Z}, v{Z}")
        a(f"v_add_f32 v{Z+1}, v{Z+1}, v{Z+1}")
        for (dst, p, conj) in ((W1, 1, False), (Y+2, 8, True), (G, 128, False)):
            a(f"v_mul_f32 v{T}, {fhex(-float(p))}, v20")
            a(f"v_mul_f32 v{T+1}, {fhex(float(-p if conj else p))}, v21")
            a(f"v_exp_f32 v{T}, v{T}")
            a(f"v_fract_f32 v{T+1}, v{T+1}")
            a(f"v_cos_f32 v{T+2}, v{T+1}")
            a(f"v_sin_f32 v{T+3}, v{T+1}")
            a("s_nop 0")
            a(f"v_mul_f32 v{dst}, v{T}, v{T+2}")
            a(f"v_mul_f32 v{dst+1}, v{T}, v{T+3}")
        a(f"v_mov_b32 v{Y}, 1.0")
        a(f"v_mov_b32 v{Y+1}, 0")
        cmul(a, Y+4, Y+2, Y+2)
        cmul(a, G+2, G, G)
        cmul(a, Z+2, Z, W1)
        cmul(a, W8, W1, W1)
        cmul(a, Y+6, Y+4, Y+2)
        cmul(a, Y+8, Y+4, Y+4)
        cmul(a, G+4, G+2, G)
        cmul(a, G+6, G+2, G+2)
        cmul(a, Z+4, Z, W8)
        cmul(a, Z+6, Z+2, W8)
        cmul(a, W1, W8, W8)
        for j in (1,2,3): cmul(a, Y+8+2*j, Y+8, Y+2*j)
        cmul(a, W8, Y+8, Y+8)
        for j in range(8): put(j, Y+2*j)
        put(8, W8)
        for j in range(1,8):
            t = T + 2*(j % 8)
            cmul(a, t, W8, Y+2*j)
        for j in range(1,8): put(8+j, T+2*(j % 8))
        reads(YF)
        for j in (1,2,3,4): cmul(a, G+6+2*j, G+6, G+2*(j-1))
        for j in range(4): cmul(a, Z+8+2*j, Z+2*j, W1)
        for j in range(8): put(j, Z+2*j)
        for j in range(8): cmul(a, T+2*j, Z+2*j, G)
        for j in range(8): put(8+j, T+2*j)
        reads(XFr)
        for i in range(2):
            for ii in range(4): cmul(a, T+2*(4*i+ii), Z+4*ii, G+2*(1+i))
        mm(AC, ps == 0)
        for j in range(8): put(j, T+2*j)
        for i in range(4):
            for ii in range(2): cmul(a, T+2*(2*i+ii), Z+8*ii, G+2*(3+i))
        for j in range(8): put(8+j, T+2*j)
        reads(XFr)
        cmul(a, W8, Z, G+14)
        for i in range(1,9): cmul(a, T+2*(i-1), W8, G+2*(i-1))
        mm(AC+4, ps == 0)
        put(0, W8)
        for i in range(1,9): put(i, T+2*(i-1))
        reads(XFr)
        mm(AC+8, ps == 0)
    a("v_lshrrev_b32 v20, 1, v19")
    a("v_lshlrev_b32 v20, 8, v20")
    a("v_and_b32 v21, 1, v19")
    a("v_lshl_add_u32 v20, v21, 3, v20")
    a("v_lshl_add_u32 v20, v18, 4, v20")
    a("v_add_u32 v20, s5, v20")
    a("v_cmp_gt_u32 vcc, 2, v19")
    a("v_lshlrev_b32 v21, 2, v18")
    a("v_lshlrev_b32 v22, 3, v18")
    a("v_cndmask_b32 v21, v21, v22, vcc")
    a("v_lshl_add_u32 v21, v19, 7, v21")
    a("v_add_u32 v21, s5, v21")
    a("v_mov_b32 v22, 64")
    a("v_mov_b32 v23, 4")
    a("v_cndmask_b32 v22, v22, v23, vcc")
    a("v_add_u32 v22, v22, v21")
    a("v_lshlrev_b32 v23, 7, v19")
    a("v_lshl_add_u32 v23, v18, 1, v23")
    a("v_add_u32 v23, s5, v23")
    a("s_nop 4")
    for i in range(6):
        a(f"v_cvt_pk_bf16_f32 v{24+i}, v{AC+2*i}, v{AC+2*i+1}")
    a("ds_write_b64 v20, v[24:25]")
    a("ds_write_b32 v21, v26 offset:512")
    a("ds_write_b32 v22, v27 offset:512")
    a("ds_write_b16 v23, v28 offset:1024")
    a("ds_write_b16_d16_hi v23, v28 offset:1056")
    a("ds_write_b16 v23, v29 offset:1088")
    a("ds_write_b16_d16_hi v23, v29 offset:1120")
    a("v_lshl_add_u32 v20, v0, 1, s5")
    a("ds_read_b32 v30, v20 offset:1024")
    a("ds_read_b32 v31, v20 offset:1152")
    a("v_lshl_add_u32 v20, v0, 2, s5")
    a("ds_read_b64 v[32:33], v20 offset:768")
    a("v_lshlrev_b32 v20, 4, v4")
    a("v_lshlrev_b32 v21, 3, v4")
    a("v_add_u32 v21, 508, v21")
    a("v_cmp_eq_u32 vcc, 1, v5")
    a("s_mov_b32 s60, 0x01000100")
    a("s_mov_b32 s61, 0x03020302")
    a("v_cndmask_b32 v20, v20, v21, vcc")
    a("v_add_u32 v20, s5, v20")
    a("ds_read_b128 v[36:39], v20")
    a("s_mov_b32 s62, 0x01000302")
    def sel(dst, f, t):
        a(f"v_mov_b32 v{dst}, {f}")
        a(f"v_mov_b32 v{dst+8}, {t}")
        a(f"v_cndmask_b32 v{dst}, v{dst}, v{dst+8}, vcc")
    sel(40, "0x05040706", "0x03020504")
    sel(41, "0x01000302", "0x01000100")
    sel(42, "0x01000302", "0x03020504")
    sel(43, "0x01000302", "0x05040504")
    a("v_and_b32 v20, 1, v0")
    a("v_cmp_eq_u32 vcc, 1, v20")
    a("v_lshlrev_b32 v21, 4, v0")
    a("v_sub_u32 v21, 1008, v21")
    sel(44, "0x01000302", "0x03020302")
    a("s_waitcnt lgkmcnt(0)")
    for (src, dst) in ((30, 56), (31, 60)):
        a(f"v_perm_b32 v{dst}, v{src}, v{src}, s61")
        a(f"v_perm_b32 v{dst+1}, v{src}, v{src}, v44")
        a(f"v_perm_b32 v{dst+2}, v{src}, v{src}, s60")
        a(f"v_perm_b32 v{dst+3}, v{src}, v{src}, s60")
    a("v_perm_b32 v64, v33, v33, s60")
    a("v_perm_b32 v65, v32, v32, s61")
    a("v_perm_b32 v66, v32, v32, s62")
    a("v_perm_b32 v67, v32, v32, s60")
    a("v_perm_b32 v68, v39, v38, v40")
    a("v_perm_b32 v69, v38, v38, v41")
    a("v_perm_b32 v70, v38, v37, v42")
    a("v_perm_b32 v71, v37, v36, v43")
    a("buffer_store_dwordx4 v[56:59], v21, s[16:19], s7 offen offset:1024")
    a("buffer_store_dwordx4 v[60:63], v21, s[16:19], s7 offen")
    a("buffer_store_dwordx4 v[64:67], v21, s[16:19], s7 offen offset:2048")
    a("buffer_store_dwordx4 v[68:71], v21, s[16:19], s7 offen offset:3072")
    a("s_endpgm")

def gen_ident_nat(a, lo, hi):
    a("v_lshlrev_b32 v10, 3, v5")
    a("v_sub_u32 v10, v4, v10")
    emit_ident(a, lo, 10, 11, 12)
    a("v_subrev_u32 v10, 16, v10")
    emit_ident(a, hi, 10, 11, 12)

def gen_wo(a):
    a("s_sub_u32 s4, s2, 192")
    a("s_mul_i32 s4, s4, 3")
    a("s_add_u32 s4, s4, s3")
    a("s_sub_u32 s4, s4, 4")
    gen_ident_nat(a, 16, 20)
    a("v_lshrrev_b32 v13, 4, v4")
    a("v_lshl_add_u32 v13, v13, 2, v4")
    emit_tau(a, 14, 4, 15)
    a("v_lshrrev_b32 v15, 1, v14")
    a("v_mul_u32_u24 v24, 18, v15")
    a("v_and_b32 v14, 1, v14")
    a("v_add_u32 v24, v24, v14")
    a("v_and_b32 v15, 1, v15")
    a("v_xor_b32 v15, 1, v15")
    a("v_lshl_add_u32 v14, v15, 4, v24")
    a("v_lshlrev_b32 v25, 4, v0")
    a.label("K1_WO_LOOP")
    a("s_mul_i32 s5, s4, 3641")
    a("s_lshr_b32 s5, s5, 16")
    a("s_mul_i32 s6, s5, 18")
    a("s_sub_u32 s6, s4, s6")
    a("s_mul_i32 s7, s6, 36")
    a("s_sub_u32 s8, s6, 16")
    a("s_mul_i32 s8, s8, 288")
    a("s_cmp_ge_u32 s6, 16")
    a("s_cselect_b32 s7, s8, s7")
    a("s_cselect_b64 vcc, -1, 0")
    a("v_cndmask_b32 v24, v13, v14, vcc")
    a("v_add_u32 v24, s7, v24")
    a("v_mul_u32_u24 v24, 1152, v24")
    a("v_lshl_add_u32 v24, v5, 4, v24")
    a("s_lshl_b32 s8, s5, 6")
    a("v_add_u32 v24, s8, v24")
    a(f"global_load_dwordx4 v[28:31], v24, s[{S_WO}:{S_WO+1}]")
    a(f"global_load_dwordx4 v[32:35], v24, s[{S_WO}:{S_WO+1}] offset:32")
    a("s_mul_i32 s8, s5, 18")
    a("s_add_u32 s8, s8, s6")
    a("s_lshl_b32 s8, s8, 11")
    a(f"s_add_u32 s8, s8, {WOF_OFF}")
    a("s_waitcnt vmcnt(0)")
    a("v_mfma_f32_32x32x16_bf16 v[40:55], v[28:31], v[16:19], 0")
    a("v_mfma_f32_32x32x16_bf16 v[40:55], v[32:35], v[20:23], v[40:55]")
    a("s_nop 15")
    for r in range(8):
        a(f"v_cvt_pk_bf16_f32 v{56+r}, v{40+2*r}, v{41+2*r}")
    a("buffer_store_dwordx4 v[56:59], v25, s[16:19], s8 offen")
    a("buffer_store_dwordx4 v[60:63], v25, s[16:19], s8 offen offset:1024")
    a("s_add_u32 s4, s4, 192")
    a("s_cmp_lt_u32 s4, 324")
    a("s_cbranch_scc1 K1_WO_LOOP")
    a("s_endpgm")

def gen_misc(a):
    a("s_lshr_b32 s4, s2, 2")
    a("s_and_b32 s5, s2, 3")
    a("v_bfe_u32 v6, v4, 2, 1")
    a("v_lshlrev_b32 v6, 4, v6")
    a("v_and_b32 v7, 3, v4")
    a("v_add_u32 v6, v6, v7")
    a("v_lshrrev_b32 v7, 3, v4")
    a("v_lshl_add_u32 v6, v7, 2, v6")
    a("s_lshl_b32 s6, s4, 5")
    a("v_add_u32 v6, s6, v6")
    a("v_mul_u32_u24 v6, 1152, v6")
    a("v_lshl_add_u32 v6, v5, 4, v6")
    a("s_mul_i32 s7, s5, 288")
    a("v_add_u32 v6, s7, v6")
    UX = 32
    for i in range(9):
        a(f"global_load_dwordx4 {vr(UX+4*i,4)}, v6, s[{S_X}:{S_X+1}] offset:{32*i}")
    GX = 72; GW = 108
    a("v_lshrrev_b32 v7, 3, v0")
    a("s_lshl_b32 s8, s2, 3")
    a("v_add_u32 v7, s8, v7")
    a("v_and_b32 v8, 7, v0")
    a("v_lshlrev_b32 v8, 4, v8")
    a("v_mul_u32_u24 v9, 1152, v7")
    a("v_add_u32 v9, v9, v8")
    for i in range(9):
        a(f"global_load_dwordx4 {vr(GX+4*i,4)}, v9, s[{S_X}:{S_X+1}] offset:{128*i}")
    for i in range(9):
        a(f"global_load_dwordx4 {vr(GW+4*i,4)}, v8, s[{S_GW}:{S_GW+1}] offset:{128*i}")
    gen_ident_nat(a, 16, 20)
    a("s_mul_i32 s9, s5, 144")
    a("v_add_u32 v13, s9, v4")
    a(f"v_mul_u32_u24 v13, {UT_STRIDE}, v13")
    a("v_lshl_add_u32 v13, v5, 5, v13")
    a("s_lshl_b32 s9, s4, 6")
    a(f"s_add_u32 s9, s9, {UT_OFF+512}")
    DD = 144
    a("s_waitcnt vmcnt(18)")
    for i in range(5):
        a(f"v_mfma_f32_32x32x16_bf16 {vr(DD+16*i,16)}, {vr(UX+8*i,4)}, v[16:19], 0")
        if i < 4:
            a(f"v_mfma_f32_32x32x16_bf16 {vr(DD+16*i,16)}, {vr(UX+8*i+4,4)}, v[20:23], {vr(DD+16*i,16)}")
    a("s_nop 15")
    for i in range(5):
        for r in range(8):
            a(f"v_cvt_pk_bf16_f32 v{DD+16*i+r}, v{DD+16*i+2*r}, v{DD+16*i+2*r+1}")
        if i == 4:
            a("s_mov_b32 exec_lo, 0xffff")
            a("s_mov_b32 exec_hi, 0xffff")
        a(f"buffer_store_dwordx4 {vr(DD+16*i,4)}, v13, s[16:19], s9 offen")
        a(f"buffer_store_dwordx4 {vr(DD+16*i+4,4)}, v13, s[16:19], s9 offen offset:16")
        a(f"s_add_u32 s9, s9, {32*UT_STRIDE}")
    a("s_mov_b64 exec, -1")
    a("s_mov_b32 s73, 0xffff0000")
    a("v_mov_b32 v24, 0")
    a("v_mov_b32 v25, 0")
    a("s_waitcnt vmcnt(10)")
    for i in range(36):
        x = GX+i; w = GW+i
        a(f"v_lshlrev_b32 v26, 16, v{x}")
        a(f"v_and_b32 v27, s73, v{x}")
        a(f"v_lshlrev_b32 v28, 16, v{w}")
        a(f"v_and_b32 v29, s73, v{w}")
        a("v_pk_mul_f32 v[26:27], v[26:27], v[28:29]")
        a("v_cvt_pk_bf16_f32 v26, v26, v27")
        a("v_and_b32 v27, s73, v26")
        a("v_lshlrev_b32 v26, 16, v26")
        a("v_pk_add_f32 v[24:25], v[24:25], v[26:27]")
    a("v_add_f32 v24, v24, v25")
    a("s_nop 1")
    a("v_add_f32_dpp v24, v24, v24 quad_perm:[1,0,3,2] row_mask:0xf bank_mask:0xf")
    a("s_nop 1")
    a("v_add_f32_dpp v24, v24, v24 quad_perm:[2,3,0,1] row_mask:0xf bank_mask:0xf")
    a("s_nop 1")
    a("v_add_f32_dpp v24, v24, v24 row_half_mirror row_mask:0xf bank_mask:0xf")
    a("v_cvt_pk_bf16_f32 v24, v24, v24")
    a("v_and_b32 v24, s73, v24")
    a(f"v_mul_f32 v24, {fhex(-LOG2E)}, v24")
    a("v_exp_f32 v24, v24")
    a("s_nop 0")
    a("v_add_f32 v24, 1.0, v24")
    a("v_rcp_f32 v24, v24")
    a("s_nop 0")
    a("v_cvt_pk_bf16_f32 v24, v24, v24")
    a("v_and_b32 v24, s73, v24")
    a("v_sub_f32 v25, 1.0, v24")
    a("v_cvt_pk_bf16_f32 v25, v25, v25")
    a("v_and_b32 v25, s73, v25")
    a("v_lshlrev_b32 v7, 3, v7")
    a(f"s_mov_b32 s9, {G_OFF}")
    a("s_mov_b32 exec_lo, 0x01010101")
    a("s_mov_b32 exec_hi, 0x01010101")
    a("buffer_store_dwordx2 v[24:25], v7, s[16:19], s9 offen")
```

```python
from asmlib import *
from layout import *
from k1 import load_kernargs, emit_tau

K2_LDS = 8*11*256 + 64
QA=16; QAX=20; QB=24; QBX=28; SA=32; SB=48; OA=64; OB=80; KVB=96
ONES=0x3f803f80
def kb(b): return KVB+14*b
def kx(b): return KVB+14*b+4
def v0r(b): return KVB+14*b+6
def v1r(b): return KVB+14*b+10

def gen_k2(a, name):
    kernel_begin(a, name)
    a("s_cmp_ge_u32 s2, 256")
    a("s_cbranch_scc1 K2_END")
    load_kernargs(a)
    a("v_lshrrev_b32 v1, 6, v0")
    a("v_and_b32 v0, 63, v0")
    a("v_readfirstlane_b32 s3, v1")
    a("v_and_b32 v4, 31, v0")
    a("v_lshrrev_b32 v5, 5, v0")
    a("s_waitcnt lgkmcnt(0)")
    srd(a, 16, S_WS, WS_USED)
    a("s_cmp_ge_u32 s3, 8")
    a("s_cbranch_scc1 K2_CONV")
    gen_attn(a)
    a.label("K2_CONV")
    gen_conv(a)
    a.label("K2_END")
    a("s_endpgm")

def kv_loads(b):
    return [f"buffer_load_dwordx4 {vr(kb(b),4)}, v7, s[16:19], s20 offen",
            f"buffer_load_dword v{kx(b)}, v8, s[16:19], s20 offen",
            "s_mov_b64 exec, s[22:23]",
            f"buffer_load_dwordx4 {vr(v0r(b),4)}, v9, s[16:19], s20 offen",
            f"buffer_load_dwordx4 {vr(v1r(b),4)}, v9, s[16:19], s20 offen offset:576",
            "s_mov_b64 exec, -1",
            f"s_add_u32 s20, s20, {KVT_BYTES}"]

def gen_attn(a):
    a("s_setprio 1")
    a("s_and_b32 s4, s2, 7")
    a("s_lshl_b32 s4, s4, 2")
    a("s_bfe_u32 s5, s2, 0x20003")
    a("s_add_u32 s4, s4, s5")
    a("s_lshr_b32 s5, s2, 5")
    a("s_lshr_b32 s6, s3, 2")
    a("s_and_b32 s7, s3, 3")
    a("s_lshl_b32 s7, s7, 1")
    a("s_lshl_b32 s5, s5, 3")
    a("s_add_u32 s5, s5, s7")
    a("s_add_u32 s8, s5, s6")
    a("s_xor_b32 s9, s8, 1")
    a("s_lshl_b32 s10, s4, 6")
    a("v_lshlrev_b32 v7, 4, v0")
    a("v_lshlrev_b32 v8, 2, v4")
    a("v_add_u32 v8, 1024, v8")
    a("s_add_u32 s11, s10, s8")
    a(f"s_mul_i32 s11, s11, {QT_BYTES}")
    a("s_add_u32 s12, s10, s9")
    a(f"s_mul_i32 s12, s12, {QT_BYTES}")
    a(f"buffer_load_dwordx4 {vr(QA,4)}, v7, s[16:19], s11 offen")
    a(f"buffer_load_dword v{QAX}, v8, s[16:19], s11 offen")
    a(f"buffer_load_dwordx4 {vr(QB,4)}, v7, s[16:19], s12 offen")
    a(f"buffer_load_dword v{QBX}, v8, s[16:19], s12 offen")
    a("v_mul_u32_u24 v9, 288, v5")
    a("v_lshl_add_u32 v9, v4, 4, v9")
    a("v_add_u32 v9, 1152, v9")
    a("s_mov_b32 s22, 0x3ffff")
    a("s_mov_b32 s23, 0x3ffff")
    a(f"s_mul_i32 s13, s10, {KVT_BYTES}")
    a(f"s_add_u32 s13, s13, {KV_OFF}")
    a(f"s_mul_i32 s14, s6, {32*KVT_BYTES}")
    a("s_add_u32 s14, s14, s13")
    a("v_mov_b32 v6, 0xdddddddd")
    a(f"v_mov_b32 v{QAX+1}, 0")
    a(f"v_mov_b32 v{QBX+1}, 0")
    a("s_mov_b32 s15, 0")
    for b in range(4):
        a(f"v_mov_b32 v{kx(b)+1}, {ONES}")
        for r in range(8): a(f"v_mov_b32 v{v0r(b)+r}, {ONES}")
    a.label("K2_RESTART")
    a("s_mov_b32 s20, s14")
    for b in range(3):
        for ln in kv_loads(b): a(ln)
    for r in range(16):
        a(f"v_mov_b32 v{OA+r}, 0")
        a(f"v_mov_b32 v{OB+r}, 0")
    for r in range(8):
        a(f"v_mov_b32 v{SB+8+r}, 0")
    a("v_cmp_eq_u32 vcc, 0, v5")
    a("s_mov_b32 s21, 8")
    a("s_waitcnt vmcnt(8)")
    a(f"v_cndmask_b32 v{QAX}, 0, v{QAX}, vcc")
    a(f"v_cndmask_b32 v{QBX}, 0, v{QBX}, vcc")
    a("s_nop 1")
    a(f"v_mfma_f32_32x32x8_bf16 {vr(SA,16)}, {vr(kx(0),2)}, {vr(QAX,2)}, 0")
    a(f"v_mfma_f32_32x32x16_bf16 {vr(SA,16)}, {vr(kb(0),4)}, {vr(QA,4)}, {vr(SA,16)}")
    a("s_nop 15")
    def ex(S, r): a(f"v_exp_f32 v{S+r}, v{S+r}")
    def phase(X, Y, OX, OY, vY_hi, vX_lo, kbuf, QY, QYX, pre=(), post=()):
        ex(X,0); ex(X,1)
        a(f"v_smfmac_f32_32x32x32_bf16 {vr(OY,16)}, {vr(vY_hi,4)}, {vr(Y+8,8)}, v6")
        for ln in pre: a(ln)
        ex(X,2); ex(X,3); ex(X,4)
        a(f"v_mfma_f32_32x32x8_bf16 {vr(Y,16)}, {vr(kx(kbuf),2)}, {vr(QYX,2)}, 0")
        ex(X,5); ex(X,6); ex(X,7)
        a(f"v_mfma_f32_32x32x16_bf16 {vr(Y,16)}, {vr(kb(kbuf),4)}, {vr(QY,4)}, {vr(Y,16)}")
        for ln in post: a(ln)
        ex(X,8); ex(X,9); ex(X,10)
        a(f"v_smfmac_f32_32x32x32_bf16 {vr(OX,16)}, {vr(vX_lo,4)}, {vr(X,8)}, v6")
        for r in range(11,16): ex(X,r)
    a(".p2align 3")
    a.label("K2_LOOP")
    for u in range(4):
        pb = (u+3) % 4
        phase(SA, SB, OA, OB, v1r(pb), v0r(u), u, QB, QBX, post=kv_loads(pb))
        post = ["s_nop 2"]
        if u == 3: post = ["s_sub_u32 s21, s21, 1", "s_nop 0", "s_cmp_lg_u32 s21, 0"]
        phase(SB, SA, OB, OA, v1r(u), v0r(u), (u+1) % 4, QA, QAX, pre=["s_waitcnt vmcnt(8)"], post=post)
    a("s_cbranch_scc1 K2_LOOP")
    a("s_nop 1")
    a(f"v_smfmac_f32_32x32x32_bf16 {vr(OB,16)}, {vr(v1r(3),4)}, {vr(SB+8,8)}, v6")
    a("s_mul_i32 s24, s3, 2816")
    a("v_lshl_add_u32 v10, v0, 4, s24")
    a("s_xor_b32 s25, s3, 4")
    a("s_mul_i32 s25, s25, 2816")
    a("v_lshl_add_u32 v11, v0, 4, s25")
    a("v_lshl_add_u32 v12, v0, 2, s24")
    a("v_lshl_add_u32 v13, v0, 2, s25")
    emit_tau(a, 14, 4, 15)
    a("s_nop 7")
    a(f"ds_write_b128 v10, {vr(OB,4)}")
    a(f"ds_write_b128 v10, {vr(OB+4,4)} offset:1024")
    a(f"ds_write_b32 v12, v{OB+8} offset:2048")
    a(f"ds_write_b32 v12, v{OB+9} offset:2304")
    a(f"ds_write_b32 v12, v{OB+10} offset:2560")
    a("s_waitcnt vmcnt(0) lgkmcnt(0)")
    a("s_barrier")
    a(f"ds_read_b128 {vr(SA,4)}, v11")
    a(f"ds_read_b128 {vr(SA+4,4)}, v11 offset:1024")
    a(f"ds_read_b32 v{SA+8}, v13 offset:2048")
    a(f"ds_read_b32 v{SA+9}, v13 offset:2304")
    a(f"ds_read_b32 v{SA+10}, v13 offset:2560")
    a("s_mul_i32 s26, s8, 36")
    a("s_add_u32 s27, s26, s4")
    a("s_lshl_b32 s27, s27, 10")
    a(f"s_add_u32 s27, s27, {OF_OFF}")
    a("s_lshr_b32 s28, s4, 3")
    a("s_add_u32 s28, s28, s26")
    a("s_lshl_b32 s28, s28, 10")
    a(f"s_add_u32 s28, s28, {OF_OFF+32*1024}")
    a("s_bfe_u32 s29, s4, 0x10002")
    a("s_lshl_b32 s29, s29, 9")
    a("s_add_u32 s28, s28, s29")
    a("s_and_b32 s29, s4, 3")
    a("s_lshl_b32 s29, s29, 2")
    a("s_add_u32 s28, s28, s29")
    a("v_lshl_add_u32 v15, v5, 5, v14")
    a("v_lshlrev_b32 v15, 4, v15")
    a("s_waitcnt lgkmcnt(0)")
    for r in range(11):
        a(f"v_add_f32 v{SA+r}, v{SA+r}, v{OA+r}")
    a(f"v_rcp_f32 v{SA+11}, v{SA+10}")
    a(f"v_mov_b32 v{SA+12}, 0")
    for r in range(10):
        a(f"v_fma_f32 v{SA+12}, v{SA+r}, 0, v{SA+12}")
    for r in range(10):
        a(f"v_mul_f32 v{SA+r}, v{SA+r}, v{SA+11}")
    for r in range(5):
        a(f"v_cvt_pk_bf16_f32 v{SB+r}, v{SA+2*r}, v{SA+2*r+1}")
    a(f"buffer_store_dwordx4 {vr(SB,4)}, v15, s[16:19], s27 offen")
    a("s_mov_b32 exec_hi, 0")
    a(f"buffer_store_dword v{SB+4}, v15, s[16:19], s28 offen")
    a("s_mov_b64 exec, -1")
    a(f"v_add_f32 v{SA+12}, v{SA+12}, v{SA+10}")
    a(f"s_mov_b32 s30, {fhex(2.0**-60)}")
    a(f"s_mov_b32 s31, {fhex(2.0**60)}")
    a(f"v_cmp_le_f32 vcc, s30, v{SA+12}")
    a(f"v_cmp_ge_f32 s[24:25], s31, v{SA+12}")
    a("s_and_b64 vcc, vcc, s[24:25]")
    a("s_cmp_eq_u64 vcc, -1")
    a("s_cselect_b32 s24, 0, 1")
    a("s_lshl_b32 s25, s3, 2")
    a(f"s_add_u32 s25, s25, {8*2816}")
    a("v_mov_b32 v10, s25")
    a("v_mov_b32 v11, s24")
    a("ds_write_b32 v10, v11")
    a("v_and_b32 v10, 7, v0")
    a("v_lshlrev_b32 v10, 2, v10")
    a("s_waitcnt lgkmcnt(0)")
    a("s_barrier")
    a(f"ds_read_b32 v11, v10 offset:{8*2816}")
    a("s_waitcnt lgkmcnt(0)")
    a("v_cmp_ne_u32 vcc, 0, v11")
    a("s_cmp_eq_u64 vcc, 0")
    a("s_cbranch_scc1 K2_END")
    a("s_cmp_lg_u32 s15, 0")
    a("s_cbranch_scc1 K2_END")
    a("s_mov_b32 s15, 1")
    a("s_mov_b32 s20, s13")
    a("s_mov_b32 s21, 64")
    a("v_mov_b32 v10, 0xff800000")
    a("v_mov_b32 v11, 0xff800000")
    a.label("K2_MAXLOOP")
    a(f"buffer_load_dwordx4 {vr(kb(0),4)}, v7, s[16:19], s20 offen")
    a(f"buffer_load_dword v{kx(0)}, v8, s[16:19], s20 offen")
    a(f"s_add_u32 s20, s20, {KVT_BYTES}")
    a("s_waitcnt vmcnt(0)")
    a(f"v_mfma_f32_32x32x8_bf16 {vr(SA,16)}, {vr(kx(0),2)}, {vr(QAX,2)}, 0")
    a(f"v_mfma_f32_32x32x16_bf16 {vr(SA,16)}, {vr(kb(0),4)}, {vr(QA,4)}, {vr(SA,16)}")
    a(f"v_mfma_f32_32x32x8_bf16 {vr(SB,16)}, {vr(kx(0),2)}, {vr(QBX,2)}, 0")
    a(f"v_mfma_f32_32x32x16_bf16 {vr(SB,16)}, {vr(kb(0),4)}, {vr(QB,4)}, {vr(SB,16)}")
    a("s_nop 15")
    for r in range(8):
        a(f"v_max3_f32 v10, v10, v{SA+2*r}, v{SA+2*r+1}")
        a(f"v_max3_f32 v11, v11, v{SB+2*r}, v{SB+2*r+1}")
    a("s_sub_u32 s21, s21, 1")
    a("s_cmp_lg_u32 s21, 0")
    a("s_cbranch_scc1 K2_MAXLOOP")
    a("s_mov_b32 s24, 0xffff0000")
    a("v_cmp_eq_u32 vcc, 0, v5")
    for (m, qx) in ((10, QAX), (11, QBX)):
        a(f"v_mov_b32 v12, v{m}")
        a("s_nop 1")
        a(f"v_permlane32_swap_b32 v12, v{m}")
        a("s_nop 1")
        a(f"v_max_f32 v{m}, v{m}, v12")
        a(f"v_sub_f32 v{m}, 0, v{m}")
        a(f"v_cvt_pk_bf16_f32 v12, v{m}, v{m}")
        a("v_and_b32 v12, s24, v12")
        a(f"v_sub_f32 v13, v{m}, v12")
        a("v_cvt_pk_bf16_f32 v12, v12, v13")
        a(f"v_cndmask_b32 v{qx+1}, 0, v12, vcc")
    a("s_barrier")
    a("s_branch K2_RESTART")

def gen_conv(a):
    a("s_cmp_ge_u32 s2, 192")
    a("s_cbranch_scc1 K2_END")
    a("s_cmp_ge_u32 s3, 11")
    a("s_cbranch_scc1 K2_END")
    a("s_mul_i32 s4, s2, 3")
    a("s_add_u32 s4, s4, s3")
    a("s_sub_u32 s4, s4, 8")
    a("v_and_b32 v1, 15, v0")
    a("v_lshrrev_b32 v2, 4, v0")
    a("v_sub_u32 v3, 15, v1")
    a("v_lshl_add_u32 v3, v2, 3, v3")
    a("v_lshlrev_b32 v3, 1, v3")
    a("v_lshlrev_b32 v4, 5, v1")
    a("v_lshl_add_u32 v4, v2, 4, v4")
    a("v_add_u32 v4, 32, v4")
    a(f"s_mul_i32 s5, s4, {KR_STRIDE}")
    a(f"s_add_u32 s5, s5, {KR_OFF}")
    a(f"s_mul_i32 s6, s4, {UT_STRIDE}")
    a(f"s_add_u32 s6, s6, {UT_OFF}")
    a("s_mov_b32 s7, s6")
    AC = 6; B0 = 38
    def F(b, mu): return B0 + 64*b + 4*mu
    def X(b, tau): return B0 + 64*b + 32 + 4*tau
    def loads(b):
        for k in range(8):
            a(f"buffer_load_dwordx4 {vr(F(b,k),4)}, v3, s[16:19], s5 offen offset:{512*(7-k)}")
            a(f"buffer_load_dwordx4 {vr(X(b,k),4)}, v4, s[16:19], s6 offen offset:{512*k}")
        a("s_add_u32 s5, s5, 64")
        a("s_add_u32 s6, s6, 64")
    def mms(b):
        for mu in range(8):
            for t in range(mu, 8):
                a(f"v_mfma_f32_16x16x32_bf16 {vr(AC+4*t,4)}, {vr(F(b,mu),4)}, {vr(X(b,t-mu),4)}, {vr(AC+4*t,4)}")
    loads(0)
    for r in range(32): a(f"v_mov_b32 v{AC+r}, 0")
    a("s_mov_b32 s8, 4")
    a.label("K2_CLOOP")
    loads(1)
    a("s_waitcnt vmcnt(16)")
    mms(0)
    loads(0)
    a("s_waitcnt vmcnt(16)")
    mms(1)
    a("s_sub_u32 s8, s8, 1")
    a("s_cmp_lg_u32 s8, 0")
    a("s_cbranch_scc1 K2_CLOOP")
    a("v_lshlrev_b32 v3, 5, v1")
    a("v_lshl_add_u32 v3, v2, 3, v3")
    a("s_add_u32 s7, s7, 512")
    U = B0+64
    for t in range(8):
        a(f"buffer_load_dwordx2 {vr(U+2*t,2)}, v3, s[16:19], s7 offen offset:{512*t}")
    a("s_lshl_b32 s9, s4, 1")
    a("v_mov_b32 v4, s9")
    a(f"global_load_ushort v5, v4, s[{S_DSKIP}:{S_DSKIP+1}]")
    a("v_lshrrev_b32 v4, 1, v1")
    a("v_mul_u32_u24 v4, 36864, v4")
    a("v_and_b32 v1, 1, v1")
    a("v_lshl_add_u32 v4, v1, 5, v4")
    a("v_lshl_add_u32 v4, v2, 3, v4")
    a("s_lshl_b32 s9, s4, 6")
    a(f"s_add_u32 s9, s9, {AF_OFF}")
    a("s_mov_b32 s10, 0xffff0000")
    a("s_waitcnt vmcnt(0)")
    a("v_lshlrev_b32 v5, 16, v5")
    TT = U+16
    for t in range(8):
        o = TT + 8*(t % 2)
        for k in range(2):
            y = AC+4*t+2*k; u = U+2*t+k
            a(f"v_cvt_pk_bf16_f32 v{y}, v{y}, v{y+1}")
            a(f"v_lshlrev_b32 v{o+2}, 16, v{u}")
            a(f"v_and_b32 v{o+3}, s10, v{u}")
            a(f"v_mul_f32 v{o+2}, v{o+2}, v5")
            a(f"v_mul_f32 v{o+3}, v{o+3}, v5")
            a(f"v_cvt_pk_bf16_f32 v{o+2}, v{o+2}, v{o+3}")
            a(f"v_and_b32 v{y+1}, s10, v{y}")
            a(f"v_lshlrev_b32 v{y}, 16, v{y}")
            a(f"v_and_b32 v{o+3}, s10, v{o+2}")
            a(f"v_lshlrev_b32 v{o+2}, 16, v{o+2}")
            a(f"v_add_f32 v{y}, v{y}, v{o+2}")
            a(f"v_add_f32 v{y+1}, v{y+1}, v{o+3}")
            a(f"v_cvt_pk_bf16_f32 v{o+k}, v{y}, v{y+1}")
        a(f"buffer_store_dwordx2 {vr(o,2)}, v4, s[16:19], s9 offen")
        a(f"s_add_u32 s9, s9, {8*36864}")
```

```python
from asmlib import *
from layout import *
from k1 import load_kernargs, emit_ident, gen_ident_nat

K3_LDS = 6*4096
def gen_k3(a, name):
    kernel_begin(a, name)
    a("s_cmp_ge_u32 s2, 192")
    a("s_cbranch_scc1 K3_END")
    load_kernargs(a)
    a("v_lshrrev_b32 v1, 6, v0")
    a("v_and_b32 v0, 63, v0")
    a("v_readfirstlane_b32 s3, v1")
    a("v_and_b32 v4, 31, v0")
    a("v_lshrrev_b32 v5, 5, v0")
    a("v_lshlrev_b32 v6, 4, v0")
    a("s_and_b32 s4, s2, 7")
    a("s_lshl_b32 s4, s4, 2")
    a("s_bfe_u32 s5, s2, 0x20003")
    a("s_add_u32 s4, s4, s5")
    a("s_lshr_b32 s5, s2, 5")
    a("s_cmp_ge_u32 s3, 3")
    a("s_cselect_b32 s6, 1, 0")
    a("s_mul_i32 s7, s6, 3")
    a("s_sub_u32 s7, s3, s7")
    a("s_mul_i32 s5, s5, 3")
    a("s_add_u32 s5, s5, s7")
    a("s_lshl_b32 s8, s4, 1")
    a("s_add_u32 s8, s8, s6")
    a("s_xor_b32 s9, s8, 1")
    a("s_mul_i32 s10, s6, 18*1024")
    a("s_mul_i32 s11, s5, 36*1024")
    a("s_add_u32 s11, s11, s10")
    a(f"s_add_u32 s11, s11, {WOF_OFF}")
    a("s_mul_i32 s12, s8, 36*1024")
    a("s_add_u32 s12, s12, s10")
    a(f"s_add_u32 s12, s12, {OF_OFF}")
    a("s_mul_i32 s13, s9, 36*1024")
    a("s_add_u32 s13, s13, s10")
    a(f"s_add_u32 s13, s13, {OF_OFF}")
    a("s_waitcnt lgkmcnt(0)")
    srd(a, 16, S_WS, WS_USED)
    srd(a, 20, S_OUT, X_BYTES)
    DA = 8; DB = 24; FR = 40
    for s in range(18):
        o = (s % 4) * 1024
        a(f"buffer_load_dwordx4 {vr(FR+12*s,4)}, v6, s[16:19], s11 offen offset:{o}")
        a(f"buffer_load_dwordx4 {vr(FR+12*s+4,4)}, v6, s[16:19], s12 offen offset:{o}")
        a(f"buffer_load_dwordx4 {vr(FR+12*s+8,4)}, v6, s[16:19], s13 offen offset:{o}")
        if s % 4 == 3:
            a("s_add_u32 s11, s11, 4096")
            a("s_add_u32 s12, s12, 4096")
            a("s_add_u32 s13, s13, 4096")
    for s in range(18):
        a(f"s_waitcnt vmcnt({3*(17-s) + (3 if s>=2 else 0)})")
        ca = "0" if s == 0 else vr(DA,16); cb = "0" if s == 0 else vr(DB,16)
        a(f"v_mfma_f32_32x32x16_bf16 {vr(DB,16)}, {vr(FR+12*s,4)}, {vr(FR+12*s+8,4)}, {cb}")
        a(f"v_mfma_f32_32x32x16_bf16 {vr(DA,16)}, {vr(FR+12*s,4)}, {vr(FR+12*s+4,4)}, {ca}")
        if s == 1:
            a("s_mul_i32 s14, s8, 36864")
            a("s_lshl_b32 s15, s5, 11")
            a("s_add_u32 s14, s14, s15")
            a(f"s_add_u32 s14, s14, {AF_OFF}")
            a("v_lshlrev_b32 v7, 6, v4")
            a("v_lshl_add_u32 v7, v5, 4, v7")
            a(f"buffer_load_dwordx4 {vr(FR,4)}, v7, s[16:19], s14 offen")
            a(f"buffer_load_dwordx4 {vr(FR+4,4)}, v7, s[16:19], s14 offen offset:32")
            a("s_lshl_b32 s14, s8, 8")
            a(f"s_add_u32 s14, s14, {G_OFF}")
            a("v_lshlrev_b32 v7, 3, v4")
            a(f"buffer_load_dwordx2 {vr(FR+8,2)}, v7, s[16:19], s14 offen")
    I0 = FR+24; I1 = FR+28; t = FR+32
    a(f"v_lshlrev_b32 v{t}, 3, v5")
    a(f"v_sub_u32 v{t}, v4, v{t}")
    emit_ident(a, I0, t, t+1, t+2)
    a(f"v_subrev_u32 v{t}, 16, v{t}")
    emit_ident(a, I1, t, t+1, t+2)
    a("s_lshl_b32 s24, s3, 12")
    a("v_add_u32 v7, s24, v6")
    for q in range(4):
        a(f"ds_write_b128 v7, {vr(DB+4*q,4)} offset:{1024*q}")
    a("s_waitcnt vmcnt(0)")
    DY = FR+48
    a(f"v_mfma_f32_32x32x16_bf16 {vr(DY,16)}, {vr(FR,4)}, {vr(I0,4)}, 0")
    a(f"v_mfma_f32_32x32x16_bf16 {vr(DY,16)}, {vr(FR+4,4)}, {vr(I1,4)}, {vr(DY,16)}")
    a("s_cmp_ge_u32 s3, 3")
    a("s_cselect_b32 s25, -3, 3")
    a("s_add_u32 s25, s25, s3")
    a("s_lshl_b32 s25, s25, 12")
    a("v_add_u32 v7, s25, v6")
    a("s_waitcnt lgkmcnt(0)")
    a("s_barrier")
    PB = FR+64
    for q in range(4):
        a(f"ds_read_b128 {vr(PB+4*q,4)}, v7 offset:{1024*q}")
    a("s_lshl_b32 s26, s8, 5")
    a("v_add_u32 v7, s26, v4")
    a("v_mul_u32_u24 v7, 1152, v7")
    a("v_lshl_add_u32 v7, v5, 4, v7")
    a("s_lshl_b32 s26, s5, 6")
    a("s_mov_b32 s27, 0xffff0000")
    a("s_nop 4")
    a("s_waitcnt lgkmcnt(0)")
    g = FR+8; og = FR+9
    R = FR+80
    for k in range(8):
        b = DA+2*k; y = DY+2*k
        a(f"v_add_f32 v{b}, v{b}, v{PB+2*k}")
        a(f"v_add_f32 v{b+1}, v{b+1}, v{PB+2*k+1}")
        a(f"v_mul_f32 v{y}, v{y}, v{g}")
        a(f"v_mul_f32 v{y+1}, v{y+1}, v{g}")
        a(f"v_cvt_pk_bf16_f32 v{b}, v{b}, v{b+1}")
        a(f"v_cvt_pk_bf16_f32 v{y}, v{y}, v{y+1}")
        a(f"v_and_b32 v{b+1}, s27, v{b}")
        a(f"v_lshlrev_b32 v{b}, 16, v{b}")
        a(f"v_mul_f32 v{b}, v{b}, v{og}")
        a(f"v_mul_f32 v{b+1}, v{b+1}, v{og}")
        a(f"v_cvt_pk_bf16_f32 v{b}, v{b}, v{b+1}")
        a(f"v_and_b32 v{y+1}, s27, v{y}")
        a(f"v_lshlrev_b32 v{y}, 16, v{y}")
        a(f"v_and_b32 v{b+1}, s27, v{b}")
        a(f"v_lshlrev_b32 v{b}, 16, v{b}")
        a(f"v_add_f32 v{b}, v{b}, v{y}")
        a(f"v_add_f32 v{b+1}, v{b+1}, v{y+1}")
        a(f"v_cvt_pk_bf16_f32 v{R+k}, v{b}, v{b+1}")
    a("s_nop 1")
    for k in (0, 4):
        a(f"v_permlane32_swap_b32 v{R+k}, v{R+k+2}")
        a(f"v_permlane32_swap_b32 v{R+k+1}, v{R+k+3}")
    a(f"buffer_store_dwordx4 {vr(R,4)}, v7, s[20:23], s26 offen")
    a(f"buffer_store_dwordx4 {vr(R+4,4)}, v7, s[20:23], s26 offen offset:32")
    a.label("K3_END")
    a("s_endpgm")
```

```python
L=2048; D=576; H=32
QT_BYTES=1152
KVT_BYTES=2304
QF_OFF=0
QF_SZ=32*64*QT_BYTES
KV_OFF=QF_OFF+QF_SZ
KV_SZ=32*64*KVT_BYTES
OF_OFF=KV_OFF+KV_SZ
OF_SZ=64*36*1024
WOF_OFF=OF_OFF+OF_SZ
WOF_SZ=18*36*1024
UT_OFF=WOF_OFF+WOF_SZ
UT_STRIDE=(256+2048)*2
UT_SZ=576*UT_STRIDE
KR_OFF=UT_OFF+UT_SZ
KR_STRIDE=(2048+64)*2
KR_SZ=576*KR_STRIDE
AF_OFF=KR_OFF+KR_SZ
AF_SZ=64*576*64
G_OFF=AF_OFF+AF_SZ
G_SZ=2048*8
WS_USED=G_OFF+G_SZ
X_BYTES=2048*576*2
W_BYTES=576*1728*2
WO_BYTES=576*576*2
import math
QSCALE = (18**-0.5)*math.log2(math.e)
S_X=32; S_LOGA=34; S_AIM=36; S_CR=38; S_CI=40; S_LOGDT=42; S_DSKIP=44; S_W=48; S_WO=50; S_GW=52; S_OUT=54; S_DBG=56; S_WS=58
if __name__=="__main__":
    for k,v in list(globals().items()):
        if k.isupper(): print(k,v)
```

```python
import sys
from asmlib import *
from layout import *
import k1, k2, k3
NAME = "gated_mix__ssm_conv_s4d__mha_block__prompt"
hdr = open(f"cdna_kernels/{NAME}.s.ref").read().split("; Override launch")[0]
a = Asm()
out = hdr
out += f"; @launch kernel=k1_kernel grid=(256,1,1) block=(512,1,1) lds={k1.K1_LDS}\n"
out += f"; @launch kernel=k2_kernel grid=(256,1,1) block=(768,1,1) lds={k2.K2_LDS}\n"
out += f"; @launch kernel=k3_kernel grid=(192,1,1) block=(384,1,1) lds={k3.K3_LDS}\n"
a('.amdgcn_target "amdgcn-amd-amdhsa--gfx950"')
a(".text")
k1.gen_k1(a, "k1_kernel")
k2.gen_k2(a, "k2_kernel")
k3.gen_k3(a, "k3_kernel")
out += a.text()
out += '.section .rodata,"a"\n'
out += kernel_desc("k1_kernel", 256)
out += kernel_desc("k2_kernel", 168)
out += kernel_desc("k3_kernel", 256)
dst = sys.argv[1] if len(sys.argv) > 1 else f"cdna_kernels/{NAME}.s"
open(dst, "w").write(out)
print("wrote", dst, len(out))
```

```python
class Asm:
    def __init__(self):
        self.lines = []
        self._lab = 0
    def __call__(self, s=""):
        for ln in s.split("\n"):
            ln = ln.strip()
            if ln == "": continue
            if ln.endswith(":") or ln.startswith(".") or ln.startswith(";"):
                self.lines.append(ln)
            else:
                self.lines.append("    " + ln)
    def label(self, name): self.lines.append(name + ":")
    def newlabel(self, base="L"):
        self._lab += 1
        return f"{base}_{self._lab}"
    def text(self): return "\n".join(self.lines) + "\n"

def vr(b, n=1):
    return f"v{b}" if n == 1 else f"v[{b}:{b+n-1}]"
def sr(b, n=1):
    return f"s{b}" if n == 1 else f"s[{b}:{b+n-1}]"
def ar(b, n=1):
    return f"a{b}" if n == 1 else f"a[{b}:{b+n-1}]"

def srd(a, d, base, nbytes):
    if d != base:
        a(f"s_mov_b32 s{d}, s{base}")
        a(f"s_mov_b32 s{d+1}, s{base+1}")
    a(f"s_mov_b32 s{d+2}, {nbytes}")
    a(f"s_mov_b32 s{d+3}, 0x20000")

import struct
def f2u(x): return struct.unpack("<I", struct.pack("<f", x))[0]
def fhex(x): return "0x%08x" % f2u(x)

def kernel_begin(a, name):
    a(f".globl {name}")
    a(".p2align 8")
    a(f".type {name},@function")
    a.label(name)

def kernel_desc(name, vgpr, sgpr=102, accum=None):
    if accum is None: accum = (vgpr + 3) // 4 * 4
    return f""".p2align 6
.amdhsa_kernel {name}
  .amdhsa_next_free_vgpr {vgpr}
  .amdhsa_next_free_sgpr {sgpr}
  .amdhsa_accum_offset {accum}
  .amdhsa_group_segment_fixed_size 0
  .amdhsa_kernarg_size 112
  .amdhsa_user_sgpr_count 2
  .amdhsa_user_sgpr_kernarg_segment_ptr 1
  .amdhsa_system_sgpr_workgroup_id_x 1
.end_amdhsa_kernel
"""


import os
PROF = bool(int(os.environ.get("PROF", "0")))
PROF_OFF = 18*1024*1024
PROF_SZ = 4*256*16*64
def stamp(a, i):
    if PROF:
        a(f"s_memrealtime s[{80+2*i}:{81+2*i}]")
def stamp_init(a):
    if PROF:
        for i in range(1,8): a(f"s_mov_b64 s[{80+2*i}:{81+2*i}], 0")
        stamp(a, 0)
def stamp_flush(a, kidx, ws_sreg=58):
    if not PROF: return
    if os.environ.get("PROF","0") != "4": stamp(a, 7)
    if os.environ.get("HWID","0") == "1":
        a("s_waitcnt lgkmcnt(0)")
        a("s_getreg_b32 s92, hwreg(HW_REG_HW_ID)")
        a("s_getreg_b32 s93, hwreg(HW_REG_XCC_ID)")
    a("s_mov_b64 exec, -1")
    a(f"s_mov_b32 s76, s{ws_sreg}")
    a(f"s_mov_b32 s77, s{ws_sreg+1}")
    a(f"s_mov_b32 s78, {PROF_OFF+PROF_SZ}")
    a("s_mov_b32 s79, 0x20000")
    a(f"s_add_u32 s75, s2, {kidx*256}")
    a("s_lshl_b32 s75, s75, 4")
    a("s_add_u32 s75, s75, s3")
    a("s_lshl_b32 s75, s75, 6")
    a(f"s_add_u32 s75, s75, {PROF_OFF}")
    a("s_waitcnt lgkmcnt(0)")
    a("v_mov_b32 v1, 0")
    for i in range(16):
        a(f"v_writelane_b32 v1, s{80+i}, {i}")
    a("v_mbcnt_lo_u32_b32 v2, -1, 0")
    a("v_lshlrev_b32 v2, 2, v2")
    a("s_mov_b64 exec, 0xffff")
    a("buffer_store_dword v1, v2, s[76:79], s75 offen")

def cstamp(a, i):
    if PROF:
        a(f"s_memtime s[{80+2*i}:{81+2*i}]")
```

```python
import os, math, struct
from asmlib import *
from layout2 import *

LOG2E = math.log2(math.e)
SC = os.environ.get("SC", "sc1")
SCKV = os.environ.get("SCKV", "sc1")
SPIN_MAX = 1 << 22
XP = os.environ.get("XP","")
FINE = os.environ.get("FINE","0") == "1"
MINSLEEP = int(os.environ.get("MINSLEEP","0"))
ULATE = os.environ.get("ULATE","0") == "1"
STG = 32768
ROT = os.environ.get("ROT","5")
PROFB = os.environ.get("PROF","0") == "2"
PROFC = os.environ.get("PROF","0") == "3"
PROFD = os.environ.get("PROF","0") == "4"
_stamp = stamp
def stamp(a, i, force=False):
    if PROFD: return
    if PROFC and not force and i not in (0,7): return
    _stamp(a, i)

def emit_tau(a, dst, src, t):
    a(f"v_lshrrev_b32 v{t}, 1, v{src}")
    a(f"v_xor_b32 v{t}, v{t}, v{src}")
    a(f"v_and_b32 v{t}, 4, v{t}")
    a(f"v_mul_u32_u24 v{t}, 3, v{t}")
    a(f"v_xor_b32 v{dst}, v{src}, v{t}")

def emit_ident(a, dst, e, t0, t1, n=4):
    a(f"v_and_b32 v{t0}, 1, v{e}")
    a(f"v_lshlrev_b32 v{t0}, 4, v{t0}")
    a(f"v_mov_b32 v{t1}, 0x3f80")
    a(f"v_lshlrev_b32 v{t0}, v{t0}, v{t1}")
    a(f"v_ashrrev_i32 v{t1}, 1, v{e}")
    for q in range(n):
        a(f"v_cmp_eq_u32 s[{60+2*q}:{61+2*q}], {q}, v{t1}")
    a("s_nop 1")
    for q in range(n):
        a(f"v_cndmask_b32 v{dst+q}, 0, v{t0}, s[{60+2*q}:{61+2*q}]")

def ident_nat(a, lo, hi, t):
    a(f"v_lshlrev_b32 v{t}, 3, v5")
    a(f"v_sub_u32 v{t}, v4, v{t}")
    emit_ident(a, lo, t, t+1, t+2)
    a(f"v_subrev_u32 v{t}, 16, v{t}")
    emit_ident(a, hi, t, t+1, t+2)

def exp_precise(a, dst, x, t0, t1):
    a(f"v_mul_f32 v{t0}, s70, v{x}")
    a(f"v_fma_f32 v{t1}, v{x}, s70, -v{t0}")
    a(f"v_fma_f32 v{t1}, v{x}, s71, v{t1}")
    a(f"v_exp_f32 v{t0}, v{t0}")
    a(f"v_mul_f32 v{t1}, s72, v{t1}")
    a(f"v_fma_f32 v{dst}, v{t0}, v{t1}, v{t0}")

def lds_add(a, word):
    a("s_mov_b64 exec, 1")
    a(f"ds_add_u32 v3, v1 offset:{4*word}")
    a("s_mov_b64 exec, -1")

def lds_wait(a, word, val, sleep=0, pre_read=False, ge=True):
    lab = a.newlabel("LW"); ok = a.newlabel("LWOK")
    if pre_read:
        a("v_readfirstlane_b32 s96, v2")
        a(f"s_cmp_ge_u32 s96, {val}")
        a(f"s_cbranch_scc1 {ok}")
    a(f"s_mov_b32 s97, {SPIN_MAX}")
    a.label(lab)
    a(f"ds_read_b32 v2, v3 offset:{4*word}")
    a("s_waitcnt lgkmcnt(0)")
    a("v_readfirstlane_b32 s96, v2")
    a(f"s_cmp_ge_u32 s96, {val}")
    a(f"s_cbranch_scc1 {ok}")
    sleep = max(sleep, MINSLEEP)
    if sleep: a(f"s_sleep {sleep}")
    a("s_sub_u32 s97, s97, 1")
    a(f"s_cbranch_scc0 {lab}")
    a.label(ok)

def full_wait(a, n, sleep=0):
    lab = a.newlabel("FL"); ok = a.newlabel("FLOK")
    a(f"s_mov_b32 s97, {SPIN_MAX}")
    a.label(lab)
    a(f"ds_read_b128 v[164:167], v3 offset:{4*SY_FULL}")
    a("s_waitcnt lgkmcnt(0)")
    a("v_min3_u32 v164, v164, v165, v166")
    a("v_min_u32 v164, v164, v167")
    a("s_nop 0")
    a("v_readfirstlane_b32 s96, v164")
    a(f"s_cmp_ge_u32 s96, {n}")
    a(f"s_cbranch_scc1 {ok}")
    if sleep: a(f"s_sleep {sleep}")
    a("s_sub_u32 s97, s97, 1")
    a(f"s_cbranch_scc0 {lab}")
    a.label(ok)

def get_nonce(a):
    lds_wait(a, SY_NONCE, 1)
    a("s_mov_b32 s74, s96")

def flag_set(a, soff, t):
    a(f"v_mov_b32 v{t}, 0")
    a(f"v_mov_b32 v{t+1}, s74")
    a("s_mov_b64 exec, 1")
    a(f"buffer_store_dword v{t+1}, v{t}, s[16:19], {soff} offen sc1")
    a("s_mov_b64 exec, -1")

def publish(a, word, nwaves, soff, t):
    skip = a.newlabel("PB")
    a("s_mov_b64 exec, 1")
    a(f"ds_add_rtn_u32 v2, v3, v1 offset:{4*word}")
    a("s_mov_b64 exec, -1")
    a("s_waitcnt lgkmcnt(0)")
    a("v_readfirstlane_b32 s96, v2")
    a(f"s_cmp_lg_u32 s96, {nwaves-1}")
    a(f"s_cbranch_scc1 {skip}")
    flag_set(a, soff, t)
    a.label(skip)

def flag_wait_multi(a, voffs, t, sleep=2):
    lab = a.newlabel("FW"); ok = a.newlabel("FWOK")
    a(f"s_mov_b32 s97, {SPIN_MAX>>4}")
    a.label(lab)
    for k, v in enumerate(voffs):
        a(f"buffer_load_dword v{t+k}, v{v}, s[16:19], 0 offen sc1")
    a("s_waitcnt vmcnt(0)")
    for k in range(len(voffs)):
        a(f"v_xor_b32 v{t+k}, s74, v{t+k}")
    for k in range(1, len(voffs)):
        a(f"v_or_b32 v{t}, v{t}, v{t+k}")
    a(f"v_cmp_ne_u32 vcc, 0, v{t}")
    a("s_cmp_eq_u64 vcc, 0")
    a(f"s_cbranch_scc1 {ok}")
    if sleep: a(f"s_sleep {sleep}")
    a("s_sub_u32 s97, s97, 1")
    a(f"s_cbranch_scc0 {lab}")
    a.label(ok)

def flag_wait(a, voff, n, t, sleep=2):
    lab = a.newlabel("FW"); ok = a.newlabel("FWOK")
    op = {1: "dword", 2: "dwordx2", 4: "dwordx4"}[n]
    a(f"s_mov_b32 s97, {SPIN_MAX>>4}")
    a.label(lab)
    a(f"buffer_load_{op} {vr(t,n)}, v{voff}, s[16:19], 0 offen sc1")
    a("s_waitcnt vmcnt(0)")
    for k in range(n):
        a(f"v_xor_b32 v{t+k}, s74, v{t+k}")
    for k in range(1, n):
        a(f"v_or_b32 v{t}, v{t}, v{t+k}")
    a(f"v_cmp_ne_u32 vcc, 0, v{t}")
    a("s_cmp_eq_u64 vcc, 0")
    a(f"s_cbranch_scc1 {ok}")
    if sleep: a(f"s_sleep {sleep}")
    a("s_sub_u32 s97, s97, 1")
    a(f"s_cbranch_scc0 {lab}")
    a.label(ok)

def finish(a):
    stamp_flush(a, 0)
    a("s_endpgm")

def start_sync(a):
    a("s_waitcnt lgkmcnt(0)")
    a("s_barrier")

def gen(a, name):
    kernel_begin(a, name)
    a("s_cmp_ge_u32 s2, 256")
    a("s_cbranch_scc1 F_END")
    a("s_load_dwordx2 s[8:9], s[0:1], 0")
    a("s_load_dwordx2 s[12:13], s[0:1], 64")
    a("s_load_dwordx2 s[16:17], s[0:1], 104")
    a("s_load_dwordx16 s[32:47], s[0:1], 0")
    a("s_load_dwordx8 s[48:55], s[0:1], 64")
    a("s_load_dwordx4 s[56:59], s[0:1], 96")
    if os.environ.get("CPF","0") == "1":
        a("s_getpc_b64 s[60:61]")
        a("s_lshr_b32 s62, s2, 3")
        a("s_lshl_b32 s62, s62, 10")
        a("v_lshlrev_b32 v20, 7, v0")
        a("v_add_u32 v20, s62, v20")
        a("v_cmp_gt_u32 vcc, 8, v0")
        a("s_and_saveexec_b64 s[64:65], vcc")
        a("s_cbranch_execz CPF_SKIP")
        a("global_load_dword v21, v20, s[60:61]")
        a.label("CPF_SKIP")
        a("s_mov_b64 exec, s[64:65]")
    stamp_init(a)
    a("v_lshrrev_b32 v1, 6, v0")
    a("v_and_b32 v0, 63, v0")
    a("v_readfirstlane_b32 s3, v1")
    a("v_mov_b32 v2, 0")
    a(f"v_mov_b32 v3, {L_SYNC}")
    a("v_lshl_add_u32 v4, v0, 2, v3")
    a("ds_write_b32 v4, v2")
    a("v_mov_b32 v1, 1")
    a("v_and_b32 v4, 31, v0")
    a("v_lshrrev_b32 v5, 5, v0")
    a("s_and_b32 s4, s2, 1")
    a("s_lshl_b32 s4, s4, 3")
    a("s_bfe_u32 s6, s2, 0x30003")
    a("s_add_u32 s4, s4, s6")
    a("s_bfe_u32 s5, s2, 0x20001")
    a("s_lshl_b32 s5, s5, 2")
    a("s_lshr_b32 s7, s2, 6")
    a("s_add_u32 s5, s5, s7")
    a(f"s_mov_b32 s18, {WS_USED}")
    a("s_mov_b32 s19, 0x20000")
    a("v_lshrrev_b32 v7, 4, v0")
    a("v_bfe_u32 v8, v0, 2, 2")
    a("v_and_b32 v9, 3, v0")
    a("v_lshrrev_b32 v10, 1, v9")
    a("v_lshlrev_b32 v10, 3, v10")
    a("v_lshl_add_u32 v10, v9, 4, v10")
    a("v_mul_u32_u24 v11, 72, v7")
    a("v_add_u32 v10, v10, v11")
    a("v_min_u32 v11, 2, v9")
    a("v_mul_u32_u24 v11, 72, v11")
    a("v_add_u32 v11, 32, v11")
    a("v_cmp_eq_u32 vcc, 3, v7")
    a("v_mul_u32_u24 v12, 3456, v8")
    a("v_lshrrev_b32 v9, 3, v0")
    a("v_cndmask_b32 v10, v10, v11, vcc")
    a("v_add_u32 v6, v10, v12")
    a("v_and_b32 v10, 7, v0")
    a("v_lshrrev_b32 v11, 1, v9")
    a("v_xor_b32 v10, v10, v11")
    a("v_mul_u32_u24 v9, 1152, v9")
    a("v_lshl_add_u32 v7, v10, 4, v9")
    a("v_xor_b32 v10, 4, v10")
    a("v_lshl_add_u32 v8, v10, 4, v9")
    a("v_add_u32 v8, 8192, v8")
    a("v_add_u32 v9, 12800, v6")
    a("s_mul_i32 s22, s5, 216")
    a(f"s_mul_i32 s27, s3, {4*13824}")
    a("s_add_u32 s22, s22, s27")
    a("s_lshl_b32 s23, s4, 2")
    a("s_add_u32 s23, s23, s3")
    a(f"s_mul_i32 s23, s23, {32*1152}")
    a("s_lshl_b32 s24, s3, 12")
    a("s_add_u32 s20, s6, s7")
    if ROT == "9":
        a("s_add_u32 s20, s20, s7")
        a("s_sub_u32 s27, s20, 9")
        a("s_cmp_ge_u32 s20, 9")
        a("s_cselect_b32 s20, s27, s20")
    else:
        a("s_and_b32 s21, s20, 3")
        for _ in range(2):
            a("s_sub_u32 s27, s20, 5")
            a("s_cmp_ge_u32 s20, 5")
            a("s_cselect_b32 s20, s27, s20")
    a("s_waitcnt lgkmcnt(0)")
    a("s_cmp_ge_u32 s3, 4")
    a("s_cbranch_scc1 F_NOTLOADER")
    gen_loader(a)
    a.label("F_NOTLOADER")
    a("s_cmp_lt_u32 s3, 8")
    a("s_cbranch_scc1 F_GEMM")
    aux_pre(a)
    for _ in range(9): a("s_barrier")
    a("s_branch F_AUX")
    a.label("F_GEMM")
    gen_gemm(a)
    a.label("F_ATTN")
    gen_attn(a)
    a.label("F_P3")
    gen_p3(a)
    a.label("F_AUX")
    a("s_cmp_eq_u32 s3, 11")
    a("s_cbranch_scc1 F_MISC")
    a("s_cmp_ge_u32 s2, 192")
    a("s_cbranch_scc1 F_WO")
    gen_kgen(a)
    gen_conv(a)
    a.label("F_WO")
    gen_wo(a)
    a.label("F_MISC")
    gen_misc(a)
    a.label("F_FIN")
    stamp_flush(a, 0)
    a.label("F_END")
    a("s_endpgm")

def gen_loader(a):
    a("s_add_u32 s12, s12, s22")
    a("s_addc_u32 s13, s13, 0")
    a("s_add_u32 s8, s8, s23")
    a("s_addc_u32 s9, s9, 0")
    def chunk_setup(i):
        if ROT == "9": reg, base, n = "s20", 0, 9
        elif i < 5: reg, base, n = "s20", 0, 5
        else: reg, base, n = "s21", 5, 4
        a(f"s_mul_i32 s25, {reg}, {16*13824}")
        a(f"s_lshl_b32 s26, {reg}, 7")
        if base:
            a(f"s_add_u32 s25, s25, {base*16*13824}")
            a(f"s_add_u32 s26, s26, {base*128}")
        a("s_add_u32 s14, s12, s25")
        a("s_addc_u32 s15, s13, 0")
        a("s_add_u32 s10, s8, s26")
        a("s_addc_u32 s11, s9, 0")
        a(f"s_add_u32 {reg}, {reg}, 1")
        a(f"s_cmp_eq_u32 {reg}, {n}")
        a(f"s_cselect_b32 {reg}, 0, {reg}")
    def half(i, hf):
        slot = (i % 4) * 32768
        a(f"s_add_u32 m0, s24, {slot + hf*2048}")
        if hf:
            a(f"s_add_u32 s14, s14, {2*13824}")
            a("s_addc_u32 s15, s15, 0")
        else: a("s_nop 0")
        a("global_load_lds_dwordx4 v6, s[14:15]")
        a("global_load_lds_dwordx4 v9, s[14:15] offset:1024")
        a("s_add_u32 m0, m0, 16384")
        if hf:
            a(f"s_add_u32 s10, s10, {2*9216}")
            a("s_addc_u32 s11, s11, 0")
        else: a("s_nop 0")
        a("global_load_lds_dwordx4 v7, s[10:11]")
        a("global_load_lds_dwordx4 v8, s[10:11] offset:1024")
    stamp(a, 1)
    def chunk(i):
        chunk_setup(i); half(i, 0); half(i, 1)
    chunk(0); chunk(1)
    for i in range(-1, 8):
        a(f"s_waitcnt vmcnt({8 if i < 7 else 0})")
        if i == -1: stamp(a, 2)
        if i == 3: stamp(a, 3)
        if i == 7: stamp(a, 4)
        a("s_barrier")
        if i + 3 <= 8: chunk(i + 3)
    a("s_branch F_ATTN")

ACC = 16; FB = 80
def epi_consts(a):
    emit_tau(a, 13, 4, 14)
    a("v_lshl_add_u32 v160, v5, 5, v13")
    a("v_lshlrev_b32 v160, 4, v160")
    a("v_lshlrev_b32 v161, 2, v13")
    a("v_add_u32 v161, 1024, v161")
    a("v_mul_u32_u24 v162, 288, v5")
    a("v_lshl_add_u32 v162, v4, 4, v162")
    a("v_add_u32 v162, 1152, v162")
    a("v_lshlrev_b32 v10, 3, v5")
    a("v_sub_u32 v10, v13, v10")
    emit_ident(a, 152, 10, 11, 12)
    a("v_lshlrev_b32 v10, 6, v5")
    a("v_add_u32 v10, v10, v4")
    a("v_subrev_u32 v10, 16, v10")
    emit_ident(a, 156, 10, 11, 12, n=1)
    a("v_mov_b32 v157, 0")
    a("v_mov_b32 v158, 0")
    a("v_mov_b32 v159, v156")
    a("v_cmp_eq_u32 s[68:69], 1, v5")

def gen_gemm(a):
    a("s_sub_u32 s8, s3, 4")
    a("s_lshl_b32 s6, s4, 2")
    a("s_add_u32 s6, s6, s8")
    a("v_bfe_u32 v10, v0, 2, 2")
    a("v_bfe_u32 v11, v0, 4, 1")
    a("v_and_b32 v12, 3, v0")
    a("v_lshlrev_b32 v6, 11, v5")
    a("v_lshl_add_u32 v6, v10, 6, v6")
    a("v_lshrrev_b32 v7, 1, v12")
    a("v_lshl_add_u32 v7, v11, 1, v7")
    a("v_lshl_add_u32 v7, v7, 4, v6")
    a("v_add_u32 v7, 768, v7")
    a("v_lshl_add_u32 v6, v11, 5, v6")
    a("v_lshl_add_u32 v6, v12, 3, v6")
    a("v_add_u32 v8, 0x10000, v6")
    a("v_add_u32 v9, 0x10000, v7")
    a("s_lshl_b32 s7, s8, 12")
    a("s_add_u32 s7, s7, 16384")
    a("v_lshl_add_u32 v14, v4, 7, s7")
    a("v_bfe_u32 v15, v4, 1, 3")
    a("v_xor_b32 v15, v15, v5")
    for sp in range(4):
        a(f"v_xor_b32 v12, {2*sp}, v15")
        a(f"v_lshl_add_u32 v{140+sp}, v12, 4, v14")
        a(f"v_add_u32 v{144+sp}, 0x10000, v{140+sp}")
    NB = 3
    def reads(s):
        i, sp = divmod(s, 4)
        slot = i % 4
        buf = FB + 20*(s % NB)
        m, e, x = (8, 9, 144+sp) if slot >= 2 else (6, 7, 140+sp)
        so = (slot % 2) * 32768
        out = [f"ds_read_b128 {vr(buf+16,4)}, v{x} offset:{so}"]
        for p in range(3):
            for j in range(2):
                out.append(f"ds_read_b64_tr_b16 {vr(buf+4*p+2*j,2)}, v{m} offset:{so+sp*4096+j*1024+p*256}")
        for j in range(2):
            out.append(f"ds_read_b64_tr_b16 {vr(buf+12+2*j,2)}, v{e} offset:{so+sp*4096+j*1024}")
        return out
    def mfmas(s, inter=(), cuts=(3, 5, 7, 30), first=0):
        buf = FB + 20*(s % NB)
        inter = list(inter)
        for p in range(first, 4):
            cin = "0" if s == 0 else vr(ACC+16*p,16)
            a(f"v_mfma_f32_32x32x16_bf16 {vr(ACC+16*p,16)}, {vr(buf+4*p,4)}, {vr(buf+16,4)}, {cin}")
            for ln in inter[(cuts[p-1] if p else 0):cuts[p]]: a(ln)
    epi_consts(a)
    if not XP: stamp(a, 1)
    a("s_barrier")
    stamp(a, 2)
    a("s_setprio 2")
    for ln in reads(0): a(ln)
    for ln in reads(1): a(ln)
    for s in range(36):
        i, sp = divmod(s, 4)
        a(f"s_waitcnt lgkmcnt({0 if s == 35 else 9})")
        if PROFD and s % 2 == 0 and 2 <= s <= 34:
            if s >= 4: a(f"s_mov_b32 s{80 + s//2 - 2}, s98")
            a("s_memtime s[98:99]")
        if sp == 2 and i < 8:
            mfmas(s, ["s_barrier"] + reads(s+2), cuts=(4, 6, 8, 30))
        elif s == 35:
            mfmas(s, ["s_mov_b64 exec, 1", f"ds_add_u32 v3, v1 offset:{4*SY_GDONE}", "s_mov_b64 exec, -1"])
        elif s + 2 < 36:
            mfmas(s, reads(s+2))
        else:
            mfmas(s)
    stamp(a, 3)
    a("s_nop 7")
    a("s_mul_i32 s24, s5, 3")
    T0 = FB
    for p in range(3):
        lv = a.newlabel("G_V"); ld = a.newlabel("G_SD")
        A0 = ACC+16*p; E0 = ACC+48+4*p
        a(f"s_add_u32 s25, s24, {p}")
        a("s_and_b32 s26, s25, 15")
        a("s_lshl_b32 s26, s26, 7")
        a("s_add_u32 s26, s26, s6")
        a("s_cmp_ge_u32 s25, 32")
        a(f"s_cbranch_scc1 {lv}")
        a("s_cmp_ge_u32 s25, 16")
        a(f"s_movk_i32 s27, {QT_BYTES}")
        a(f"s_cselect_b32 s27, {KVT_BYTES}, s27")
        a(f"s_cselect_b32 s28, {KV_OFF}, {QF_OFF}")
        a(f"s_cselect_b32 s29, 1.0, {fhex(QSCALE)}")
        a("s_mul_i32 s26, s26, s27")
        a("s_add_u32 s26, s26, s28")
        a("s_lshl_b32 s27, s27, 6")
        a("s_add_u32 s28, s26, s27")
        for r in range(16):
            a(f"v_mul_f32 v{A0+r}, s29, v{A0+r}")
        for r in range(4):
            a(f"v_mul_f32 v{E0+r}, s29, v{E0+r}")
        for r in range(8):
            a(f"v_cvt_pk_bf16_f32 v{A0+r}, v{A0+2*r}, v{A0+2*r+1}")
        a(f"v_cvt_pk_bf16_f32 v{E0}, v{E0}, v{E0+1}")
        a(f"v_cvt_pk_bf16_f32 v{E0+1}, v{E0+2}, v{E0+3}")
        a(f"buffer_store_dwordx4 {vr(A0,4)}, v160, s[16:19], s26 offen sc1")
        a(f"buffer_store_dwordx4 {vr(A0+4,4)}, v160, s[16:19], s28 offen sc1")
        a(f"v_mad_u32_u24 v{E0+2}, v5, s27, v161")
        a(f"v_cndmask_b32 v{E0}, v{E0}, v{E0+1}, s[68:69]")
        a(f"buffer_store_dword v{E0}, v{E0+2}, s[16:19], s26 offen sc1")
        a(f"s_branch {ld}")
        a.label(lv)
        a(f"s_mul_i32 s26, s26, {KVT_BYTES}")
        a(f"s_add_u32 s26, s26, {KV_OFF}")
        a(f"s_add_u32 s28, s26, {64*KVT_BYTES}")
        for r in range(8):
            a(f"v_cvt_pk_bf16_f32 v{A0+r}, v{A0+2*r}, v{A0+2*r+1}")
        a(f"v_cvt_pk_bf16_f32 v{E0}, v{E0}, v{E0+1}")
        a(f"v_cvt_pk_bf16_f32 v{E0+1}, v{E0+2}, v{E0+3}")
        a("s_nop 1")
        D0 = T0; D1 = T0+16
        a(f"v_mfma_f32_32x32x16_bf16 {vr(D0,16)}, {vr(A0,4)}, v[152:155], 0")
        a(f"v_mfma_f32_32x32x16_bf16 {vr(D1,16)}, {vr(A0+4,4)}, v[152:155], 0")
        a(f"v_mfma_f32_32x32x8_bf16 {vr(D0,16)}, {vr(E0,2)}, v[156:157], {vr(D0,16)}")
        a(f"v_mfma_f32_32x32x8_bf16 {vr(D1,16)}, {vr(E0,2)}, v[158:159], {vr(D1,16)}")
        a("s_nop 11")
        for r in range(8):
            a(f"v_cvt_pk_bf16_f32 v{A0+r}, v{D0+2*r}, v{D0+2*r+1}")
        for r in range(8):
            a(f"v_cvt_pk_bf16_f32 v{A0+8+r}, v{D1+2*r}, v{D1+2*r+1}")
        a("s_mov_b32 exec_lo, 0x3ffff")
        a("s_mov_b32 exec_hi, 0x3ffff")
        a(f"buffer_store_dwordx4 {vr(A0,4)}, v162, s[16:19], s26 offen sc1")
        a(f"buffer_store_dwordx4 {vr(A0+4,4)}, v162, s[16:19], s26 offen offset:576 sc1")
        a(f"buffer_store_dwordx4 {vr(A0+8,4)}, v162, s[16:19], s28 offen sc1")
        a(f"buffer_store_dwordx4 {vr(A0+12,4)}, v162, s[16:19], s28 offen offset:576 sc1")
        a("s_mov_b64 exec, -1")
        a.label(ld)
    a("s_lshl_b32 s24, s5, 4")
    a("s_add_u32 s24, s24, s4")
    a("s_lshl_b32 s24, s24, 7")
    a(f"s_add_u32 s24, s24, {FL_QKV}")
    get_nonce(a)
    a("s_setprio 0")
    a("s_waitcnt vmcnt(0)")
    publish(a, SY_CQ, 4, "s24", 10)
    if not XP: stamp(a, 4)

QA=16; QAX=20; QB=24; QBX=28; SA=32; SB=48; OA=64; OB=80; KVB=96
ONES=0x3f803f80
def kb(b): return KVB+14*b
def kx(b): return KVB+14*b+4
def v0r(b): return KVB+14*b+6
def v1r(b): return KVB+14*b+10
L_XCH = L_KC
def kv_loads(b):
    return [f"buffer_load_dwordx4 {vr(kb(b),4)}, v7, s[8:11], s20 offen {SCKV}",
            f"buffer_load_dword v{kx(b)}, v8, s[8:11], s20 offen {SCKV}",
            "s_mov_b64 exec, s[22:23]",
            f"buffer_load_dwordx4 {vr(v0r(b),4)}, v9, s[8:11], s20 offen {SCKV}",
            f"buffer_load_dwordx4 {vr(v1r(b),4)}, v9, s[8:11], s20 offen offset:576 {SCKV}",
            "s_mov_b64 exec, -1",
            f"s_add_u32 s20, s20, {KVT_BYTES}"]

def gen_attn(a):
    a("s_and_b32 s4, s2, 7")
    a("s_lshl_b32 s4, s4, 2")
    a("s_bfe_u32 s5, s2, 0x20003")
    a("s_add_u32 s4, s4, s5")
    a("s_lshr_b32 s5, s2, 5")
    a("s_lshr_b32 s6, s3, 2")
    a("s_and_b32 s7, s3, 3")
    a("s_lshl_b32 s7, s7, 1")
    a("s_lshl_b32 s5, s5, 3")
    a("s_add_u32 s7, s5, s7")
    a("s_add_u32 s30, s7, s6")
    a("s_xor_b32 s31, s30, 1")
    a("s_lshl_b32 s12, s4, 6")
    a("v_lshlrev_b32 v7, 4, v0")
    a("v_lshlrev_b32 v8, 2, v4")
    a("v_add_u32 v8, 1024, v8")
    a("s_add_u32 s24, s12, s30")
    a(f"s_mul_i32 s24, s24, {QT_BYTES}")
    a("s_add_u32 s25, s12, s31")
    a(f"s_mul_i32 s25, s25, {QT_BYTES}")
    a("v_mul_u32_u24 v9, 288, v5")
    a("v_lshl_add_u32 v9, v4, 4, v9")
    a("v_add_u32 v9, 1152, v9")
    a("s_mov_b32 s22, 0x3ffff")
    a("s_mov_b32 s23, 0x3ffff")
    a(f"s_mul_i32 s13, s12, {KVT_BYTES}")
    a(f"s_add_u32 s13, s13, {KV_OFF}")
    a(f"s_mul_i32 s14, s6, {32*KVT_BYTES}")
    a("s_add_u32 s14, s14, s13")
    a(f"s_mov_b32 s8, s{S_WS}")
    a(f"s_mov_b32 s9, s{S_WS+1}")
    a(f"s_add_u32 s10, s13, {64*KVT_BYTES}")
    a("s_mov_b32 s11, 0x20000")
    a("v_mov_b32 v6, 0xdddddddd")
    a(f"v_mov_b32 v{QAX+1}, 0")
    a(f"v_mov_b32 v{QBX+1}, 0")
    a("s_mov_b32 s15, 0")
    a(f"v_mov_b32 v10, {ONES}")
    a("v_and_b32 v11, 27, v4")
    a("v_cmp_eq_u32 vcc, 18, v11")
    for b in range(4):
        a(f"v_mov_b32 v{kx(b)+1}, v10")
    a("v_cndmask_b32 v10, 0, v10, vcc")
    for b in range(4):
        for r in range(8): a(f"v_mov_b32 v{v0r(b)+r}, v10")
    a("s_cmp_lg_u32 s3, 0")
    a("s_cbranch_scc1 A_WAITGO")
    get_nonce(a)
    a("s_lshr_b32 s26, s4, 1")
    a("s_mul_i32 s27, s26, 43")
    a("s_lshr_b32 s27, s27, 7")
    a("s_add_u32 s28, s26, 16")
    a("s_mul_i32 s28, s28, 43")
    a("s_lshr_b32 s28, s28, 7")
    a("s_add_u32 s29, s26, 32")
    a("s_mul_i32 s29, s29, 43")
    a("s_lshr_b32 s29, s29, 7")
    a("s_lshl_b32 s27, s27, 11")
    a("s_lshl_b32 s26, s5, 5")
    a("s_add_u32 s27, s27, s26")
    a("s_lshl_b32 s28, s28, 11")
    a("s_lshl_b32 s29, s29, 11")
    a("v_and_b32 v11, 15, v0")
    a("v_lshlrev_b32 v11, 7, v11")
    a("v_add_u32 v12, s28, v11")
    a("v_add_u32 v13, s29, v11")
    a("v_and_b32 v11, 128, v11")
    a("v_add_u32 v11, s27, v11")
    a("v_cmp_gt_u32 vcc, 16, v0")
    a("v_cmp_gt_u32 s[26:27], 32, v0")
    a("s_nop 1")
    a("v_cndmask_b32 v12, v13, v12, vcc")
    a("v_cndmask_b32 v11, v11, v12, s[26:27]")
    a(f"v_add_u32 v11, {FL_QKV}, v11")
    lds_wait(a, SY_CQ, 4, sleep=(32 if XP == "3" else 2))
    flag_wait_multi(a, [11], 12, sleep=1)
    lds_add(a, SY_GO)
    a("s_branch A_GO")
    a.label("A_WAITGO")
    lds_wait(a, SY_GO, 1, sleep=(32 if XP == "3" else 1))
    a.label("A_GO")
    stamp(a, 5)
    a(f"buffer_load_dwordx4 {vr(QA,4)}, v7, s[16:19], s24 offen {SC}")
    a(f"buffer_load_dword v{QAX}, v8, s[16:19], s24 offen {SC}")
    a(f"buffer_load_dwordx4 {vr(QB,4)}, v7, s[16:19], s25 offen {SC}")
    a(f"buffer_load_dword v{QBX}, v8, s[16:19], s25 offen {SC}")
    a.label("A_RESTART")
    a("s_mov_b32 s20, s14")
    for b in range(3):
        for ln in kv_loads(b): a(ln)
    for r in range(16):
        a(f"v_mov_b32 v{OA+r}, 0")
        a(f"v_mov_b32 v{OB+r}, 0")
    for r in range(8):
        a(f"v_mov_b32 v{SB+8+r}, 0")
    a("v_cmp_eq_u32 vcc, 0, v5")
    a("s_mov_b32 s21, 8")
    a("s_setprio 2")
    a("s_waitcnt vmcnt(8)")
    a(f"v_cndmask_b32 v{QAX}, 0, v{QAX}, vcc")
    a(f"v_cndmask_b32 v{QBX}, 0, v{QBX}, vcc")
    a("s_nop 1")
    a(f"v_mfma_f32_32x32x8_bf16 {vr(SA,16)}, {vr(kx(0),2)}, {vr(QAX,2)}, 0")
    a(f"v_mfma_f32_32x32x16_bf16 {vr(SA,16)}, {vr(kb(0),4)}, {vr(QA,4)}, {vr(SA,16)}")
    a("s_nop 15")
    def ex(S, r): a(f"v_exp_f32 v{S+r}, v{S+r}")
    n1,n2,n3,n4 = 2,3,4,3
    def phase(X, Y, OX, OY, vY_hi, vX_lo, kbuf, QY, QYX, pre=(), post=()):
        r = 0
        for _ in range(n1): ex(X,r); r += 1
        a(f"v_smfmac_f32_32x32x32_bf16 {vr(OY,16)}, {vr(vY_hi,4)}, {vr(Y+8,8)}, v6")
        for ln in pre: a(ln)
        for _ in range(n2): ex(X,r); r += 1
        a(f"v_mfma_f32_32x32x8_bf16 {vr(Y,16)}, {vr(kx(kbuf),2)}, {vr(QYX,2)}, 0")
        for _ in range(n3): ex(X,r); r += 1
        a(f"v_mfma_f32_32x32x16_bf16 {vr(Y,16)}, {vr(kb(kbuf),4)}, {vr(QY,4)}, {vr(Y,16)}")
        for ln in post: a(ln)
        for _ in range(n4): ex(X,r); r += 1
        a(f"v_smfmac_f32_32x32x32_bf16 {vr(OX,16)}, {vr(vX_lo,4)}, {vr(X,8)}, v6")
        while r < 16: ex(X,r); r += 1
    a(".p2align 3")
    a.label("A_LOOP")
    for (cnt, pr) in ((5,1),(2,0)):
        lab = a.newlabel("A_PR")
        a(f"s_cmp_lg_u32 s21, {cnt}")
        a(f"s_cbranch_scc1 {lab}")
        a(f"s_setprio {pr}")
        a.label(lab)
    for u in range(4):
        pb = (u+3) % 4
        phase(SA, SB, OA, OB, v1r(pb), v0r(u), u, QB, QBX, post=kv_loads(pb))
        post = ["s_nop 3"]
        if u == 3: post = ["s_sub_u32 s21, s21, 1", "s_nop 1", "s_cmp_lg_u32 s21, 0"]
        phase(SB, SA, OB, OA, v1r(u), v0r(u), (u+1) % 4, QA, QAX, pre=["s_waitcnt vmcnt(8)"], post=post)
    a("s_cbranch_scc1 A_LOOP")
    a("s_nop 1")
    a(f"v_smfmac_f32_32x32x32_bf16 {vr(OB,16)}, {vr(v1r(3),4)}, {vr(SB+8,8)}, v6")
    stamp(a, 6)
    a("s_mul_i32 s24, s3, 2816")
    a(f"s_add_u32 s24, s24, {L_XCH}")
    a("v_lshl_add_u32 v10, v0, 4, s24")
    a("s_xor_b32 s25, s3, 4")
    a("s_mul_i32 s25, s25, 2816")
    a(f"s_add_u32 s25, s25, {L_XCH}")
    a("v_lshl_add_u32 v11, v0, 4, s25")
    a("v_lshl_add_u32 v12, v0, 2, s24")
    a("v_lshl_add_u32 v13, v0, 2, s25")
    emit_tau(a, 14, 4, 15)
    get_nonce(a)
    a("s_barrier")
    a(f"ds_write_b128 v10, {vr(OB,4)}")
    a(f"ds_write_b128 v10, {vr(OB+4,4)} offset:1024")
    a(f"ds_write_b32 v12, v{OB+8} offset:2048")
    a(f"ds_write_b32 v12, v{OB+9} offset:2304")
    a(f"ds_write_b32 v12, v{OB+10} offset:2560")
    a("s_waitcnt vmcnt(0) lgkmcnt(0)")
    a("s_barrier")
    a(f"ds_read_b128 {vr(SA,4)}, v11")
    a(f"ds_read_b128 {vr(SA+4,4)}, v11 offset:1024")
    a(f"ds_read_b32 v{SA+8}, v13 offset:2048")
    a(f"ds_read_b32 v{SA+9}, v13 offset:2304")
    a(f"ds_read_b32 v{SA+10}, v13 offset:2560")
    a("s_mul_i32 s26, s30, 36")
    a("s_add_u32 s27, s26, s4")
    a("s_lshl_b32 s27, s27, 10")
    a(f"s_add_u32 s27, s27, {OF_OFF}")
    a("s_lshl_b32 s28, s30, 5")
    a("s_add_u32 s28, s28, s4")
    a("s_lshl_b32 s28, s28, 7")
    a(f"s_add_u32 s28, s28, {OX_OFF}")
    a("v_lshl_add_u32 v15, v5, 5, v14")
    a("v_lshlrev_b32 v15, 4, v15")
    a("v_lshlrev_b32 v14, 2, v14")
    a("s_waitcnt lgkmcnt(0)")
    for r in range(11):
        a(f"v_add_f32 v{SA+r}, v{SA+r}, v{OA+r}")
    a(f"v_rcp_f32 v{SA+11}, v{SA+10}")
    a(f"v_mov_b32 v{SA+12}, v{SA+10}")
    for r in range(10):
        a(f"v_mul_f32 v{OA+r}, v{SA+r}, v{SA+11}")
    for r in range(5):
        a(f"v_cvt_pk_bf16_f32 v{SB+r}, v{OA+2*r}, v{OA+2*r+1}")
    a(f"buffer_store_dwordx4 {vr(SB,4)}, v15, s[16:19], s27 offen sc1")
    a("s_mov_b32 exec_hi, 0")
    a(f"buffer_store_dword v{SB+4}, v14, s[16:19], s28 offen sc1")
    a("s_mov_b64 exec, -1")
    for r in range(10):
        a(f"v_fma_f32 v{SA+12}, v{SA+r}, 0, v{SA+12}")
    a(f"s_mov_b32 s28, {fhex(2.0**-60)}")
    a(f"s_mov_b32 s29, {fhex(2.0**60)}")
    a(f"v_cmp_le_f32 vcc, s28, v{SA+12}")
    a(f"v_cmp_ge_f32 s[24:25], s29, v{SA+12}")
    a("s_and_b64 vcc, vcc, s[24:25]")
    a("s_cmp_eq_u64 vcc, -1")
    a("s_cselect_b32 s24, 0, 1")
    a("s_lshl_b32 s25, s3, 2")
    a(f"s_add_u32 s25, s25, {L_XCH+8*2816}")
    a("v_mov_b32 v10, s25")
    a("v_mov_b32 v11, s24")
    a("ds_write_b32 v10, v11")
    a("v_and_b32 v10, 7, v0")
    a("v_lshlrev_b32 v10, 2, v10")
    a(f"v_add_u32 v10, {L_XCH+8*2816}, v10")
    a("s_waitcnt lgkmcnt(0)")
    a("s_barrier")
    a("ds_read_b32 v11, v10")
    a("s_lshl_b32 s24, s5, 2")
    a("s_add_u32 s24, s24, s4")
    a("s_lshl_b32 s24, s24, 7")
    a(f"s_add_u32 s24, s24, {FL_O}")
    a("s_waitcnt lgkmcnt(0)")
    a("v_cmp_ne_u32 vcc, 0, v11")
    a("s_cmp_eq_u64 vcc, 0")
    a("s_cbranch_scc1 A_DONE")
    a("s_cmp_lg_u32 s15, 0")
    a("s_cbranch_scc1 A_DONE")
    a("s_mov_b32 s15, 1")
    a("s_mov_b32 s20, s13")
    a("s_mov_b32 s21, 64")
    a("v_mov_b32 v10, 0xff800000")
    a("v_mov_b32 v11, 0xff800000")
    a.label("A_MAXLOOP")
    a(f"buffer_load_dwordx4 {vr(kb(0),4)}, v7, s[8:11], s20 offen {SCKV}")
    a(f"buffer_load_dword v{kx(0)}, v8, s[8:11], s20 offen {SCKV}")
    a(f"s_add_u32 s20, s20, {KVT_BYTES}")
    a("s_waitcnt vmcnt(0)")
    a(f"v_mfma_f32_32x32x8_bf16 {vr(SA,16)}, {vr(kx(0),2)}, {vr(QAX,2)}, 0")
    a(f"v_mfma_f32_32x32x16_bf16 {vr(SA,16)}, {vr(kb(0),4)}, {vr(QA,4)}, {vr(SA,16)}")
    a(f"v_mfma_f32_32x32x8_bf16 {vr(SB,16)}, {vr(kx(0),2)}, {vr(QBX,2)}, 0")
    a(f"v_mfma_f32_32x32x16_bf16 {vr(SB,16)}, {vr(kb(0),4)}, {vr(QB,4)}, {vr(SB,16)}")
    a("s_nop 15")
    for r in range(8):
        a(f"v_max3_f32 v10, v10, v{SA+2*r}, v{SA+2*r+1}")
        a(f"v_max3_f32 v11, v11, v{SB+2*r}, v{SB+2*r+1}")
    a("s_sub_u32 s21, s21, 1")
    a("s_cmp_lg_u32 s21, 0")
    a("s_cbranch_scc1 A_MAXLOOP")
    a("s_mov_b32 s24, 0xffff0000")
    a("v_cmp_eq_u32 vcc, 0, v5")
    for (m, qx) in ((10, QAX), (11, QBX)):
        a(f"v_mov_b32 v12, v{m}")
        a("s_nop 1")
        a(f"v_permlane32_swap_b32 v12, v{m}")
        a("s_nop 1")
        a(f"v_max_f32 v{m}, v{m}, v12")
        a(f"v_sub_f32 v{m}, 0, v{m}")
        a(f"v_cvt_pk_bf16_f32 v12, v{m}, v{m}")
        a("v_and_b32 v12, s24, v12")
        a(f"v_sub_f32 v13, v{m}, v12")
        a("v_cvt_pk_bf16_f32 v12, v12, v13")
        a(f"v_cndmask_b32 v{qx+1}, 0, v12, vcc")
    a("s_branch A_RESTART")
    a.label("A_DONE")
    a("s_waitcnt vmcnt(0)")
    publish(a, SY_CO, 8, "s24", 10)

def gen_p3(a):
    a("s_cmp_ge_u32 s2, 192")
    a("s_cbranch_scc1 F_FIN")
    if PROFB: stamp(a, 1)
    a("s_and_b32 s4, s2, 7")
    a("s_lshl_b32 s4, s4, 2")
    a("s_bfe_u32 s5, s2, 0x20003")
    a("s_add_u32 s4, s4, s5")
    a("s_lshr_b32 s5, s2, 5")
    a("s_and_b32 s6, s3, 1")
    a("s_lshr_b32 s7, s3, 1")
    a("s_lshl_b32 s8, s4, 1")
    a("s_add_u32 s8, s8, s6")
    a("v_lshlrev_b32 v6, 4, v0")
    a("s_cmp_eq_u32 s7, 3")
    a("s_cselect_b32 s9, 0, s7")
    a("s_add_u32 s10, s9, 1")
    a("s_cmp_eq_u32 s10, 3")
    a("s_cselect_b32 s10, 0, s10")
    a("s_add_u32 s11, s10, 1")
    a("s_cmp_eq_u32 s11, 3")
    a("s_cselect_b32 s11, 0, s11")
    a("s_lshl_b32 s12, s7, 13")
    a("s_mul_i32 s26, s7, 7168")
    a("s_sub_u32 s26, 32768, s26")
    for j in range(3):
        a(f"s_mul_i32 s13, s{9+j}, 36864")
        a("s_add_u32 s13, s13, s12")
        a(f"v_add_u32 v{8+j}, s13, v6")
    DA = 16; OFr = 64; WF = 100
    def wreads(i):
        for j in range(3):
            if i == 8: a(f"v_add_u32 v{8+j}, s26, v{8+j}")
            a(f"ds_read_b128 {vr(WF+12*(i%5)+4*j,4)}, v{8+j} offset:{1024*(i%8)}")
    for i in range(5): wreads(i)
    a("s_cmp_lg_u32 s3, 7")
    a("s_cbranch_scc1 P_WAIT")
    a("s_lshl_b32 s13, s5, 12")
    a(f"s_add_u32 s13, s13, {FL_A}")
    a("v_lshl_add_u32 v12, v4, 7, s13")
    a("s_lshr_b32 s13, s4, 2")
    a("s_lshl_b32 s13, s13, 12")
    a(f"s_add_u32 s13, s13, {FL_O}")
    a("v_lshl_add_u32 v13, v4, 7, s13")
    a("v_cmp_eq_u32 vcc, 0, v5")
    a("s_lshl_b32 s13, s4, 10")
    a(f"s_add_u32 s13, s13, {FL_G}")
    a("v_cndmask_b32 v12, v13, v12, vcc")
    a("v_and_b32 v13, 7, v0")
    a("v_lshl_add_u32 v13, v13, 7, s13")
    flag_wait_multi(a, [12, 13], 14, sleep=1)
    lds_add(a, SY_GO3)
    a("s_branch P_GO")
    a.label("P_WAIT")
    lds_wait(a, SY_GO3, 1)
    a.label("P_GO")
    if PROFB: stamp(a, 2)
    a("s_mul_i32 s13, s8, 36864")
    a("s_add_u32 s14, s13, s12")
    a(f"s_add_u32 s14, s14, {OF_OFF}")
    for i in range(8):
        a(f"buffer_load_dwordx4 {vr(OFr+4*i,4)}, v6, s[16:19], s14 offen offset:{(i%4)*1024} {SC}")
        if i % 4 == 3: a("s_add_u32 s14, s14, 4096")
    a("s_lshl_b32 s14, s8, 2")
    a("s_add_u32 s14, s14, s7")
    a("s_lshl_b32 s14, s14, 10")
    a(f"s_add_u32 s14, s14, {OX_OFF}")
    a("v_lshlrev_b32 v7, 9, v5")
    a("v_lshl_add_u32 v7, v4, 2, v7")
    for k in range(4):
        a(f"buffer_load_dword v{OFr+32+k}, v7, s[16:19], s14 offen offset:{128*k} {SC}")
    a("s_mul_i32 s15, s5, 3")
    a("s_add_u32 s15, s15, s9")
    a("s_lshl_b32 s14, s15, 11")
    a("s_add_u32 s14, s14, s13")
    a(f"s_add_u32 s14, s14, {AF_OFF}")
    a("v_lshlrev_b32 v7, 6, v4")
    a("v_lshl_add_u32 v7, v5, 4, v7")
    a(f"buffer_load_dwordx4 v[160:163], v7, s[16:19], s14 offen {SC}")
    a(f"buffer_load_dwordx4 v[164:167], v7, s[16:19], s14 offen offset:32 {SC}")
    a("s_lshl_b32 s14, s8, 8")
    a(f"s_add_u32 s14, s14, {G_OFF}")
    a("v_lshlrev_b32 v7, 3, v4")
    a(f"buffer_load_dwordx2 v[12:13], v7, s[16:19], s14 offen {SC}")
    for i in range(9):
        nl = 3*min(4, 8-i)
        a(f"s_waitcnt vmcnt({(7-i+4+3) if i < 8 else 3}) lgkmcnt({min(nl,15)})")
        for j in range(3):
            cin = "0" if i == 0 else vr(DA+16*j,16)
            a(f"v_mfma_f32_32x32x16_bf16 {vr(DA+16*j,16)}, {vr(WF+12*(i%5)+4*j,4)}, {vr(OFr+4*i,4)}, {cin}")
        if i + 5 < 9: wreads(i+5)
    if PROFB: stamp(a, 3)
    I0 = OFr; I1 = OFr+4; DY = OFr+16
    ident_nat(a, I0, I1, OFr+8)
    a("s_mul_i32 s20, s6, 36864")
    for j in range(3):
        a(f"s_sub_u32 s21, s7, s{9+j}")
        a("s_sub_u32 s21, s21, 1")
        a("s_and_b32 s21, s21, 3")
        a("s_lshl_b32 s21, s21, 12")
        a(f"s_mul_i32 s22, s{9+j}, 12288")
        a("s_add_u32 s21, s21, s22")
        a("s_add_u32 s21, s21, s20")
        a(f"v_add_u32 v{8+j}, s21, v6")
    a("s_barrier")
    for j in (1, 2):
        for q in range(4):
            a(f"ds_write_b128 v{8+j}, {vr(DA+16*j+4*q,4)} offset:{1024*q}")
    a("s_cmp_lg_u32 s7, 3")
    a("s_cbranch_scc1 P_OWN")
    for q in range(4):
        a(f"ds_write_b128 v8, {vr(DA+4*q,4)} offset:{1024*q}")
    a("s_waitcnt lgkmcnt(0)")
    a("s_barrier")
    a("s_branch F_FIN")
    a.label("P_OWN")
    a("s_waitcnt vmcnt(0)")
    a(f"v_mfma_f32_32x32x16_bf16 {vr(DY,16)}, v[160:163], {vr(I0,4)}, 0")
    a(f"v_mfma_f32_32x32x16_bf16 {vr(DY,16)}, v[164:167], {vr(I1,4)}, {vr(DY,16)}")
    a("s_mul_i32 s21, s9, 12288")
    a("s_add_u32 s21, s21, s20")
    a("v_add_u32 v8, s21, v6")
    srd(a, 20, S_OUT, X_BYTES)
    a("s_lshl_b32 s26, s8, 5")
    a("v_add_u32 v7, s26, v4")
    a("v_mul_u32_u24 v7, 1152, v7")
    a("v_lshl_add_u32 v7, v5, 4, v7")
    a("s_lshl_b32 s26, s15, 6")
    a("s_mov_b32 s27, 0xffff0000")
    a("s_waitcnt lgkmcnt(0)")
    a("s_barrier")
    if PROFB: stamp(a, 4)
    PB = WF
    for q in range(12):
        a(f"ds_read_b128 {vr(PB+4*q,4)}, v8 offset:{1024*q}")
    g = 12; og = 13; R = 32
    for k in range(8):
        y = DY+2*k
        a(f"v_mul_f32 v{y}, v{y}, v{g}")
        a(f"v_mul_f32 v{y+1}, v{y+1}, v{g}")
    for k in range(8):
        y = DY+2*k
        a(f"v_cvt_pk_bf16_f32 v{y}, v{y}, v{y+1}")
    for k in range(8):
        y = DY+2*k
        a(f"v_and_b32 v{y+1}, s27, v{y}")
        a(f"v_lshlrev_b32 v{y}, 16, v{y}")
    for sl in range(3):
        a(f"s_waitcnt lgkmcnt({8-4*sl})")
        for r in range(16):
            a(f"v_add_f32 v{DA+r}, v{DA+r}, v{PB+16*sl+r}")
    for k in range(8):
        b = DA+2*k
        a(f"v_cvt_pk_bf16_f32 v{b}, v{b}, v{b+1}")
    for k in range(8):
        b = DA+2*k
        a(f"v_and_b32 v{b+1}, s27, v{b}")
        a(f"v_lshlrev_b32 v{b}, 16, v{b}")
    for r in range(16):
        a(f"v_mul_f32 v{DA+r}, v{DA+r}, v{og}")
    for k in range(8):
        b = DA+2*k
        a(f"v_cvt_pk_bf16_f32 v{b}, v{b}, v{b+1}")
    for k in range(8):
        b = DA+2*k
        a(f"v_and_b32 v{b+1}, s27, v{b}")
        a(f"v_lshlrev_b32 v{b}, 16, v{b}")
    for r in range(16):
        a(f"v_add_f32 v{DA+r}, v{DA+r}, v{DY+r}")
    for k in range(8):
        a(f"v_cvt_pk_bf16_f32 v{R+k}, v{DA+2*k}, v{DA+2*k+1}")
    a("s_nop 1")
    for k in (0, 4):
        a(f"v_permlane32_swap_b32 v{R+k}, v{R+k+2}")
        a(f"v_permlane32_swap_b32 v{R+k+1}, v{R+k+3}")
    a(f"buffer_store_dwordx4 {vr(R,4)}, v7, s[20:23], s26 offen")
    a(f"buffer_store_dwordx4 {vr(R+4,4)}, v7, s[20:23], s26 offen offset:32")
    if PROF: a("s_waitcnt vmcnt(0)")
    finish(a)

def cmuls(a, lst):
    for (d, x, w) in lst:
        a(f"v_pk_mul_f32 {vr(d,2)}, {vr(x,2)}, {vr(w,2)} op_sel:[0,0] op_sel_hi:[0,1]")
    for (d, x, w) in lst:
        a(f"v_pk_fma_f32 {vr(d,2)}, {vr(x,2)}, {vr(w,2)}, {vr(d,2)} op_sel:[1,1,0] op_sel_hi:[1,0,1] neg_lo:[0,1,0]")

def aux_pre(a):
    a("s_sub_u32 s8, s3, 8")
    a("s_mul_i32 s14, s2, 3")
    a("s_add_u32 s14, s14, s8")
    a("s_min_u32 s14, s14, 575")
    a("s_lshl_b32 s15, s14, 8")
    a("v_lshl_add_u32 v6, v0, 2, s15")
    a("s_lshl_b32 s15, s14, 1")
    a("v_mov_b32 v7, s15")
    a(f"global_load_ushort v8, v7, s[{S_LOGDT}:{S_LOGDT+1}]")
    a(f"global_load_dword v9, v6, s[{S_LOGA}:{S_LOGA+1}]")
    a(f"global_load_dword v10, v6, s[{S_AIM}:{S_AIM+1}]")
    a(f"global_load_dword v11, v6, s[{S_CR}:{S_CR+1}]")
    a(f"global_load_dword v12, v6, s[{S_CI}:{S_CI+1}]")
    a(f"global_load_ushort v167, v7, s[{S_DSKIP}:{S_DSKIP+1}]")
    a("s_cmp_lg_u32 s14, 3")
    a("s_cbranch_scc1 X_NN")
    a("s_cmp_lg_u32 s2, 0")
    a("s_cbranch_scc1 X_NN")
    a("s_memrealtime s[60:61]")
    a("s_waitcnt lgkmcnt(0)")
    a("s_or_b32 s60, s60, 1")
    a("v_mov_b32 v14, s60")
    a("v_lshlrev_b32 v13, 6, v0")
    a("s_mov_b64 exec, 15")
    a(f"global_store_dword v13, v14, s[{S_DBG}:{S_DBG+1}] sc1")
    a("s_mov_b64 exec, -1")
    a.label("X_NN")

def gen_kgen(a):
    a("s_mov_b32 s4, s14")
    hi = struct.unpack("<f", struct.pack("<f", LOG2E))[0]
    a(f"s_mov_b32 s70, {fhex(hi)}")
    a(f"s_mov_b32 s71, {fhex(LOG2E-hi)}")
    a(f"s_mov_b32 s72, {fhex(math.log(2.0))}")
    a("s_mov_b32 s73, 0xffff0000")
    a(f"s_mul_i32 s5, s8, {2*KC_STRIDE}")
    a(f"s_add_u32 s5, s5, {L_KC}")
    a("v_lshl_add_u32 v16, v0, 2, s5")
    a("v_and_b32 v18, 15, v0")
    a("v_lshrrev_b32 v19, 4, v0")
    a("v_mul_u32_u24 v17, 272, v18")
    a("v_lshl_add_u32 v17, v19, 4, v17")
    a("v_add_u32 v17, s5, v17")
    a("s_waitcnt vmcnt(5)")
    a("v_lshlrev_b32 v8, 16, v8")
    exp_precise(a, 8, 8, 20, 21)
    a("v_cvt_pk_bf16_f32 v8, v8, v8")
    a("v_and_b32 v8, s73, v8")
    a("s_waitcnt vmcnt(1)")
    stamp(a, 1)
    Y = 24; G = 40; Z = 58; T = 74; W1 = 90; W8 = 92
    YF = 96; XFr = 112; AC = 128; CT = 140
    def puts(lst):
        for k, (row, src) in enumerate(lst):
            a(f"v_cvt_pk_bf16_f32 v{CT+k}, v{src}, v{src+1}")
        for k, (row, src) in enumerate(lst):
            a(f"ds_write_b32 v16, v{CT+k} offset:{row*272}")
    def reads(dst):
        for ks in range(4):
            a(f"ds_read_b128 {vr(dst+4*ks,4)}, v17 offset:{ks*64}")
    def mm(acc, first):
        a("s_waitcnt lgkmcnt(0)")
        for ks in range(4):
            cin = "0" if (first and ks == 0) else vr(acc,4)
            a(f"v_mfma_f32_16x16x32_bf16 {vr(acc,4)}, {vr(XFr+4*ks,4)}, {vr(YF+4*ks,4)}, {cin}")
    for ps in range(2):
        def ext(dst, src):
            if ps == 0: a(f"v_lshlrev_b32 v{dst}, 16, v{src}")
            else: a(f"v_and_b32 v{dst}, s73, v{src}")
        ext(20, 9); ext(23, 10); ext(Z, 11); ext(Z+1, 12)
        exp_precise(a, 20, 20, 21, 22)
        a("v_mul_f32 v21, v23, v8")
        a(f"v_mul_f32 v{Z}, v{Z}, v8")
        a("v_cvt_pk_bf16_f32 v20, v20, v20")
        a(f"v_mul_f32 v{Z+1}, v{Z+1}, v8")
        a("v_mul_f32 v21, 0.15915494, v21")
        a("v_and_b32 v20, s73, v20")
        a(f"v_add_f32 v{Z}, v{Z}, v{Z}")
        a("v_mul_f32 v20, v20, v8")
        a(f"v_add_f32 v{Z+1}, v{Z+1}, v{Z+1}")
        a("v_mul_f32 v20, s70, v20")
        anc = ((W1, 1, False), (Y+2, 8, True), (G, 128, False))
        for k, (dst, p, conj) in enumerate(anc):
            a(f"v_mul_f32 v{T+4*k+1}, {fhex(float(-p if conj else p))}, v21")
        for k, (dst, p, conj) in enumerate(anc):
            a(f"v_mul_f32 v{T+4*k}, {fhex(-float(p))}, v20")
        for k in range(3):
            a(f"v_fract_f32 v{T+4*k+1}, v{T+4*k+1}")
        for k in range(3):
            a(f"v_exp_f32 v{T+4*k}, v{T+4*k}")
        for k in range(3):
            a(f"v_cos_f32 v{T+4*k+2}, v{T+4*k+1}")
            a(f"v_sin_f32 v{T+4*k+3}, v{T+4*k+1}")
        a(f"v_mov_b32 v{Y}, 1.0")
        a(f"v_mov_b32 v{Y+1}, 0")
        for k, (dst, p, conj) in enumerate(anc):
            a(f"v_mul_f32 v{dst}, v{T+4*k}, v{T+4*k+2}")
            a(f"v_mul_f32 v{dst+1}, v{T+4*k}, v{T+4*k+3}")
        cmuls(a, [(W8, W1, W1), (Y+4, Y+2, Y+2), (G+2, G, G), (Z+2, Z, W1)])
        cmuls(a, [(Y+8, Y+4, Y+4), (Y+6, Y+4, Y+2), (W1, W8, W8), (G+4, G+2, G), (G+6, G+2, G+2), (Z+4, Z, W8), (Z+6, Z+2, W8)])
        cmuls(a, [(W8, Y+8, Y+8)] + [(Y+8+2*j, Y+8, Y+2*j) for j in (1,2,3)] + [(Z+8+2*j, Z+2*j, W1) for j in range(4)])
        puts([(j, Y+2*j) for j in range(8)] + [(8, W8)])
        cmuls(a, [(T+2*j, W8, Y+2*j) for j in range(1,8)])
        puts([(8+j, T+2*j) for j in range(1,8)])
        reads(YF)
        puts([(j, Z+2*j) for j in range(8)])
        cmuls(a, [(T+2*j, Z+2*j, G) for j in range(8)] + [(G+6+2*j, G+6, G+2*(j-1)) for j in (1,2,3,4)])
        puts([(8+j, T+2*j) for j in range(8)])
        reads(XFr)
        cmuls(a, [(T+2*(4*i+ii), Z+4*ii, G+2*(1+i)) for i in range(2) for ii in range(4)] + [(W8, Z, G+14)])
        mm(AC, ps == 0)
        puts([(j, T+2*j) for j in range(8)])
        cmuls(a, [(T+2*(2*i+ii), Z+8*ii, G+2*(3+i)) for i in range(4) for ii in range(2)])
        puts([(8+j, T+2*j) for j in range(8)])
        reads(XFr)
        cmuls(a, [(T+2*(i-1), W8, G+2*(i-1)) for i in range(1,9)])
        mm(AC+4, ps == 0)
        puts([(0, W8)] + [(i, T+2*(i-1)) for i in range(1,9)])
        reads(XFr)
        mm(AC+8, ps == 0)
    stamp(a, 2)
    a("v_lshrrev_b32 v20, 1, v19")
    a("v_lshlrev_b32 v20, 8, v20")
    a("v_and_b32 v21, 1, v19")
    a("v_lshl_add_u32 v20, v21, 3, v20")
    a("v_lshl_add_u32 v20, v18, 4, v20")
    a("v_add_u32 v20, s5, v20")
    a("v_cmp_gt_u32 vcc, 2, v19")
    a("v_lshlrev_b32 v21, 2, v18")
    a("v_lshlrev_b32 v22, 3, v18")
    a("v_cndmask_b32 v21, v21, v22, vcc")
    a("v_lshl_add_u32 v21, v19, 7, v21")
    a("v_add_u32 v21, s5, v21")
    a("v_mov_b32 v22, 64")
    a("v_mov_b32 v23, 4")
    a("v_cndmask_b32 v22, v22, v23, vcc")
    a("v_add_u32 v22, v22, v21")
    a("v_lshlrev_b32 v23, 7, v19")
    a("v_lshl_add_u32 v23, v18, 1, v23")
    a("v_add_u32 v23, s5, v23")
    for i in range(6):
        a(f"v_cvt_pk_bf16_f32 v{24+i}, v{AC+2*i}, v{AC+2*i+1}")
    a("ds_write_b64 v20, v[24:25]")
    a("ds_write_b32 v21, v26 offset:512")
    a("ds_write_b32 v22, v27 offset:512")
    a("ds_write_b16 v23, v28 offset:1024")
    a("ds_write_b16_d16_hi v23, v28 offset:1056")
    a("ds_write_b16 v23, v29 offset:1088")
    a("ds_write_b16_d16_hi v23, v29 offset:1120")
    a("v_lshl_add_u32 v20, v0, 1, s5")
    a("ds_read_u16 v30, v20 offset:1024")
    a("ds_read_u16 v31, v20 offset:1152")
    a("ds_read_u16 v34, v20 offset:1026")
    a("ds_read_u16 v35, v20 offset:1154")
    a("v_lshl_add_u32 v20, v0, 2, s5")
    a("ds_read2_b32 v[32:33], v20 offset0:192 offset1:193")
    a("v_lshlrev_b32 v20, 4, v4")
    a("v_lshlrev_b32 v21, 3, v4")
    a("v_add_u32 v21, 508, v21")
    a("v_cmp_eq_u32 vcc, 1, v5")
    a("s_mov_b32 s60, 0x01000100")
    a("s_mov_b32 s61, 0x03020302")
    a("v_cndmask_b32 v20, v20, v21, vcc")
    a("v_add_u32 v20, s5, v20")
    a("ds_read2_b32 v[36:37], v20 offset0:0 offset1:1")
    a("ds_read2_b32 v[38:39], v20 offset0:2 offset1:3")
    a("s_mov_b32 s62, 0x01000302")
    def sel(dst, f, t):
        a(f"v_mov_b32 v{dst}, {f}")
        a(f"v_mov_b32 v{dst+8}, {t}")
        a(f"v_cndmask_b32 v{dst}, v{dst}, v{dst+8}, vcc")
    sel(40, "0x05040706", "0x03020504")
    sel(41, "0x01000302", "0x01000100")
    sel(42, "0x01000302", "0x03020504")
    sel(43, "0x01000302", "0x05040504")
    a("v_and_b32 v20, 1, v0")
    a("v_cmp_eq_u32 vcc, 1, v20")
    a("v_lshlrev_b32 v22, 4, v0")
    a("v_sub_u32 v21, 1008, v22")
    sel(44, "0x01000302", "0x03020302")
    a("v_add_u32 v21, s5, v21")
    a("v_add_u32 v22, s5, v22")
    a("v_mov_b32 v23, 0")
    a("s_waitcnt lgkmcnt(0)")
    a("v_lshl_or_b32 v30, v34, 16, v30")
    a("v_lshl_or_b32 v31, v35, 16, v31")
    for (src, dst) in ((30, 56), (31, 60)):
        a(f"v_perm_b32 v{dst}, v{src}, v{src}, s61")
        a(f"v_perm_b32 v{dst+1}, v{src}, v{src}, v44")
        a(f"v_perm_b32 v{dst+2}, v{src}, v{src}, s60")
        a(f"v_perm_b32 v{dst+3}, v{src}, v{src}, s60")
    a("v_perm_b32 v64, v33, v33, s60")
    a("v_perm_b32 v65, v32, v32, s61")
    a("v_perm_b32 v66, v32, v32, s62")
    a("v_perm_b32 v67, v32, v32, s60")
    a("v_perm_b32 v68, v39, v38, v40")
    a("v_perm_b32 v69, v38, v38, v41")
    a("v_perm_b32 v70, v38, v37, v42")
    a("v_perm_b32 v71, v37, v36, v43")
    a("ds_write_b128 v21, v[56:59] offset:1024")
    a("ds_write_b128 v21, v[60:63]")
    a("ds_write_b128 v21, v[64:67] offset:2048")
    a("ds_write_b128 v21, v[68:71] offset:3072")
    a("s_mov_b64 exec, 0xffff")
    a("ds_write_b32 v16, v23 offset:4096")
    a(f"ds_write_b32 v16, v23 offset:{KC_STRIDE+4096}")
    a("s_mov_b64 exec, -1")
    for i in range(4):
        a(f"ds_read_b128 {vr(72+8*i,4)}, v22 offset:{1024*i}")
        a(f"ds_read_b32 v{76+8*i}, v22 offset:{1024*i+16}")
    for i in range(4):
        a(f"s_waitcnt lgkmcnt({6-2*i+i})")
        for k in range(4):
            a(f"v_alignbit_b32 v{72+8*i+k}, v{73+8*i+k}, v{72+8*i+k}, 16")
        a(f"ds_write_b128 v22, {vr(72+8*i,4)} offset:{KC_STRIDE+1024*i}")
    stamp(a, 3)
    if os.environ.get("KFIRST","0") == "1": lds_add(a, 30)

def gen_conv(a):
    a("s_waitcnt vmcnt(0)")
    a("v_readfirstlane_b32 s9, v167")
    a("v_sub_u32 v6, 15, v18")
    a("v_lshl_add_u32 v6, v19, 3, v6")
    a("v_and_b32 v7, 1, v6")
    a(f"v_mul_u32_u24 v7, {KC_STRIDE-2}, v7")
    a("v_lshl_add_u32 v6, v6, 1, v7")
    a("v_add_u32 v6, s5, v6")
    a("v_add_u32 v7, 1024, v6")
    a("v_add_u32 v8, 2048, v6")
    a("v_add_u32 v9, 3072, v6")
    a("v_lshl_add_u32 v4, v18, 1, v19")
    a("v_add_u32 v4, 2, v4")
    a("v_lshlrev_b32 v5, 5, v18")
    a("v_lshl_add_u32 v5, v19, 3, v5")
    a("v_add_u32 v5, s5, v5")
    a("s_lshl_b32 s9, s9, 16")
    AC = 12; B0 = 44
    def F(b, mu): return (44 if b == 0 else 104) + 4*mu
    def X(b, tau):
        if tau == 7: return 164
        return (76 if b == 0 else 136) + 4*tau
    def xaddr():
        a("v_bfe_u32 v10, v4, 2, 2")
        a("v_xor_b32 v10, s8, v10")
        a("v_lshlrev_b32 v10, 4, v10")
        a("v_lshl_add_u32 v10, v4, 6, v10")
        a(f"v_add_u32 v10, {L_U}, v10")
        a("v_add_u32 v4, 4, v4")
    def loads(b, rp):
        for k in range(8):
            mp = 7-k
            base = 6 + (mp >> 1); o = (mp & 1)*128 + 16*rp
            a(f"ds_read2_b32 {vr(F(b,k),2)}, v{base} offset0:{o} offset1:{o+1}")
            a(f"ds_read2_b32 {vr(F(b,k)+2,2)}, v{base} offset0:{o+2} offset1:{o+3}")
            if k < 7: a(f"ds_read_b128 {vr(X(b,k),4)}, v10 offset:{2048*k}")
    def load_x7():
        a(f"ds_read_b128 {vr(164,4)}, v10 offset:{2048*7}")
    def mms(b):
        a(f"v_mfma_f32_16x16x32_bf16 {vr(AC+28,4)}, {vr(F(b,0),4)}, {vr(164,4)}, {vr(AC+28,4)}")
        yield
        for mu in range(8):
            for t in range(mu, 8):
                if mu == 0 and t == 7: continue
                a(f"v_mfma_f32_16x16x32_bf16 {vr(AC+4*t,4)}, {vr(F(b,mu),4)}, {vr(X(b,t-mu),4)}, {vr(AC+4*t,4)}")
        yield
    for r in range(32): a(f"v_mov_b32 v{AC+r}, 0")
    xaddr()
    get_nonce(a)
    lds_wait(a, SY_UREADY, 1, sleep=1)
    a("s_setprio 3")
    stamp(a, 4)
    loads(0, 0); load_x7()
    a("s_mov_b32 s10, 4")
    a.label("C_LOOP")
    for b in range(2):
        xaddr()
        a("s_waitcnt lgkmcnt(0)")
        g = mms(b); next(g)
        if b == 1:
            for k in range(4): a(f"v_add_u32 v{6+k}, 128, v{6+k}")
        loads(1-b, 1-b); load_x7()
        next(g)
    a("s_sub_u32 s10, s10, 1")
    a("s_cmp_lg_u32 s10, 0")
    a("s_cbranch_scc1 C_LOOP")
    stamp(a, 5)
    a("s_waitcnt lgkmcnt(0)")
    a("s_nop 4")
    for t in range(8):
        a(f"v_cvt_pk_bf16_f32 v{AC+4*t}, v{AC+4*t}, v{AC+4*t+1}")
        a(f"v_cvt_pk_bf16_f32 v{AC+4*t+1}, v{AC+4*t+2}, v{AC+4*t+3}")
        a(f"ds_write_b64 v5, {vr(AC+4*t,2)} offset:{512*t}")
    a("v_lshl_add_u32 v6, v0, 4, s5")
    a("v_bfe_u32 v7, v0, 2, 2")
    a("v_xor_b32 v7, s8, v7")
    a("v_lshlrev_b32 v7, 4, v7")
    a("v_lshl_add_u32 v7, v0, 6, v7")
    a(f"v_add_u32 v7, {L_U+2048}, v7")
    Yb = 44; Ub = 60; Tb = 76
    for i in range(4):
        a(f"ds_read_b128 {vr(Yb+4*i,4)}, v6 offset:{1024*i}")
        a(f"ds_read_b128 {vr(Ub+4*i,4)}, v7 offset:{4096*i}")
    a("v_lshrrev_b32 v8, 2, v0")
    a("v_mul_u32_u24 v8, 36864, v8")
    a("v_and_b32 v9, 3, v0")
    a("v_lshl_add_u32 v8, v9, 4, v8")
    a("s_lshl_b32 s11, s4, 6")
    a(f"s_add_u32 s11, s11, {AF_OFF}")
    a("s_waitcnt lgkmcnt(0)")
    for k in range(16):
        a(f"v_lshlrev_b32 v{Tb+2*k}, 16, v{Ub+k}")
        a(f"v_and_b32 v{Tb+2*k+1}, s73, v{Ub+k}")
    for k in range(32):
        a(f"v_mul_f32 v{Tb+k}, s9, v{Tb+k}")
    for k in range(16):
        a(f"v_cvt_pk_bf16_f32 v{Ub+k}, v{Tb+2*k}, v{Tb+2*k+1}")
    T2 = Tb+32
    for k in range(16):
        a(f"v_lshlrev_b32 v{Tb+2*k}, 16, v{Ub+k}")
        a(f"v_and_b32 v{Tb+2*k+1}, s73, v{Ub+k}")
        a(f"v_lshlrev_b32 v{T2+2*k}, 16, v{Yb+k}")
        a(f"v_and_b32 v{T2+2*k+1}, s73, v{Yb+k}")
    for k in range(16):
        a(f"v_pk_add_f32 {vr(Tb+2*k,2)}, {vr(Tb+2*k,2)}, {vr(T2+2*k,2)}")
    for k in range(16):
        a(f"v_cvt_pk_bf16_f32 v{Yb+k}, v{Tb+2*k}, v{Tb+2*k+1}")
    for i in range(4):
        a(f"buffer_store_dwordx4 {vr(Yb+4*i,4)}, v8, s[16:19], s11 offen sc1")
        a(f"s_add_u32 s11, s11, {16*36864}")
    a("s_lshl_b32 s11, s2, 7")
    a(f"s_add_u32 s11, s11, {FL_A}")
    a("s_waitcnt vmcnt(0)")
    publish(a, SY_CA, 3, "s11", 10)
    finish(a)

def gen_wo(a):
    a("s_waitcnt vmcnt(0)")
    a("s_sub_u32 s4, s2, 192")
    a("s_mul_i32 s4, s4, 3")
    a("s_add_u32 s4, s4, s3")
    a("s_sub_u32 s4, s4, 8")
    ident_nat(a, 16, 20, 10)
    a("v_lshrrev_b32 v13, 4, v4")
    a("v_lshl_add_u32 v13, v13, 2, v4")
    emit_tau(a, 14, 4, 15)
    a("v_lshrrev_b32 v15, 1, v14")
    a("v_mul_u32_u24 v24, 18, v15")
    a("v_and_b32 v14, 1, v14")
    a("v_add_u32 v24, v24, v14")
    a("v_and_b32 v15, 1, v15")
    a("v_xor_b32 v15, 1, v15")
    a("v_lshl_add_u32 v14, v15, 4, v24")
    a("v_lshlrev_b32 v25, 4, v0")
    get_nonce(a)
    lds_wait(a, SY_GO, 1, sleep=8)
    a.label("W_LOOP")
    a("s_mul_i32 s5, s4, 3641")
    a("s_lshr_b32 s5, s5, 16")
    a("s_mul_i32 s6, s5, 18")
    a("s_sub_u32 s6, s4, s6")
    a("s_mul_i32 s7, s6, 36")
    a("s_sub_u32 s8, s6, 16")
    a("s_mul_i32 s8, s8, 288")
    a("s_cmp_ge_u32 s6, 16")
    a("s_cselect_b32 s7, s8, s7")
    a("s_cselect_b64 vcc, -1, 0")
    a("v_cndmask_b32 v24, v13, v14, vcc")
    a("v_add_u32 v24, s7, v24")
    a("v_mul_u32_u24 v24, 1152, v24")
    a("v_lshl_add_u32 v24, v5, 4, v24")
    a("s_lshl_b32 s8, s5, 6")
    a("v_add_u32 v24, s8, v24")
    a(f"global_load_dwordx4 v[28:31], v24, s[{S_WO}:{S_WO+1}]")
    a(f"global_load_dwordx4 v[32:35], v24, s[{S_WO}:{S_WO+1}] offset:32")
    a("s_lshl_b32 s8, s4, 11")
    a(f"s_add_u32 s8, s8, {WOF_OFF}")
    a("s_waitcnt vmcnt(0)")
    a("v_mfma_f32_32x32x16_bf16 v[40:55], v[28:31], v[16:19], 0")
    a("v_mfma_f32_32x32x16_bf16 v[40:55], v[32:35], v[20:23], v[40:55]")
    a("s_nop 15")
    for r in range(8):
        a(f"v_cvt_pk_bf16_f32 v{56+r}, v{40+2*r}, v{41+2*r}")
    a("buffer_store_dwordx4 v[56:59], v25, s[16:19], s8 offen sc1")
    a("buffer_store_dwordx4 v[60:63], v25, s[16:19], s8 offen offset:1024 sc1")
    a("s_add_u32 s4, s4, 192")
    a("s_cmp_lt_u32 s4, 324")
    a("s_cbranch_scc1 W_LOOP")
    a("s_lshl_b32 s9, s2, 7")
    a(f"s_add_u32 s9, s9, {FL_WO-192*128}")
    a("s_waitcnt vmcnt(0)")
    publish(a, SY_CA, 3, "s9", 10)
    finish(a)

def gen_early(a, fetch=None):
    srd(a, 8, S_X, X_BYTES)
    a("v_mul_u32_u24 v6, 52, v0")
    a("v_lshrrev_b32 v6, 8, v6")
    a("v_mul_u32_u24 v7, 5, v6")
    a("v_sub_u32 v7, v0, v7")
    a("v_mul_u32_u24 v6, 1152, v6")
    a("v_lshl_add_u32 v6, v7, 4, v6")
    a("s_mul_i32 s6, s4, 128*1152")
    a("s_mul_i32 s7, s5, 72")
    a("s_add_u32 s6, s6, s7")
    a(f"s_mov_b32 m0, {STG}")
    a("s_mov_b32 exec_hi, 0x0fffffff")
    for i in range(11):
        a("buffer_load_dwordx4 v6, s[8:11], s6 offen lds")
        if i < 10:
            a("s_add_u32 m0, m0, 960")
            a(f"s_add_u32 s6, s6, {12*1152}")
    a("s_mov_b64 exec, -1")
    a("v_lshrrev_b32 v9, 4, v0")
    a("v_and_b32 v10, 3, v0")
    a("v_lshl_add_u32 v9, v9, 2, v10")
    a("v_bfe_u32 v11, v0, 2, 2")
    a("v_lshl_add_u32 v9, v9, 3, v11")
    a("v_mul_u32_u24 v9, 80, v9")
    a(f"v_add_u32 v9, {STG}, v9")
    a("v_lshrrev_b32 v7, 2, v0")
    a("v_mul_u32_u24 v7, 9216, v7")
    a("v_lshl_add_u32 v7, v10, 4, v7")
    a(f"s_mul_i32 s6, s4, {16*9216}")
    a("s_mul_i32 s7, s5, 576")
    a("s_add_u32 s6, s6, s7")
    a(f"s_add_u32 s6, s6, {UT_OFF}")
    a("s_lshl_b32 s7, s5, 4")
    a("s_add_u32 s7, s7, s4")
    a("s_lshl_b32 s7, s7, 7")
    a(f"s_add_u32 s7, s7, {FL_UT}")
    fetch()
    a("s_waitcnt vmcnt(0)")
    UX = 32
    for i in range(9):
        a(f"ds_read_b64_tr_b16 {vr(UX+4*i,2)}, v9 offset:{8*i}")
        a(f"ds_read_b64_tr_b16 {vr(UX+4*i+2,2)}, v9 offset:{8*i+320}")
        if i == 5: a("s_waitcnt lgkmcnt(6)")
    a("s_waitcnt lgkmcnt(0)")
    for i in range(9):
        a(f"buffer_store_dwordx4 {vr(UX+4*i,4)}, v7, s[16:19], s6 offen offset:{64*i} sc1")
    a("s_waitcnt vmcnt(0)")
    flag_set(a, "s7", 12)
    stamp(a, 2)

def gen_gate(a):
    GX = 72; GW = 108
    a("s_and_b32 s4, s2, 1")
    a("s_lshl_b32 s4, s4, 7")
    a("s_lshr_b32 s5, s2, 1")
    a("s_add_u32 s4, s4, s5")
    a("s_mul_i32 s5, s4, 9216")
    a("v_and_b32 v8, 7, v0")
    a("v_lshlrev_b32 v8, 4, v8")
    a("v_lshrrev_b32 v11, 3, v0")
    a("v_mul_u32_u24 v10, 1152, v11")
    a("v_add_u32 v10, v10, v8")
    for i in range(9):
        a(f"buffer_load_dwordx4 {vr(GX+4*i,4)}, v10, s[8:11], s5 offen offset:{128*i}")
    for i in range(9):
        a(f"global_load_dwordx4 {vr(GW+4*i,4)}, v8, s[{S_GW}:{S_GW+1}] offset:{128*i}")
    a("s_lshl_b32 s6, s4, 7")
    a("s_waitcnt vmcnt(0)")
    a("s_mov_b32 s73, 0xffff0000")
    for k in range(8): a(f"v_mov_b32 v{16+k}, 0")
    a("s_waitcnt lgkmcnt(0)")
    for i in range(9):
        for k in range(4):
            a(f"v_lshlrev_b32 v{32+2*k}, 16, v{GX+4*i+k}")
            a(f"v_and_b32 v{33+2*k}, s73, v{GX+4*i+k}")
            a(f"v_lshlrev_b32 v{40+2*k}, 16, v{GW+4*i+k}")
            a(f"v_and_b32 v{41+2*k}, s73, v{GW+4*i+k}")
        for k in range(4):
            a(f"v_pk_mul_f32 {vr(32+2*k,2)}, {vr(32+2*k,2)}, {vr(40+2*k,2)}")
        for k in range(4):
            a(f"v_cvt_pk_bf16_f32 v{40+k}, v{32+2*k}, v{33+2*k}")
        for k in range(4):
            a(f"v_lshlrev_b32 v{32+2*k}, 16, v{40+k}")
            a(f"v_and_b32 v{33+2*k}, s73, v{40+k}")
        for k in range(4):
            a(f"v_pk_add_f32 {vr(16+2*k,2)}, {vr(16+2*k,2)}, {vr(32+2*k,2)}")
    a("v_pk_add_f32 v[16:17], v[16:17], v[18:19]")
    a("v_pk_add_f32 v[20:21], v[20:21], v[22:23]")
    a("v_pk_add_f32 v[16:17], v[16:17], v[20:21]")
    a("v_add_f32 v24, v16, v17")
    a("s_nop 1")
    a("v_add_f32_dpp v24, v24, v24 quad_perm:[1,0,3,2] row_mask:0xf bank_mask:0xf")
    a("s_nop 1")
    a("v_add_f32_dpp v24, v24, v24 quad_perm:[2,3,0,1] row_mask:0xf bank_mask:0xf")
    a("s_nop 1")
    a("v_add_f32_dpp v24, v24, v24 row_half_mirror row_mask:0xf bank_mask:0xf")
    a("v_cvt_pk_bf16_f32 v24, v24, v24")
    a("v_and_b32 v24, s73, v24")
    a(f"v_mul_f32 v24, {fhex(-LOG2E)}, v24")
    a("v_exp_f32 v24, v24")
    a("s_nop 0")
    a("v_add_f32 v24, 1.0, v24")
    a("v_rcp_f32 v24, v24")
    a("s_nop 0")
    a("v_cvt_pk_bf16_f32 v24, v24, v24")
    a("v_and_b32 v24, s73, v24")
    a("v_sub_f32 v25, 1.0, v24")
    a("v_cvt_pk_bf16_f32 v25, v25, v25")
    a("v_and_b32 v25, s73, v25")
    a("v_lshlrev_b32 v11, 3, v11")
    a("s_lshl_b32 s7, s4, 6")
    a(f"s_add_u32 s7, s7, {G_OFF}")
    a("s_mov_b32 exec_lo, 0x01010101")
    a("s_mov_b32 exec_hi, 0x01010101")
    a("buffer_store_dwordx2 v[24:25], v11, s[16:19], s7 offen sc1")
    a("s_mov_b64 exec, -1")
    a(f"s_add_u32 s7, s6, {FL_G}")
    a("s_waitcnt vmcnt(0)")
    flag_set(a, "s7", 12)
    stamp(a, 6)

def gen_misc(a):
    a("s_waitcnt vmcnt(0)")
    def fetch():
        for k in range(4):
            a(f"s_load_dword s74, s[{S_DBG}:{S_DBG+1}], {64*k}")
            a("s_waitcnt lgkmcnt(0)")
            a("s_cmp_lg_u32 s74, 0")
            a("s_cbranch_scc1 M_NOK")
            a("s_sleep 8")
        a(f"s_mov_b32 s97, {SPIN_MAX>>4}")
        a("v_mov_b32 v20, 0")
        a.label("M_NL")
        a(f"global_load_dword v21, v20, s[{S_DBG}:{S_DBG+1}] sc1")
        a("s_waitcnt vmcnt(0)")
        a("v_readfirstlane_b32 s74, v21")
        a("s_cmp_lg_u32 s74, 0")
        a("s_cbranch_scc1 M_NOK")
        a("s_sub_u32 s97, s97, 1")
        a("s_cbranch_scc0 M_NL")
        a("s_mov_b32 s74, 1")
        a.label("M_NOK")
        stamp(a, 1)
        a("v_mov_b32 v21, s74")
        a(f"ds_write_b32 v3, v21 offset:{4*SY_NONCE}")
    gen_early(a, fetch)
    a("s_setprio 3")
    a("v_lshlrev_b32 v6, 4, v0")
    a("s_cmp_ge_u32 s2, 192")
    a("s_cbranch_scc1 M_GATE")
    a("s_mul_i32 s5, s2, 171")
    a("s_lshr_b32 s5, s5, 11")
    a("s_lshl_b32 s5, s5, 11")
    a(f"s_add_u32 s5, s5, {FL_UT}")
    a("v_and_b32 v16, 15, v0")
    a("v_lshl_add_u32 v16, v16, 7, s5")
    a("v_lshrrev_b32 v9, 4, v0")
    a("v_and_b32 v10, 3, v0")
    a("v_xor_b32 v9, v9, v10")
    a("v_min_u32 v9, 2, v9")
    a("v_lshrrev_b32 v10, 2, v0")
    a("v_mul_u32_u24 v10, 9216, v10")
    a("v_lshl_add_u32 v9, v9, 4, v10")
    a("s_mul_i32 s5, s2, 48")
    a(f"s_add_u32 s5, s5, {UT_OFF}")
    flag_wait_multi(a, [16], 12, sleep=4)
    stamp(a, 3)
    lds_wait(a, SY_GDONE, 4, sleep=1)
    for k in range(4): a(f"v_mov_b32 v{12+k}, 0")
    a(f"v_add_u32 v11, {L_U}, v6")
    a("ds_write_b128 v11, v[12:15]")
    a("ds_write_b128 v11, v[12:15] offset:1024")
    stamp(a, 4)
    for j in range(16):
        a(f"s_mov_b32 m0, {L_U+2048+1024*j}")
        a("s_nop 0")
        a(f"buffer_load_dwordx4 v9, s[16:19], s5 offen {SC} lds")
        a(f"s_add_u32 s5, s5, {16*9216}")
    a("s_waitcnt vmcnt(0) lgkmcnt(0)")
    lds_add(a, SY_UREADY)
    stamp(a, 5)
    a.label("M_GATE")
    lds_wait(a, SY_GO, 1, sleep=8)
    a("s_sleep 32")
    gen_gate(a)
    a("s_cmp_ge_u32 s2, 192")
    a("s_cbranch_scc1 F_FIN")
    a("v_lshlrev_b32 v9, 7, v0")
    a(f"v_add_u32 v9, {FL_WO}, v9")
    flag_wait_multi(a, [9], 12, sleep=32)
    a("s_lshr_b32 s5, s2, 5")
    a("s_mul_i32 s5, s5, 110592")
    a(f"s_add_u32 s5, s5, {WOF_OFF}")
    a("s_mov_b32 s6, 0")
    a.label("M_WL")
    a("s_mov_b32 m0, s6")
    a("s_add_u32 s6, s6, 4096")
    for i in range(4):
        a(f"buffer_load_dwordx4 v6, s[16:19], s5 offen offset:{1024*i} {SC} lds")
    a("s_add_u32 s5, s5, 4096")
    a("s_waitcnt vmcnt(4)")
    a("s_cmp_lt_u32 s6, 110592")
    a("s_cbranch_scc1 M_WL")
    a("s_waitcnt vmcnt(0)")
```

```python
import math
QT_BYTES=1152
KVT_BYTES=2304
QF_OFF=0
QF_SZ=32*64*QT_BYTES
KV_OFF=QF_OFF+QF_SZ
KV_SZ=32*64*KVT_BYTES
OF_OFF=KV_OFF+KV_SZ
OF_SZ=64*36*1024
WOF_OFF=OF_OFF+OF_SZ
WOF_SZ=18*36*1024
UT_OFF=WOF_OFF+WOF_SZ
UT_SZ=256*9216
AF_OFF=UT_OFF+UT_SZ
AF_SZ=64*576*64
G_OFF=AF_OFF+AF_SZ
G_SZ=2048*8
FL_OFF=G_OFF+G_SZ
FL_UT=FL_OFF
FL_G=FL_UT+256*128
FL_QKV=FL_G+256*128
FL_WO=FL_QKV+256*128
FL_A=FL_WO+64*128
FL_O=FL_A+192*128
OX_OFF=FL_O+256*128
OX_SZ=64*32*128
WS_USED=OX_OFF+OX_SZ
X_BYTES=2048*576*2
W_BYTES=576*1728*2
WO_BYTES=576*576*2
QSCALE = (18**-0.5)*math.log2(math.e)
S_X=32; S_LOGA=34; S_AIM=36; S_CR=38; S_CI=40; S_LOGDT=42; S_DSKIP=44; S_W=48; S_WO=50; S_GW=52; S_OUT=54; S_DBG=56; S_WS=58
L_RING=0
L_STAGE=98304
L_U=110592
L_KC=131072
KC_STRIDE=4288
L_UEND=L_KC+6*KC_STRIDE
L_SYNC=163840-256
LDS_TOTAL=163840
SY_FULL=0
SY_FREE=12
SY_NONCE=24
SY_GO=25
SY_UREADY=26
SY_GDONE=1
SY_GO3=27
SY_ISS=28
SY_CQ=29
SY_CA=30
SY_CO=31
SY_STG=11
assert L_UEND <= L_SYNC
if __name__=="__main__":
    for k,v in list(globals().items()):
        if k.isupper(): print(k,v)
```

```python
import sys
from asmlib import *
from layout2 import *
import fused
NAME = "gated_mix__ssm_conv_s4d__mha_block__prompt"
hdr = open(f"cdna_kernels/{NAME}.s.ref").read().split("; Override launch")[0]
a = Asm()
out = hdr
out += f"; @launch grid=(256,1,1) block=(768,1,1) lds={LDS_TOTAL}\n"
a('.amdgcn_target "amdgcn-amd-amdhsa--gfx950"')
a(".text")
fused.gen(a, NAME + "_kernel")
out += a.text()
out += '.section .rodata,"a"\n'
out += kernel_desc(NAME + "_kernel", 168)
dst = sys.argv[1] if len(sys.argv) > 1 else f"cdna_kernels/{NAME}.s"
open(dst, "w").write(out)
print("wrote", dst, len(out))
```

```python
import os, math, struct
from asmlib import *
from layout2 import *

LOG2E = math.log2(math.e)
SC = os.environ.get("SC", "sc1")
SCKV = os.environ.get("SCKV", "")
SPIN_MAX = 1 << 22
XP = os.environ.get("XP","")
CPF = os.environ.get("CPF","1") == "1"
PROG = os.environ.get("PROG","1") == "1"
FINE = os.environ.get("FINE","0") == "1"
MINSLEEP = int(os.environ.get("MINSLEEP","0"))
ULATE = os.environ.get("ULATE","0") == "1"
STG = 32768
ROT = os.environ.get("ROT","9")
PROFB = os.environ.get("PROF","0") == "2"
PROFC = os.environ.get("PROF","0") == "3"
PROFD = os.environ.get("PROF","0") == "4"
_stamp = stamp
def stamp(a, i, force=False):
    if PROFD: return
    if PROFC and not force and i not in (0,7): return
    _stamp(a, i)

def emit_tau(a, dst, src, t):
    a(f"v_lshrrev_b32 v{t}, 1, v{src}")
    a(f"v_xor_b32 v{t}, v{t}, v{src}")
    a(f"v_and_b32 v{t}, 4, v{t}")
    a(f"v_mul_u32_u24 v{t}, 3, v{t}")
    a(f"v_xor_b32 v{dst}, v{src}, v{t}")

def emit_ident(a, dst, e, t0, t1, n=4):
    a(f"v_and_b32 v{t0}, 1, v{e}")
    a(f"v_lshlrev_b32 v{t0}, 4, v{t0}")
    a(f"v_mov_b32 v{t1}, 0x3f80")
    a(f"v_lshlrev_b32 v{t0}, v{t0}, v{t1}")
    a(f"v_ashrrev_i32 v{t1}, 1, v{e}")
    for q in range(n):
        a(f"v_cmp_eq_u32 s[{60+2*q}:{61+2*q}], {q}, v{t1}")
    a("s_nop 1")
    for q in range(n):
        a(f"v_cndmask_b32 v{dst+q}, 0, v{t0}, s[{60+2*q}:{61+2*q}]")

def ident_nat(a, lo, hi, t):
    a(f"v_lshlrev_b32 v{t}, 3, v5")
    a(f"v_sub_u32 v{t}, v4, v{t}")
    emit_ident(a, lo, t, t+1, t+2)
    a(f"v_subrev_u32 v{t}, 16, v{t}")
    emit_ident(a, hi, t, t+1, t+2)

def exp_precise(a, dst, x, t0, t1):
    a(f"v_mul_f32 v{t0}, s70, v{x}")
    a(f"v_fma_f32 v{t1}, v{x}, s70, -v{t0}")
    a(f"v_fma_f32 v{t1}, v{x}, s71, v{t1}")
    a(f"v_exp_f32 v{t0}, v{t0}")
    a(f"v_mul_f32 v{t1}, s72, v{t1}")
    a(f"v_fma_f32 v{dst}, v{t0}, v{t1}, v{t0}")

def lds_add(a, word):
    a("s_mov_b64 exec, 1")
    a(f"ds_add_u32 v3, v1 offset:{4*word}")
    a("s_mov_b64 exec, -1")

def lds_wait(a, word, val, sleep=0, pre_read=False, ge=True):
    lab = a.newlabel("LW"); ok = a.newlabel("LWOK")
    if pre_read:
        a("v_readfirstlane_b32 s96, v2")
        a(f"s_cmp_ge_u32 s96, {val}")
        a(f"s_cbranch_scc1 {ok}")
    a(f"s_mov_b32 s97, {SPIN_MAX}")
    a.label(lab)
    a(f"ds_read_b32 v2, v3 offset:{4*word}")
    a("s_waitcnt lgkmcnt(0)")
    a("v_readfirstlane_b32 s96, v2")
    a(f"s_cmp_ge_u32 s96, {val}")
    a(f"s_cbranch_scc1 {ok}")
    sleep = max(sleep, MINSLEEP)
    if sleep: a(f"s_sleep {sleep}")
    a("s_sub_u32 s97, s97, 1")
    a(f"s_cbranch_scc0 {lab}")
    a.label(ok)

def full_wait(a, n, sleep=0):
    lab = a.newlabel("FL"); ok = a.newlabel("FLOK")
    a(f"s_mov_b32 s97, {SPIN_MAX}")
    a.label(lab)
    a(f"ds_read_b128 v[164:167], v3 offset:{4*SY_FULL}")
    a("s_waitcnt lgkmcnt(0)")
    a("v_min3_u32 v164, v164, v165, v166")
    a("v_min_u32 v164, v164, v167")
    a("s_nop 0")
    a("v_readfirstlane_b32 s96, v164")
    a(f"s_cmp_ge_u32 s96, {n}")
    a(f"s_cbranch_scc1 {ok}")
    if sleep: a(f"s_sleep {sleep}")
    a("s_sub_u32 s97, s97, 1")
    a(f"s_cbranch_scc0 {lab}")
    a.label(ok)

def get_nonce(a):
    lds_wait(a, SY_NONCE, 1)
    a("s_mov_b32 s74, s96")

def flag_set(a, soff, t):
    a(f"v_mov_b32 v{t}, 0")
    a(f"v_mov_b32 v{t+1}, s74")
    a("s_mov_b64 exec, 1")
    a(f"buffer_store_dword v{t+1}, v{t}, s[16:19], {soff} offen sc1")
    a("s_mov_b64 exec, -1")

def publish(a, word, nwaves, soff, t):
    skip = a.newlabel("PB")
    a("s_mov_b64 exec, 1")
    a(f"ds_add_rtn_u32 v2, v3, v1 offset:{4*word}")
    a("s_mov_b64 exec, -1")
    a("s_waitcnt lgkmcnt(0)")
    a("v_readfirstlane_b32 s96, v2")
    a(f"s_cmp_lg_u32 s96, {nwaves-1}")
    a(f"s_cbranch_scc1 {skip}")
    flag_set(a, soff, t)
    a.label(skip)

def flag_wait_multi(a, voffs, t, sleep=2):
    lab = a.newlabel("FW"); ok = a.newlabel("FWOK")
    a(f"s_mov_b32 s97, {SPIN_MAX>>4}")
    a.label(lab)
    for k, v in enumerate(voffs):
        a(f"buffer_load_dword v{t+k}, v{v}, s[16:19], 0 offen sc1")
    a("s_waitcnt vmcnt(0)")
    for k in range(len(voffs)):
        a(f"v_xor_b32 v{t+k}, s74, v{t+k}")
    for k in range(1, len(voffs)):
        a(f"v_or_b32 v{t}, v{t}, v{t+k}")
    a(f"v_cmp_ne_u32 vcc, 0, v{t}")
    a("s_cmp_eq_u64 vcc, 0")
    a(f"s_cbranch_scc1 {ok}")
    if sleep: a(f"s_sleep {sleep}")
    a("s_sub_u32 s97, s97, 1")
    a(f"s_cbranch_scc0 {lab}")
    a.label(ok)

def flag_wait(a, voff, n, t, sleep=2):
    lab = a.newlabel("FW"); ok = a.newlabel("FWOK")
    op = {1: "dword", 2: "dwordx2", 4: "dwordx4"}[n]
    a(f"s_mov_b32 s97, {SPIN_MAX>>4}")
    a.label(lab)
    a(f"buffer_load_{op} {vr(t,n)}, v{voff}, s[16:19], 0 offen sc1")
    a("s_waitcnt vmcnt(0)")
    for k in range(n):
        a(f"v_xor_b32 v{t+k}, s74, v{t+k}")
    for k in range(1, n):
        a(f"v_or_b32 v{t}, v{t}, v{t+k}")
    a(f"v_cmp_ne_u32 vcc, 0, v{t}")
    a("s_cmp_eq_u64 vcc, 0")
    a(f"s_cbranch_scc1 {ok}")
    if sleep: a(f"s_sleep {sleep}")
    a("s_sub_u32 s97, s97, 1")
    a(f"s_cbranch_scc0 {lab}")
    a.label(ok)

def finish(a):
    stamp_flush(a, 0)
    a("s_endpgm")

def start_sync(a):
    a("s_waitcnt lgkmcnt(0)")
    a("s_barrier")

def gen(a, name):
    kernel_begin(a, name)
    a("s_cmp_ge_u32 s2, 256")
    a("s_cbranch_scc1 F_END")
    a("s_load_dwordx2 s[8:9], s[0:1], 0")
    a("s_load_dwordx2 s[12:13], s[0:1], 64")
    a("s_load_dwordx2 s[16:17], s[0:1], 104")
    a("s_load_dwordx16 s[32:47], s[0:1], 0")
    a("s_load_dwordx8 s[48:55], s[0:1], 64")
    a("s_load_dwordx4 s[56:59], s[0:1], 96")
    stamp_init(a)
    if CPF:
        a("s_getpc_b64 s[60:61]")
        a("s_lshr_b32 s62, s2, 3")
        a("s_lshl_b32 s62, s62, 10")
        a("s_add_u32 s60, s60, s62")
        a("s_addc_u32 s61, s61, 0")
        a("v_lshlrev_b32 v20, 7, v0")
        a("v_mov_b32 v21, s61")
        a("v_add_co_u32 v20, vcc, s60, v20")
        a("s_nop 1")
        a("v_addc_co_u32 v21, vcc, 0, v21, vcc")
        a("v_cmp_gt_u32 vcc, 8, v0")
        a("s_and_saveexec_b64 s[64:65], vcc")
        a("s_cbranch_execz CPF_SKIP")
        a("global_load_dword v22, v[20:21], off")
        a.label("CPF_SKIP")
        a("s_mov_b64 exec, s[64:65]")
    a("v_lshrrev_b32 v1, 6, v0")
    a("v_and_b32 v0, 63, v0")
    a("v_readfirstlane_b32 s3, v1")
    a("v_mov_b32 v2, 0")
    a(f"v_mov_b32 v3, {L_SYNC}")
    a("v_lshl_add_u32 v4, v0, 2, v3")
    a("ds_write_b32 v4, v2")
    a("v_mov_b32 v1, 1")
    a("v_and_b32 v4, 31, v0")
    a("v_lshrrev_b32 v5, 5, v0")
    a("s_bfe_u32 s6, s2, 0x20003")
    a("s_lshr_b32 s7, s2, 5")
    a("s_and_b32 s4, s2, 3")
    a("s_lshl_b32 s4, s4, 2")
    a("s_add_u32 s4, s4, s6")
    a("s_bfe_u32 s5, s2, 0x10002")
    a("s_mul_i32 s5, s5, 7")
    a("s_add_u32 s5, s5, s7")
    a(f"s_mov_b32 s18, {WS_USED}")
    a("s_mov_b32 s19, 0x20000")
    a("s_cmp_eq_u32 s5, 13")
    a("s_cselect_b32 s27, 7, 15")
    a("v_lshrrev_b32 v7, 4, v0")
    a("v_lshlrev_b32 v8, 2, v7")
    a("v_sub_u32 v8, v0, v8")
    a("v_and_b32 v8, s27, v8")
    a("v_mul_u32_u24 v7, 3456, v7")
    a("v_lshl_add_u32 v6, v8, 4, v7")
    a("v_lshrrev_b32 v9, 3, v0")
    a("v_and_b32 v10, 7, v0")
    a("v_lshrrev_b32 v11, 1, v9")
    a("v_xor_b32 v10, v10, v11")
    a("v_mul_u32_u24 v9, 1152, v9")
    a("v_lshl_add_u32 v7, v10, 4, v9")
    a("v_xor_b32 v10, 4, v10")
    a("v_lshl_add_u32 v8, v10, 4, v9")
    a("v_add_u32 v8, 8192, v8")
    a("v_add_u32 v9, 12800, v6")
    a("s_lshl_b32 s22, s5, 8")
    a(f"s_mul_i32 s27, s3, {4*13824}")
    a("s_add_u32 s22, s22, s27")
    a("s_lshl_b32 s23, s4, 2")
    a("s_add_u32 s23, s23, s3")
    a(f"s_mul_i32 s23, s23, {32*1152}")
    a("s_lshl_b32 s24, s3, 12")
    a("s_lshl_b32 s20, s6, 1")
    a("s_add_u32 s20, s20, s7")
    a("s_sub_u32 s27, s20, 9")
    a("s_cmp_ge_u32 s20, 9")
    a("s_cselect_b32 s20, s27, s20")
    if ROT != "9":
        n1 = int(ROT); n2 = 9 - n1
        a("s_add_u32 s20, s6, s7")
        a("s_mov_b32 s21, s20")
        for reg, n in (("s20", n1), ("s21", n2)):
            for _ in range(9 // n):
                a(f"s_sub_u32 s27, {reg}, {n}")
                a(f"s_cmp_ge_u32 {reg}, {n}")
                a(f"s_cselect_b32 {reg}, s27, {reg}")
        a(f"s_add_u32 s21, s21, {n1}")
    a("s_and_b32 s31, s2, 7")
    a("s_mul_i32 s31, s31, 24")
    a("s_lshr_b32 s27, s2, 3")
    a("s_add_u32 s31, s31, s27")
    a("s_cmp_ge_u32 s2, 224")
    a("s_waitcnt lgkmcnt(0)")
    a("s_cbranch_scc1 F_FREE")
    a("s_cmp_ge_u32 s3, 4")
    a("s_cbranch_scc1 F_NOTLOADER")
    gen_loader(a)
    a.label("F_NOTLOADER")
    a("s_cmp_lt_u32 s3, 8")
    a("s_cbranch_scc1 F_GEMM")
    a("s_cmp_eq_u32 s3, 11")
    a("s_cbranch_scc1 F_MISC")
    a("s_cmp_lt_u32 s2, 192")
    a("s_cbranch_scc1 F_KGEN")
    a("s_endpgm")
    a.label("F_GEMM")
    gen_gemm(a)
    a.label("F_ATTN")
    gen_attn(a)
    a.label("F_P3")
    gen_p3(a)
    a.label("F_KGEN")
    gen_kgen(a)
    gen_conv(a)
    a.label("F_FREE")
    gen_free(a)
    a.label("F_MISC")
    gen_misc(a)
    a.label("F_FIN")
    stamp_flush(a, 0)
    a.label("F_END")
    a("s_endpgm")

def gen_loader(a):
    a("s_add_u32 s12, s12, s22")
    a("s_addc_u32 s13, s13, 0")
    a("s_add_u32 s8, s8, s23")
    a("s_addc_u32 s9, s9, 0")
    def chunk(i):
        n1 = int(ROT)
        reg, lo, hi = ("s20", 0, n1) if i < n1 else ("s21", n1, 9)
        a(f"s_mul_i32 s25, {reg}, {16*13824}")
        a(f"s_lshl_b32 s26, {reg}, 7")
        a("s_add_u32 s14, s12, s25")
        a("s_addc_u32 s15, s13, 0")
        a("s_add_u32 s10, s8, s26")
        a("s_addc_u32 s11, s9, 0")
        for hf in range(2):
            a(f"s_add_u32 m0, s24, {(i % 4) * 32768 + hf*2048}")
            if hf:
                a(f"s_add_u32 s14, s14, {2*13824}")
                a("s_addc_u32 s15, s15, 0")
            else: a(f"s_add_u32 {reg}, {reg}, 1")
            a("global_load_lds_dwordx4 v6, s[14:15]")
            a("global_load_lds_dwordx4 v9, s[14:15] offset:1024")
            a("s_add_u32 m0, m0, 16384")
            if hf:
                a(f"s_add_u32 s10, s10, {2*9216}")
                a("s_addc_u32 s11, s11, 0")
            else:
                a(f"s_cmp_eq_u32 {reg}, {hi}")
                a(f"s_cselect_b32 {reg}, {lo}, {reg}")
            a("global_load_lds_dwordx4 v7, s[10:11]")
            a("global_load_lds_dwordx4 v8, s[10:11] offset:1024")
    stamp(a, 1)
    chunk(0); chunk(1)
    for i in range(-1, 8):
        a(f"s_waitcnt vmcnt({8 if i < 7 else 0})")
        if i == -1: stamp(a, 2)
        if i == 3: stamp(a, 3)
        if i == 7: stamp(a, 4)
        a("s_barrier")
        if i + 3 <= 8: chunk(i + 3)
    a("s_branch F_ATTN")

ACC = 16; FB = 80
def gen_gemm(a):
    a("s_sub_u32 s8, s3, 4")
    a("s_lshl_b32 s6, s4, 2")
    a("s_add_u32 s6, s6, s8")
    a("v_bfe_u32 v10, v0, 2, 2")
    a("v_bfe_u32 v11, v0, 4, 1")
    a("v_and_b32 v12, 3, v0")
    a("v_lshlrev_b32 v6, 11, v5")
    a("v_lshl_add_u32 v6, v10, 8, v6")
    a("v_lshl_add_u32 v6, v11, 5, v6")
    a("v_lshl_add_u32 v6, v12, 3, v6")
    for p in range(4):
        a(f"v_add_u32 v12, {p}, v10")
        a("v_and_b32 v12, 3, v12")
        a(f"v_lshl_add_u32 v{148+p}, v12, 6, v6")
        a(f"v_add_u32 v{152+p}, 0x10000, v{148+p}")
    a("s_lshl_b32 s7, s8, 12")
    a("s_add_u32 s7, s7, 16384")
    a("v_lshl_add_u32 v14, v4, 7, s7")
    a("v_bfe_u32 v15, v4, 1, 3")
    a("v_xor_b32 v15, v15, v5")
    for sp in range(4):
        a(f"v_xor_b32 v12, {2*sp}, v15")
        a(f"v_lshl_add_u32 v{140+sp}, v12, 4, v14")
        a(f"v_add_u32 v{144+sp}, 0x10000, v{140+sp}")
    emit_tau(a, 13, 4, 14)
    a("v_lshlrev_b32 v156, 4, v13")
    a("v_lshl_add_u32 v156, v5, 3, v156")
    a("v_mul_u32_u24 v157, 9216, v5")
    a("v_lshl_add_u32 v157, v4, 4, v157")
    a(f"s_mul_i32 s26, s6, {TILE}")
    a("s_lshl_b32 s27, s5, 13")
    a("s_add_u32 s20, s26, s27")
    a("s_add_u32 s21, s20, 4096")
    a("s_lshl_b32 s27, s5, 11")
    a("s_add_u32 s22, s26, s27")
    a(f"s_add_u32 s22, s22, {VOFF - 9*2048}")
    a("s_add_u32 s23, s22, 18432")
    a(f"s_mov_b32 s28, {fhex(QSCALE)}")
    a("s_mov_b32 s29, s28")
    a("s_lshl_b32 s24, s5, 4")
    a("s_add_u32 s24, s24, s4")
    a("s_lshl_b32 s24, s24, 7")
    a(f"s_add_u32 s24, s24, {FL_QKV}")
    NB = 3
    def reads(s):
        i, sp = divmod(s, 4)
        slot = i % 4
        buf = FB + 20*(s % NB)
        m, x = (152, 144+sp) if slot >= 2 else (148, 140+sp)
        so = (slot % 2) * 32768
        out = [f"ds_read_b128 {vr(buf+16,4)}, v{x} offset:{so}"]
        for p in range(4):
            for j in range(2):
                out.append(f"ds_read_b64_tr_b16 {vr(buf+4*p+2*j,2)}, v{m+p} offset:{so+sp*4096+j*1024}")
        return out
    def mf(s, p, swap):
        buf = FB + 20*(s % NB)
        cin = "0" if s == 0 else vr(ACC+16*p,16)
        w, x = vr(buf+4*p,4), vr(buf+16,4)
        if swap: w, x = x, w
        a(f"v_mfma_f32_32x32x16_bf16 {vr(ACC+16*p,16)}, {w}, {x}, {cin}")
    def mfmas(s, swap, inter=(), cuts=(3, 5, 7, 30)):
        inter = list(inter)
        for p in range(4):
            mf(s, p, swap)
            for ln in inter[(cuts[p-1] if p else 0):cuts[p]]: a(ln)
    def loop(swap):
        for s in range(34):
            i, sp = divmod(s, 4)
            a("s_waitcnt lgkmcnt(9)")
            if PROFD and not swap and s % 2 == 0 and s >= 2:
                if s >= 4: a(f"s_mov_b32 s{80 + s//2 - 2}, s98")
                a("s_memtime s[98:99]")
            if sp == 2:
                mfmas(s, swap, ["s_barrier"] + reads(s+2), cuts=(4, 6, 8, 30))
            else:
                mfmas(s, swap, reads(s+2))
        a("s_waitcnt lgkmcnt(9)")
        mf(34, 0, swap); mf(34, 1, swap)
        a("s_waitcnt lgkmcnt(0)")
        mf(35, 0, swap)
        lds_add(a, SY_GDONE)
        mf(35, 1, swap); mf(34, 2, swap); mf(35, 2, swap); mf(34, 3, swap); mf(35, 3, swap)
        stamp(a, 3)
        a("s_nop 4")
    a("s_barrier")
    stamp(a, 2)
    a("s_setprio 2")
    for ln in reads(0): a(ln)
    for ln in reads(1): a(ln)
    a("s_cmp_ge_u32 s5, 9")
    a("s_cbranch_scc1 G_V")
    loop(False)
    for p in range(4):
        A0 = ACC+16*p
        lab = a.newlabel("G_NS")
        a(f"s_cmp_gt_u32 s5, {4 if p < 2 else 3}")
        a(f"s_cbranch_scc1 {lab}")
        for k in range(8): a(f"v_pk_mul_f32 {vr(A0+2*k,2)}, {vr(A0+2*k,2)}, s[28:29]")
        a.label(lab)
        for r in range(8): a(f"v_cvt_pk_bf16_f32 v{A0+r}, v{A0+2*r}, v{A0+2*r+1}")
        for q in range(4):
            a(f"buffer_store_dwordx2 {vr(A0+2*q,2)}, v156, s[16:19], s{20 + p//2} offen offset:{(p%2)*2048 + q*512} sc1")
    a("s_branch G_PUB")
    a.label("G_V")
    loop(True)
    for p in range(4):
        A0 = ACC+16*p
        if p == 2:
            a("s_cmp_eq_u32 s5, 13")
            a("s_cbranch_scc1 G_PUB")
        for r in range(8): a(f"v_cvt_pk_bf16_f32 v{A0+r}, v{A0+2*r}, v{A0+2*r+1}")
        for t in range(2):
            a(f"buffer_store_dwordx4 {vr(A0+4*t,4)}, v157, s[16:19], s{22+t} offen offset:{p*512} sc1")
    a.label("G_PUB")
    stamp(a, 1)
    get_nonce(a)
    a("s_setprio 0")
    a("s_waitcnt vmcnt(0)")
    publish(a, SY_CQ, 4, "s24", 10)
    stamp(a, 4)

QA=16; QAX=20; QB=24; QBX=28; SA=32; SB=48; OA=64; OB=80; KVB=96
ONES=0x3f803f80
def kb(b): return KVB+14*b
def kx(b): return KVB+14*b+4
def v0r(b): return KVB+14*b+6
def v1r(b): return KVB+14*b+10
def kv_loads(b, wrap=True):
    return [f"buffer_load_dwordx4 {vr(kb(b),4)}, v7, s[16:19], s20 offen {SCKV}",
            f"buffer_load_dwordx2 {vr(kx(b),2)}, v8, s[16:19], s20 offen {SCKV}",
            "s_mov_b64 exec, s[22:23]",
            f"buffer_load_dwordx4 {vr(v0r(b),4)}, v9, s[16:19], s20 offen {SCKV}",
            f"buffer_load_dwordx4 {vr(v1r(b),4)}, v154, s[16:19], s20 offen {SCKV}",
            "s_mov_b64 exec, -1",
            f"s_add_u32 s20, s20, {TILE}"] + (["s_cmp_eq_u32 s20, s29", "s_cselect_b32 s20, s28, s20"] if (b == 3 and wrap) else [])

def qk(a, S, buf, Q, QX):
    a(f"v_mfma_f32_32x32x8_bf16 {vr(S,16)}, {vr(kx(buf),2)}, {vr(QX,2)}, 0")
    a(f"v_mfma_f32_32x32x16_bf16 {vr(S,16)}, {vr(kb(buf),4)}, {vr(Q,4)}, {vr(S,16)}")

def gen_attn(a):
    a("s_and_b32 s4, s2, 7")
    a("s_lshl_b32 s4, s4, 2")
    a("s_bfe_u32 s5, s2, 0x20003")
    a("s_add_u32 s4, s4, s5")
    a("s_lshr_b32 s5, s2, 5")
    a("s_lshr_b32 s6, s3, 2")
    a("s_and_b32 s7, s3, 3")
    a("s_lshl_b32 s7, s7, 1")
    a("s_lshl_b32 s5, s5, 3")
    a("s_add_u32 s7, s5, s7")
    a("s_add_u32 s30, s7, s6")
    a("s_xor_b32 s31, s30, 1")
    a("s_mul_i32 s12, s4, 18")
    a("s_lshr_b32 s13, s12, 3")
    a("s_lshl_b32 s8, s13, 9")
    a(f"s_add_u32 s9, s8, {72*512}")
    a("v_lshl_add_u32 v7, v0, 4, s9")
    a("v_lshlrev_b32 v8, 4, v4")
    a("v_lshl_add_u32 v8, v5, 3, v8")
    a("s_add_u32 s9, s9, 1024")
    a("v_add_u32 v8, s9, v8")
    a(f"v_subrev_u32 v155, {72*512}, v7")
    a(f"v_subrev_u32 v156, {72*512}, v8")
    a(f"s_mul_i32 s24, s30, {TILE}")
    a(f"s_mul_i32 s25, s31, {TILE}")
    a("v_mul_u32_u24 v9, 9216, v5")
    a("v_lshl_add_u32 v9, v4, 4, v9")
    a("s_lshl_b32 s9, s12, 4")
    a(f"s_add_u32 s9, s9, {VOFF}")
    a("v_add_u32 v9, s9, v9")
    a("v_add_u32 v154, 18432, v9")
    a("s_mov_b32 s22, 0x3ffff")
    a("s_mov_b32 s23, 0x3ffff")
    a(f"s_mul_i32 s14, s6, {32*TILE}")
    a(f"s_add_u32 s29, s14, {32*TILE}")
    a("s_mov_b32 s28, s14")
    a("v_mov_b32 v6, 0xdddddddd")
    a("s_mov_b32 s15, 0")
    a(f"v_mov_b32 v10, {ONES}")
    a("v_and_b32 v11, 27, v4")
    a("v_cmp_eq_u32 vcc, 18, v11")
    a("s_and_b32 s9, s4, 3")
    a("v_lshlrev_b32 v12, 2, v5")
    a("v_cndmask_b32 v10, 0, v10, vcc")
    a("v_subrev_u32 v12, s9, v12")
    for k in range(4):
        a(f"v_cmp_le_i32 s[{60+2*k}:{61+2*k}], {-k}, v12")
    a("v_lshlrev_b32 v12, 1, v5")
    a("v_subrev_u32 v12, s9, v12")
    for k in range(2):
        a(f"v_cmp_ge_i32 s[{68+2*k}:{69+2*k}], {-k}, v12")
    for b in range(4):
        for r in range(8): a(f"v_mov_b32 v{v0r(b)+r}, v10")
    for r in range(16):
        a(f"v_mov_b32 v{OA+r}, 0")
        a(f"v_mov_b32 v{OB+r}, 0")
    for r in range(8):
        a(f"v_mov_b32 v{SB+8+r}, 0")
    a("v_bfe_u32 v11, v0, 3, 2")
    a("v_and_b32 v12, 1, v11")
    a("s_add_u32 s9, s13, 72")
    a("v_lshl_add_u32 v13, v12, 1, s9")
    a("v_lshrrev_b32 v13, 4, v13")
    a("s_add_u32 s9, s12, 1152")
    a("v_mad_u32_u24 v14, v12, 17, s9")
    a("v_lshrrev_b32 v14, 7, v14")
    a("v_cmp_gt_u32 vcc, 2, v11")
    a("v_lshl_add_u32 v15, v12, 1, s13")
    a("v_lshrrev_b32 v15, 4, v15")
    a("v_cndmask_b32 v13, v14, v13, vcc")
    a("v_and_b32 v11, 7, v0")
    a("s_lshl_b32 s9, s6, 3")
    a("v_add_u32 v14, s9, v11")
    a("v_lshl_add_u32 v13, v13, 4, v14")
    a("v_and_b32 v11, 1, v0")
    a("s_lshr_b32 s9, s5, 2")
    a("v_add_u32 v11, s9, v11")
    a("v_cmp_eq_u32 vcc, 0, v5")
    a("v_lshl_add_u32 v15, v15, 4, v11")
    a("s_lshl_b32 s26, s6, 2")
    a("v_cndmask_b32 v11, v15, v13, vcc")
    a("v_lshlrev_b32 v11, 7, v11")
    a(f"v_add_u32 v152, {FL_QKV}, v11")
    a("v_add_u32 v13, s26, v3")
    get_nonce(a)
    a("s_cmp_ge_u32 s3, 2")
    a("s_cbranch_scc1 A_WAITGO")
    a("s_lshl_b32 s26, s3, 10")
    a("v_mov_b32 v12, s26")
    a("s_lshl_b32 s26, s3, 2")
    a("v_cndmask_b32 v12, 0, v12, vcc")
    a("v_add_u32 v14, v152, v12")
    a("v_add_u32 v15, s26, v3")
    lds_wait(a, SY_CQ, 1, sleep=2)
    a(f"s_mov_b32 s97, {SPIN_MAX>>4}")
    a("s_lshr_b32 s27, s5, 3")
    a.label("A_POLL")
    a("buffer_load_dword v12, v14, s[16:19], 0 offen sc1")
    a("s_waitcnt vmcnt(0)")
    a("v_cmp_eq_u32 vcc, s74, v12")
    a("s_lshr_b32 s26, vcc_lo, 16")
    a("s_and_b32 s26, s26, vcc_lo")
    a("s_lshr_b32 s9, s26, 8")
    a("s_and_b32 s26, s26, s9")
    a("s_cmp_eq_u32 vcc_hi, -1")
    a("s_cselect_b32 s26, s26, 0")
    a(f"s_cmp_{'lg' if PROG else 'eq'}_u32 s26, {0 if PROG else 0xff}")
    a("s_cbranch_scc1 A_POK")
    a(f"s_sleep {os.environ.get('PS','2')}")
    a("s_sub_u32 s97, s97, 1")
    a("s_cbranch_scc0 A_POLL")
    a("s_mov_b32 s26, 0xff")
    a.label("A_POK")
    a("s_mul_i32 s96, s26, 0x101")
    a("s_lshr_b32 s96, s96, s27")
    a("s_ff1_i32_b32 s96, s96")
    a("s_add_u32 s96, s96, s27")
    a("s_and_b32 s96, s96, 7")
    a("s_cmp_eq_u32 s26, 0xff")
    a("s_cselect_b32 s26, 8, 24")
    a("s_add_u32 s96, s96, s26")
    a("v_mov_b32 v12, s96")
    a(f"ds_write_b32 v15, v12 offset:{4*SY_GO}")
    a.label("A_WAITGO")
    a(f"s_mov_b32 s97, {SPIN_MAX}")
    a.label("A_WG")
    a(f"ds_read_b32 v2, v13 offset:{4*SY_GO}")
    a("s_waitcnt lgkmcnt(0)")
    a("v_readfirstlane_b32 s96, v2")
    a("s_cmp_lg_u32 s96, 0")
    a("s_cbranch_scc1 A_GO")
    a("s_sleep 1")
    a("s_sub_u32 s97, s97, 1")
    a("s_cbranch_scc0 A_WG")
    a.label("A_GO")
    a(f"buffer_load_dwordx4 {vr(QA,4)}, v155, s[16:19], s24 offen {SC}")
    a(f"buffer_load_dwordx2 {vr(QAX,2)}, v156, s[16:19], s24 offen {SC}")
    a("s_and_b32 s26, s96, 7")
    a(f"s_mul_i32 s26, s26, {4*TILE}")
    a("s_add_u32 s20, s14, s26")
    a("s_lshr_b32 s27, s96, 4")
    stamp(a, 5)
    for ln in kv_loads(0): a(ln)
    a(f"buffer_load_dwordx4 {vr(QB,4)}, v155, s[16:19], s25 offen {SC}")
    a(f"buffer_load_dwordx2 {vr(QBX,2)}, v156, s[16:19], s25 offen {SC}")
    for b in (1, 2):
        for ln in kv_loads(b): a(ln)
    a("s_mov_b32 s21, 8")
    a("s_setprio 2")
    a("s_waitcnt vmcnt(8)")
    a("buffer_load_dword v153, v152, s[16:19], 0 offen sc1")
    for Q in (QA, QB):
        for k in range(6):
            a(f"v_cndmask_b32 v{Q+k}, 0, v{Q+k}, s[{60+2*k}:{61+2*k}]")
    qk(a, SA, 0, QA, QAX)
    a("s_nop 15")
    def ex(S, r): a(f"v_exp_f32 v{S+r}, v{S+r}")
    n1,n2,n3,n4 = 2,3,4,3
    def phase(X, Y, OX, OY, vY_hi, vX_lo, kbuf, QY, QYX, pre=(), post=()):
        r = 0
        for _ in range(n1): ex(X,r); r += 1
        a(f"v_smfmac_f32_32x32x32_bf16 {vr(OY,16)}, {vr(vY_hi,4)}, {vr(Y+8,8)}, v6")
        for ln in pre: a(ln)
        for _ in range(n2): ex(X,r); r += 1
        a(f"v_mfma_f32_32x32x8_bf16 {vr(Y,16)}, {vr(kx(kbuf),2)}, {vr(QYX,2)}, 0")
        for _ in range(n3): ex(X,r); r += 1
        a(f"v_mfma_f32_32x32x16_bf16 {vr(Y,16)}, {vr(kb(kbuf),4)}, {vr(QY,4)}, {vr(Y,16)}")
        for ln in post: a(ln)
        for _ in range(n4): ex(X,r); r += 1
        a(f"v_smfmac_f32_32x32x32_bf16 {vr(OX,16)}, {vr(vX_lo,4)}, {vr(X,8)}, v6")
        while r < 16: ex(X,r); r += 1
    a(".p2align 3")
    a.label("A_LOOP")
    for (cnt, pr) in eval(os.environ.get('PRS','((4,1),(1,0))')):
        lab = a.newlabel("A_PR")
        a(f"s_cmp_lg_u32 s21, {cnt}")
        a(f"s_cbranch_scc1 {lab}")
        a(f"s_setprio {pr}")
        a.label(lab)
    for u in range(4):
        pb = (u+3) % 4
        chk = ["s_cmp_lg_u32 s27, 0", "s_cbranch_scc1 A_CHK", "A_CHKD:"] if u == 1 else []
        phase(SA, SB, OA, OB, v1r(pb), v0r(u), u, QB, QBX, post=chk + kv_loads(pb))
        post = ["s_nop 3"]
        if u == 3: post = ["s_sub_u32 s21, s21, 1", "s_nop 1", "s_cmp_lg_u32 s21, 0"]
        phase(SB, SA, OB, OA, v1r(u), v0r(u), (u+1) % 4, QA, QAX, pre=["s_waitcnt vmcnt(8)"], post=post)
    a("s_cbranch_scc1 A_LOOP")
    a("s_nop 1")
    a(f"v_smfmac_f32_32x32x32_bf16 {vr(OB,16)}, {vr(v1r(3),4)}, {vr(SB+8,8)}, v6")
    stamp(a, 6)
    a.label("A_FINAL")
    a("s_mul_i32 s24, s3, 2816")
    a(f"s_add_u32 s24, s24, {L_XCH}")
    a("v_lshl_add_u32 v10, v0, 4, s24")
    a("s_xor_b32 s25, s3, 4")
    a("s_mul_i32 s25, s25, 2816")
    a(f"s_add_u32 s25, s25, {L_XCH}")
    a("v_lshl_add_u32 v11, v0, 4, s25")
    a("v_lshl_add_u32 v12, v0, 2, s24")
    a("v_lshl_add_u32 v13, v0, 2, s25")
    emit_tau(a, 14, 4, 15)
    a("s_barrier")
    a(f"ds_write_b128 v10, {vr(OB,4)}")
    a(f"ds_write_b128 v10, {vr(OB+4,4)} offset:1024")
    a(f"ds_write_b32 v12, v{OB+8} offset:2048")
    a(f"ds_write_b32 v12, v{OB+9} offset:2304")
    a(f"ds_write_b32 v12, v{OB+10} offset:2560")
    a("s_waitcnt vmcnt(0) lgkmcnt(0)")
    a("s_barrier")
    a(f"ds_read_b128 {vr(SA,4)}, v11")
    a(f"ds_read_b128 {vr(SA+4,4)}, v11 offset:1024")
    a(f"ds_read_b32 v{SA+8}, v13 offset:2048")
    a(f"ds_read_b32 v{SA+9}, v13 offset:2304")
    a(f"ds_read_b32 v{SA+10}, v13 offset:2560")
    a("s_mul_i32 s26, s30, 36")
    a("s_add_u32 s27, s26, s4")
    a("s_lshl_b32 s27, s27, 10")
    a(f"s_add_u32 s27, s27, {OF_OFF}")
    a("s_lshl_b32 s28, s30, 5")
    a("s_add_u32 s28, s28, s4")
    a("s_lshl_b32 s28, s28, 7")
    a(f"s_add_u32 s28, s28, {OX_OFF}")
    a("v_lshl_add_u32 v15, v5, 5, v14")
    a("v_lshlrev_b32 v15, 4, v15")
    a("v_lshlrev_b32 v14, 2, v14")
    a("s_waitcnt lgkmcnt(0)")
    for r in range(11):
        a(f"v_add_f32 v{SA+r}, v{SA+r}, v{OA+r}")
    a(f"v_rcp_f32 v{SA+11}, v{SA+10}")
    a(f"v_mov_b32 v{SA+12}, v{SA+10}")
    for r in range(10):
        a(f"v_mul_f32 v{OA+r}, v{SA+r}, v{SA+11}")
    for r in range(5):
        a(f"v_cvt_pk_bf16_f32 v{SB+r}, v{OA+2*r}, v{OA+2*r+1}")
    a(f"buffer_store_dwordx4 {vr(SB,4)}, v15, s[16:19], s27 offen sc1")
    a("s_mov_b32 exec_hi, 0")
    a(f"buffer_store_dword v{SB+4}, v14, s[16:19], s28 offen sc1")
    a("s_mov_b64 exec, -1")
    for r in range(10):
        a(f"v_fma_f32 v{SA+12}, v{SA+r}, 0, v{SA+12}")
    lo, hi = (2.0**-60, 2.0**60) if os.environ.get("FORCEFB","0") != "1" else (2.0**40, 2.0**60)
    a(f"s_mov_b32 s28, {fhex(lo)}")
    a(f"s_mov_b32 s29, {fhex(hi)}")
    a(f"v_cmp_le_f32 vcc, s28, v{SA+12}")
    a(f"v_cmp_ge_f32 s[24:25], s29, v{SA+12}")
    a("s_and_b64 vcc, vcc, s[24:25]")
    a("s_cmp_eq_u64 vcc, -1")
    a("s_cselect_b32 s24, 0, 1")
    a("s_lshl_b32 s25, s3, 2")
    a(f"s_add_u32 s25, s25, {L_XCH+8*2816}")
    a("v_mov_b32 v10, s25")
    a("v_mov_b32 v11, s24")
    a("ds_write_b32 v10, v11")
    a("v_and_b32 v10, 7, v0")
    a("v_lshlrev_b32 v10, 2, v10")
    a(f"v_add_u32 v10, {L_XCH+8*2816}, v10")
    a("s_waitcnt lgkmcnt(0)")
    a("s_barrier")
    a("ds_read_b32 v11, v10")
    a("s_lshl_b32 s24, s5, 2")
    a("s_add_u32 s24, s24, s4")
    a("s_lshl_b32 s24, s24, 7")
    a(f"s_add_u32 s24, s24, {FL_O}")
    a("s_waitcnt lgkmcnt(0)")
    a("v_cmp_ne_u32 vcc, 0, v11")
    a("s_cmp_eq_u64 vcc, 0")
    a("s_cbranch_scc1 A_DONE")
    a("s_cmp_lg_u32 s15, 0")
    a("s_cbranch_scc1 A_DONE")
    a("s_mov_b32 s15, 1")
    a("s_mov_b32 s20, 0")
    a("s_mov_b32 s21, 64")
    a("v_mov_b32 v157, 0xff800000")
    a("v_mov_b32 v158, 0xff800000")
    a("s_waitcnt vmcnt(0)")
    a.label("A_MAXLOOP")
    for ln in kv_loads(0)[:2]: a(ln)
    a(f"s_add_u32 s20, s20, {TILE}")
    a("s_waitcnt vmcnt(0)")
    qk(a, SA, 0, QA, QAX); qk(a, SB, 0, QB, QBX)
    a("s_nop 15")
    for r in range(8):
        a(f"v_max3_f32 v157, v157, v{SA+2*r}, v{SA+2*r+1}")
        a(f"v_max3_f32 v158, v158, v{SB+2*r}, v{SB+2*r+1}")
    a("s_sub_u32 s21, s21, 1")
    a("s_cmp_lg_u32 s21, 0")
    a("s_cbranch_scc1 A_MAXLOOP")
    for m in (157, 158):
        a(f"v_mov_b32 v12, v{m}")
        a("s_nop 1")
        a(f"v_permlane32_swap_b32 v12, v{m}")
        a("s_nop 1")
        a(f"v_max_f32 v{m}, v{m}, v12")
    for r in range(16):
        a(f"v_mov_b32 v{OA+r}, 0")
        a(f"v_mov_b32 v{OB+r}, 0")
    a("s_mov_b32 s20, s14")
    a("s_mov_b32 s21, 32")
    a.label("A_SLOWLOOP")
    for ln in kv_loads(0): a(ln)
    a("s_waitcnt vmcnt(0)")
    qk(a, SA, 0, QA, QAX); qk(a, SB, 0, QB, QBX)
    a("s_nop 15")
    for r in range(16):
        a(f"v_sub_f32 v{SA+r}, v{SA+r}, v157")
        a(f"v_sub_f32 v{SB+r}, v{SB+r}, v158")
    for r in range(32): ex(SA, r)
    a("s_nop 1")
    a(f"v_smfmac_f32_32x32x32_bf16 {vr(OA,16)}, {vr(v0r(0),4)}, {vr(SA,8)}, v6")
    a(f"v_smfmac_f32_32x32x32_bf16 {vr(OB,16)}, {vr(v0r(0),4)}, {vr(SB,8)}, v6")
    a(f"v_smfmac_f32_32x32x32_bf16 {vr(OA,16)}, {vr(v1r(0),4)}, {vr(SA+8,8)}, v6")
    a(f"v_smfmac_f32_32x32x32_bf16 {vr(OB,16)}, {vr(v1r(0),4)}, {vr(SB+8,8)}, v6")
    a("s_sub_u32 s21, s21, 1")
    a("s_cmp_lg_u32 s21, 0")
    a("s_cbranch_scc1 A_SLOWLOOP")
    a("s_branch A_FINAL")
    a.label("A_CHK")
    a("s_mov_b32 s27, 0")
    a("s_waitcnt vmcnt(4)")
    a("v_cmp_ne_u32 vcc, s74, v153")
    a("s_cmp_eq_u64 vcc, 0")
    a("s_cbranch_scc1 A_CHKD")
    flag_wait_multi(a, [152], 153, sleep=1)
    a("s_branch A_CHKD")
    a.label("A_DONE")
    a("s_waitcnt vmcnt(0)")
    publish(a, SY_CO, 8, "s24", 10)

def gen_p3(a):
    MIMIC = int(os.environ.get("MIMIC", "1"))
    a("s_cmp_ge_u32 s2, 192")
    a("s_cbranch_scc1 F_FIN")
    if PROFB: stamp(a, 1)
    a("s_and_b32 s4, s2, 7")
    a("s_lshl_b32 s4, s4, 2")
    a("s_bfe_u32 s5, s2, 0x20003")
    a("s_add_u32 s4, s4, s5")
    a("s_lshr_b32 s5, s2, 5")
    a("s_and_b32 s6, s3, 1")
    a("s_lshr_b32 s7, s3, 1")
    a("s_lshl_b32 s8, s4, 1")
    a("s_add_u32 s8, s8, s6")
    a("v_lshlrev_b32 v6, 4, v0")
    a("s_cmp_eq_u32 s7, 3")
    a("s_cselect_b32 s9, 0, s7")
    a("s_add_u32 s10, s9, 1")
    a("s_cmp_eq_u32 s10, 3")
    a("s_cselect_b32 s10, 0, s10")
    a("s_add_u32 s11, s10, 1")
    a("s_cmp_eq_u32 s11, 3")
    a("s_cselect_b32 s11, 0, s11")
    a("s_lshl_b32 s12, s7, 13")
    a("s_mul_i32 s26, s7, 7168")
    a("s_sub_u32 s26, 32768, s26")
    for j in range(3):
        a(f"s_mul_i32 s13, s{9+j}, 36864")
        a("s_add_u32 s13, s13, s12")
        a(f"v_add_u32 v{8+j}, s13, v6")
    DA = 16; OFr = 64; WF = 100; DY = 148
    NW = 4
    a("s_mul_i32 s13, s6, 6144")
    a("s_lshl_b32 s14, s9, 11")
    a("s_add_u32 s13, s13, s14")
    a(f"s_add_u32 s13, s13, {L_A}")
    a("v_lshlrev_b32 v7, 6, v4")
    a("v_lshl_add_u32 v7, v5, 4, v7")
    a("v_add_u32 v7, s13, v7")
    a(f"ds_read_b128 {vr(DA,4)}, v7")
    a(f"ds_read_b128 {vr(DA+4,4)}, v7 offset:32")
    a("s_lshl_b32 s13, s6, 8")
    a(f"s_add_u32 s13, s13, {L_G}")
    a("v_lshl_add_u32 v7, v4, 3, s13")
    a("ds_read_b64 v[12:13], v7")
    ident_nat(a, DA+8, DA+12, DA+16)
    a("s_waitcnt lgkmcnt(0)")
    a(f"v_mfma_f32_32x32x16_bf16 {vr(DY,16)}, {vr(DA,4)}, {vr(DA+8,4)}, 0")
    a(f"v_mfma_f32_32x32x16_bf16 {vr(DY,16)}, {vr(DA+4,4)}, {vr(DA+12,4)}, {vr(DY,16)}")
    def wreads(i):
        for j in range(3):
            if i == 8: a(f"v_add_u32 v{8+j}, s26, v{8+j}")
            a(f"ds_read_b128 {vr(WF+12*(i%NW)+4*j,4)}, v{8+j} offset:{1024*(i%8)}")
    for i in range(NW): wreads(i)
    a("s_lshr_b32 s13, s4, 2")
    a("s_lshl_b32 s13, s13, 2")
    a("s_add_u32 s13, s13, s7")
    a("s_lshl_b32 s13, s13, 10")
    a(f"s_add_u32 s13, s13, {FL_O}")
    a("v_and_b32 v11, 7, v0")
    a("v_lshl_add_u32 v11, v11, 7, s13")
    a("s_mul_i32 s14, s8, 36864")
    a("s_add_u32 s14, s14, s12")
    a(f"s_add_u32 s14, s14, {OF_OFF}")
    a("s_add_u32 s24, s14, 4096")
    a("s_lshl_b32 s25, s8, 2")
    a("s_add_u32 s25, s25, s7")
    a("s_lshl_b32 s25, s25, 10")
    a(f"s_add_u32 s25, s25, {OX_OFF}")
    a("v_lshlrev_b32 v7, 9, v5")
    a("v_lshl_add_u32 v7, v4, 2, v7")
    a("s_mov_b32 s27, 0xffff0000")
    g = 12; og = 13
    for r in range(16): a(f"v_mul_f32 v{DY+r}, v{DY+r}, v{g}")
    if MIMIC:
        for k in range(8): a(f"v_cvt_pk_bf16_f32 v{DY+2*k}, v{DY+2*k}, v{DY+2*k+1}")
        for k in range(8):
            a(f"v_and_b32 v{DY+2*k+1}, s27, v{DY+2*k}")
            a(f"v_lshlrev_b32 v{DY+2*k}, 16, v{DY+2*k}")
    a("s_mul_i32 s20, s6, 36864")
    for j in range(3):
        a(f"s_sub_u32 s21, s7, s{9+j}")
        a("s_sub_u32 s21, s21, 1")
        a("s_and_b32 s21, s21, 3")
        a("s_lshl_b32 s21, s21, 12")
        a(f"s_mul_i32 s22, s{9+j}, 12288")
        a("s_add_u32 s21, s21, s22")
        a("s_add_u32 s21, s21, s20")
        a(f"v_add_u32 v{164+j}, s21, v6")
    a("s_mul_i32 s21, s9, 12288")
    a("s_add_u32 s21, s21, s20")
    a("v_add_u32 v167, s21, v6")
    srd(a, 20, S_OUT, X_BYTES)
    a("s_lshl_b32 s28, s8, 5")
    a("v_add_u32 v15, s28, v4")
    a("v_mul_u32_u24 v15, 1152, v15")
    a("v_lshl_add_u32 v15, v5, 4, v15")
    a("s_mul_i32 s28, s5, 3")
    a("s_add_u32 s28, s28, s9")
    a("s_lshl_b32 s28, s28, 6")
    flag_wait_multi(a, [11], 14, sleep=1)
    if PROFB: stamp(a, 2)
    for i in range(8):
        a(f"buffer_load_dwordx4 {vr(OFr+4*i,4)}, v6, s[16:19], s{14 if i < 4 else 24} offen offset:{(i%4)*1024} {SC}")
    for k in range(4):
        a(f"buffer_load_dword v{OFr+32+k}, v7, s[16:19], s25 offen offset:{128*k} {SC}")
    for i in range(9):
        nl = 3*min(NW-1, 8-i)
        a(f"s_waitcnt vmcnt({(7-i+4) if i < 8 else 0}) lgkmcnt({nl})")
        for j in (1, 2, 0):
            cin = "0" if i == 0 else vr(DA+16*j,16)
            a(f"v_mfma_f32_32x32x16_bf16 {vr(DA+16*j,16)}, {vr(WF+12*(i%NW)+4*j,4)}, {vr(OFr+4*i,4)}, {cin}")
        if i + NW < 9: wreads(i+NW)
    if PROFB: stamp(a, 3)
    a("s_barrier")
    a("s_nop 8")
    for j in (1, 2):
        for q in range(4):
            a(f"ds_write_b128 v{164+j}, {vr(DA+16*j+4*q,4)} offset:{1024*q}")
    a("s_cmp_lg_u32 s7, 3")
    a("s_cbranch_scc1 P_OWN")
    for q in range(4):
        a(f"ds_write_b128 v164, {vr(DA+4*q,4)} offset:{1024*q}")
    a("s_waitcnt lgkmcnt(0)")
    a("s_barrier")
    a("s_branch F_FIN")
    a.label("P_OWN")
    a("s_waitcnt lgkmcnt(0)")
    a("s_barrier")
    if PROFB: stamp(a, 4)
    PB = OFr; R = 32
    for q in range(12):
        a(f"ds_read_b128 {vr(PB+4*q,4)}, v167 offset:{1024*q}")
    for sl in range(3):
        a(f"s_waitcnt lgkmcnt({8-4*sl})")
        for k in range(8):
            a(f"v_pk_add_f32 {vr(DA+2*k,2)}, {vr(DA+2*k,2)}, {vr(PB+16*sl+2*k,2)}")
    def rnd():
        for k in range(8): a(f"v_cvt_pk_bf16_f32 v{DA+2*k}, v{DA+2*k}, v{DA+2*k+1}")
        for k in range(8):
            a(f"v_and_b32 v{DA+2*k+1}, s27, v{DA+2*k}")
            a(f"v_lshlrev_b32 v{DA+2*k}, 16, v{DA+2*k}")
    if MIMIC == 1:
        rnd()
        for k in range(8): a(f"v_pk_mul_f32 {vr(DA+2*k,2)}, {vr(DA+2*k,2)}, v[12:13] op_sel:[0,1] op_sel_hi:[1,1]")
        rnd()
        for k in range(8): a(f"v_pk_add_f32 {vr(DA+2*k,2)}, {vr(DA+2*k,2)}, {vr(DY+2*k,2)}")
    else:
        for k in range(8): a(f"v_pk_fma_f32 {vr(DA+2*k,2)}, {vr(DA+2*k,2)}, v[12:13], {vr(DY+2*k,2)} op_sel:[0,1,0] op_sel_hi:[1,1,1]")
    for k in range(8):
        a(f"v_cvt_pk_bf16_f32 v{R+k}, v{DA+2*k}, v{DA+2*k+1}")
    a("s_nop 1")
    for k in (0, 4):
        a(f"v_permlane32_swap_b32 v{R+k}, v{R+k+2}")
        a(f"v_permlane32_swap_b32 v{R+k+1}, v{R+k+3}")
    a(f"buffer_store_dwordx4 {vr(R,4)}, v15, s[20:23], s28 offen")
    a(f"buffer_store_dwordx4 {vr(R+4,4)}, v15, s[20:23], s28 offen offset:32")
    if PROF: a("s_waitcnt vmcnt(0)")
    finish(a)

def cmuls(a, lst):
    for (d, x, w) in lst:
        a(f"v_pk_mul_f32 {vr(d,2)}, {vr(x,2)}, {vr(w,2)} op_sel:[0,0] op_sel_hi:[0,1]")
    for (d, x, w) in lst:
        a(f"v_pk_fma_f32 {vr(d,2)}, {vr(x,2)}, {vr(w,2)}, {vr(d,2)} op_sel:[1,1,0] op_sel_hi:[1,0,1] neg_lo:[0,1,0]")

class Rec:
    def __init__(self): self.l = []
    def __call__(self, t): self.l.append(t)

def cmul_ip(a, lst, T):
    for k, (x, w) in enumerate(lst):
        a(f"v_pk_mul_f32 {vr(T+2*k,2)}, {vr(x,2)}, {vr(w,2)} op_sel:[0,0] op_sel_hi:[0,1]")
    for k, (x, w) in enumerate(lst):
        a(f"v_pk_fma_f32 {vr(x,2)}, {vr(x,2)}, {vr(w,2)}, {vr(T+2*k,2)} op_sel:[1,1,0] op_sel_hi:[1,0,1] neg_lo:[0,1,0]")

def dskip_load(a):
    a("s_mul_i32 s12, s31, 6")
    a("v_min_u32 v13, 2, v0")
    a("v_lshl_add_u32 v13, v13, 1, s12")
    a(f"global_load_ushort v13, v13, s[{S_DSKIP}:{S_DSKIP+1}]")
def dskip_read(a):
    a("v_lshlrev_b32 v13, 16, v13")
    a("s_nop 0")
    for c in range(3): a(f"v_readlane_b32 s{12+c}, v13, {c}")

def gen_kgen(a):
    a("s_sub_u32 s8, s3, 8")
    a("s_mul_i32 s26, s31, 3")
    a("s_add_u32 s27, s26, s8")
    a("s_lshl_b32 s28, s27, 8")
    a("v_lshl_add_u32 v14, v0, 2, s28")
    a("s_lshl_b32 s28, s27, 1")
    a("v_mov_b32 v15, s28")
    a(f"global_load_ushort v8, v15, s[{S_LOGDT}:{S_LOGDT+1}]")
    a(f"global_load_dword v9, v14, s[{S_LOGA}:{S_LOGA+1}]")
    a(f"global_load_dword v10, v14, s[{S_AIM}:{S_AIM+1}]")
    a(f"global_load_dword v11, v14, s[{S_CR}:{S_CR+1}]")
    a(f"global_load_dword v12, v14, s[{S_CI}:{S_CI+1}]")
    dskip_load(a)
    hi = struct.unpack("<f", struct.pack("<f", LOG2E))[0]
    a(f"s_mov_b32 s70, {fhex(hi)}")
    a(f"s_mov_b32 s71, {fhex(LOG2E-hi)}")
    a(f"s_mov_b32 s72, {fhex(math.log(2.0))}")
    a("s_mov_b32 s73, 0xffff0000")
    a(f"s_mul_i32 s5, s8, {2*KC_STRIDE}")
    a(f"s_add_u32 s5, s5, {L_KC}")
    A = 16; T = 32; W1 = 40; W2 = 42; G1 = 44; G2 = 46; C0 = 14
    RY = 48; RX0 = 80; RX1 = 112; RX2 = 144
    r = Rec()
    r("s_nop 0")
    r("s_waitcnt vmcnt(0)")
    dskip_read(r)
    r("v_lshlrev_b32 v8, 16, v8")
    exp_precise(r, 8, 8, 6, 7)
    r("v_cvt_pk_bf16_f32 v8, v8, v8")
    r("v_and_b32 v8, s73, v8")
    r(f"v_mov_b32 v{RY}, 0x3f80")
    r(f"v_mov_b32 v{RY+1}, 0x3f80")
    for ps in range(2):
        def ext(dst, src):
            if ps == 0: r(f"v_lshlrev_b32 v{dst}, 16, v{src}")
            else: r(f"v_and_b32 v{dst}, s73, v{src}")
        def pack(base, row, src): r(f"v_cvt_pk_bf16_f32 v{base+2*row+ps}, v{src}, v{src+1}")
        ext(6, 9); ext(7, 10); ext(C0, 11); ext(C0+1, 12)
        exp_precise(r, 6, 6, T, T+1)
        r("v_mul_f32 v7, v7, v8")
        r(f"v_mul_f32 v{C0}, v{C0}, v8")
        r("v_cvt_pk_bf16_f32 v6, v6, v6")
        r(f"v_mul_f32 v{C0+1}, v{C0+1}, v8")
        r("v_mul_f32 v7, 0.15915494, v7")
        r("v_and_b32 v6, s73, v6")
        r(f"v_add_f32 v{C0}, v{C0}, v{C0}")
        r("v_mul_f32 v6, v6, v8")
        r(f"v_add_f32 v{C0+1}, v{C0+1}, v{C0+1}")
        r("v_mul_f32 v6, s70, v6")
        Q = A+2
        anc = ((W1, 1, False), (A, 8, True), (G1, 128, False))
        for k, (dst, p, conj) in enumerate(anc):
            r(f"v_mul_f32 v{Q+4*k+1}, {fhex(float(-p if conj else p))}, v7")
        for k, (dst, p, conj) in enumerate(anc):
            r(f"v_mul_f32 v{Q+4*k}, {fhex(-float(p))}, v6")
        for k in range(3): r(f"v_fract_f32 v{Q+4*k+1}, v{Q+4*k+1}")
        for k in range(3): r(f"v_exp_f32 v{Q+4*k}, v{Q+4*k}")
        for k in range(3):
            r(f"v_cos_f32 v{Q+4*k+2}, v{Q+4*k+1}")
            r(f"v_sin_f32 v{Q+4*k+3}, v{Q+4*k+1}")
        r("s_nop 0")
        for k, (dst, p, conj) in enumerate(anc):
            r(f"v_mul_f32 v{dst}, v{Q+4*k}, v{Q+4*k+2}")
            r(f"v_mul_f32 v{dst+1}, v{Q+4*k}, v{Q+4*k+3}")
        Y = lambda j: A + 2*(j-1)
        cmuls(r, [(Y(2), Y(1), Y(1)), (W2, W1, W1), (G2, G1, G1)])
        cmuls(r, [(Y(4), Y(2), Y(2)), (Y(3), Y(2), Y(1))])
        pack(RY, 1, Y(1)); pack(RY, 2, Y(2))
        cmuls(r, [(Y(8), Y(4), Y(4)), (Y(5), Y(4), Y(1)), (Y(6), Y(4), Y(2)), (Y(7), Y(4), Y(3))])
        for j in range(3, 9): pack(RY, j, Y(j))
        cmul_ip(r, [(Y(j), Y(8)) for j in (1,2,3,4)], T)
        cmul_ip(r, [(Y(j), Y(8)) for j in (5,6,7)], T)
        for j in range(1, 8): pack(RY, 8+j, Y(j))
        Z = lambda i: A + 2*i
        r(f"v_mov_b32 v{Z(0)}, v{C0}")
        r(f"v_mov_b32 v{Z(0)+1}, v{C0+1}")
        cmuls(r, [(Z(1), C0, W1), (Z(2), C0, W2), (T, W2, W2)])
        cmuls(r, [(Z(3), Z(1), W2), (Z(4), C0, T), (Z(5), Z(1), T), (Z(6), Z(2), T)])
        cmuls(r, [(Z(7), Z(3), T)])
        for i in range(8): pack(RX0, i, Z(i))
        cmul_ip(r, [(Z(i), G1) for i in (0,2,4,6)], T)
        cmul_ip(r, [(Z(i), G1) for i in (1,3,5,7)], T)
        for i in range(8): pack(RX0, 8+i, Z(i))
        cmul_ip(r, [(Z(i), G1) for i in (0,2,4,6)], T)
        cmuls(r, [(Z(i+1), Z(i), G1) for i in (0,2,4,6)])
        for ii in range(4): pack(RX1, ii, Z(2*ii))
        for ii in range(4): pack(RX1, 4+ii, Z(2*ii+1))
        for q in range(2):
            cmul_ip(r, [(Z(i), G2) for i in (0,4,1,5)], T)
            for k, i in enumerate((0,4,1,5)): pack(RX1, 8+4*q+k, Z(i))
        for q in range(4):
            cmul_ip(r, [(Z(0), G2), (Z(1), G2)], T)
            pack(RX2, 2*q, Z(0)); pack(RX2, 2*q+1, Z(1))
        cmul_ip(r, [(Z(0), G2)], T)
        pack(RX2, 8, Z(0))
    r("v_lshl_add_u32 v16, v0, 3, s5")
    r("v_and_b32 v14, 15, v0")
    r("v_lshrrev_b32 v15, 4, v0")
    r("v_mul_u32_u24 v13, 528, v14")
    r("v_lshl_add_u32 v13, v15, 4, v13")
    r("v_add_u32 v13, s5, v13")
    r("v_mov_b32 v12, v16")
    nvalu = len(r.l)
    real = a
    a = r
    XF2 = 16; AC = 162
    for (base, rows, dst) in ((RY, 16, RY), (RX0, 16, RX0), (RX1, 16, RX1), (RX2, 9, XF2)):
        for row in range(rows):
            a(f"ds_write_b64 v12, {vr(base+2*row,2)} offset:{row*528}")
        for ks in range(8):
            a(f"ds_read_b128 {vr(dst+4*ks,4)}, v13 offset:{ks*64}")
    AC = RX2
    a("s_waitcnt lgkmcnt(8)")
    for t, xf in enumerate((RX0, RX1, XF2)):
        if t == 2: a("s_waitcnt lgkmcnt(0)")
        for ks in range(8):
            cin = "0" if ks == 0 else vr(AC+4*t,4)
            a(f"v_mfma_f32_16x16x32_bf16 {vr(AC+4*t,4)}, {vr(xf+4*ks,4)}, {vr(RY+4*ks,4)}, {cin}")
    a("v_lshl_add_u32 v16, v0, 2, s5")
    a("v_mov_b32 v18, v14")
    a("v_mov_b32 v19, v15")
    a("v_lshrrev_b32 v20, 1, v19")
    a("v_lshlrev_b32 v20, 8, v20")
    a("v_and_b32 v21, 1, v19")
    a("v_lshl_add_u32 v20, v21, 3, v20")
    a("v_lshl_add_u32 v20, v18, 4, v20")
    a("v_add_u32 v20, s5, v20")
    a("v_cmp_gt_u32 vcc, 2, v19")
    a("v_lshlrev_b32 v21, 2, v18")
    a("v_lshlrev_b32 v22, 3, v18")
    a("v_cndmask_b32 v21, v21, v22, vcc")
    a("v_lshl_add_u32 v21, v19, 7, v21")
    a("v_add_u32 v21, s5, v21")
    a("v_mov_b32 v22, 64")
    a("v_mov_b32 v23, 4")
    a("v_cndmask_b32 v22, v22, v23, vcc")
    a("v_add_u32 v22, v22, v21")
    a("v_lshlrev_b32 v23, 7, v19")
    a("v_lshl_add_u32 v23, v18, 1, v23")
    a("v_add_u32 v23, s5, v23")
    for i in range(6):
        a(f"v_cvt_pk_bf16_f32 v{24+i}, v{AC+2*i}, v{AC+2*i+1}")
    a("ds_write_b64 v20, v[24:25]")
    a("ds_write_b32 v21, v26 offset:512")
    a("ds_write_b32 v22, v27 offset:512")
    a("ds_write_b16 v23, v28 offset:1024")
    a("ds_write_b16_d16_hi v23, v28 offset:1056")
    a("ds_write_b16 v23, v29 offset:1088")
    a("ds_write_b16_d16_hi v23, v29 offset:1120")
    a("v_lshl_add_u32 v20, v0, 1, s5")
    a("ds_read_u16 v30, v20 offset:1024")
    a("ds_read_u16 v31, v20 offset:1152")
    a("ds_read_u16 v34, v20 offset:1026")
    a("ds_read_u16 v35, v20 offset:1154")
    a("v_lshl_add_u32 v20, v0, 2, s5")
    a("ds_read2_b32 v[32:33], v20 offset0:192 offset1:193")
    a("v_lshlrev_b32 v20, 4, v4")
    a("v_lshlrev_b32 v21, 3, v4")
    a("v_add_u32 v21, 508, v21")
    a("v_cmp_eq_u32 vcc, 1, v5")
    a("s_mov_b32 s60, 0x01000100")
    a("s_mov_b32 s61, 0x03020302")
    a("v_cndmask_b32 v20, v20, v21, vcc")
    a("v_add_u32 v20, s5, v20")
    a("ds_read2_b32 v[36:37], v20 offset0:0 offset1:1")
    a("ds_read2_b32 v[38:39], v20 offset0:2 offset1:3")
    a("s_mov_b32 s62, 0x01000302")
    def sel(dst, f, t):
        a(f"v_mov_b32 v{dst}, {f}")
        a(f"v_mov_b32 v{dst+8}, {t}")
        a(f"v_cndmask_b32 v{dst}, v{dst}, v{dst+8}, vcc")
    sel(40, "0x05040706", "0x03020504")
    sel(41, "0x01000302", "0x01000100")
    sel(42, "0x01000302", "0x03020504")
    sel(43, "0x01000302", "0x05040504")
    a("v_and_b32 v20, 1, v0")
    a("v_cmp_eq_u32 vcc, 1, v20")
    a("v_lshlrev_b32 v22, 4, v0")
    a("v_sub_u32 v21, 1008, v22")
    sel(44, "0x01000302", "0x03020302")
    a("v_add_u32 v21, s5, v21")
    a("v_add_u32 v22, s5, v22")
    a("v_mov_b32 v23, 0")
    a("s_waitcnt lgkmcnt(0)")
    a("v_lshl_or_b32 v30, v34, 16, v30")
    a("v_lshl_or_b32 v31, v35, 16, v31")
    for (src, dst) in ((30, 56), (31, 60)):
        a(f"v_perm_b32 v{dst}, v{src}, v{src}, s61")
        a(f"v_perm_b32 v{dst+1}, v{src}, v{src}, v44")
        a(f"v_perm_b32 v{dst+2}, v{src}, v{src}, s60")
        a(f"v_perm_b32 v{dst+3}, v{src}, v{src}, s60")
    a("v_perm_b32 v64, v33, v33, s60")
    a("v_perm_b32 v65, v32, v32, s61")
    a("v_perm_b32 v66, v32, v32, s62")
    a("v_perm_b32 v67, v32, v32, s60")
    a("v_perm_b32 v68, v39, v38, v40")
    a("v_perm_b32 v69, v38, v38, v41")
    a("v_perm_b32 v70, v38, v37, v42")
    a("v_perm_b32 v71, v37, v36, v43")
    a("ds_write_b128 v21, v[56:59] offset:1024")
    a("ds_write_b128 v21, v[60:63]")
    a("ds_write_b128 v21, v[64:67] offset:2048")
    a("ds_write_b128 v21, v[68:71] offset:3072")
    a("s_mov_b64 exec, 0xffff")
    a("ds_write_b32 v16, v23 offset:4096")
    a(f"ds_write_b32 v16, v23 offset:{KC_STRIDE+4096}")
    a("s_mov_b64 exec, -1")
    for i in range(4):
        a(f"ds_read_b128 {vr(72+8*i,4)}, v22 offset:{1024*i}")
        a(f"ds_read_b32 v{76+8*i}, v22 offset:{1024*i+16}")
    for i in range(4):
        a(f"s_waitcnt lgkmcnt({6-2*i+i})")
        for k in range(4):
            a(f"v_alignbit_b32 v{72+8*i+k}, v{73+8*i+k}, v{72+8*i+k}, 16")
        a(f"ds_write_b128 v22, {vr(72+8*i,4)} offset:{KC_STRIDE+1024*i}")
    a = real
    K0 = int(os.environ.get("K0", "-65")); KP = int(os.environ.get("KP", "66")); KL = int(os.environ.get("KL", "9"))
    pos = []
    for k in range(9):
        p = max(1, K0 + KP*k)
        if k < KL: p = min(p, nvalu)
        pos.append(min(p, len(r.l)))
    print("kgen instrs", nvalu, len(r.l), pos)
    cur = 0
    for k in range(9):
        while "exec" in r.l[pos[k]-1] and pos[k] < len(r.l): pos[k] += 1
        for ln in r.l[cur:pos[k]]: a(ln)
        cur = max(cur, pos[k])
        a("s_barrier")
    stamp(a, 2)
    for ln in r.l[cur:]: a(ln)
    a("s_waitcnt lgkmcnt(0)")
    lds_add(a, SY_KR)
    stamp(a, 3)

def gen_conv(a):
    a.label("F_CONV")
    a("s_setprio 3")
    a("s_sub_u32 s8, s3, 8")
    a("v_and_b32 v10, 15, v0")
    a("v_lshrrev_b32 v11, 4, v0")
    a("v_sub_u32 v6, 15, v10")
    a("v_lshl_add_u32 v6, v11, 3, v6")
    a("v_and_b32 v7, 1, v6")
    a(f"v_mul_u32_u24 v7, {KC_STRIDE-2}, v7")
    a("v_lshl_add_u32 v6, v6, 1, v7")
    a("s_lshl_b32 s5, s8, 7")
    a(f"s_add_u32 s5, s5, {L_KC}")
    a("v_add_u32 v6, s5, v6")
    a("v_add_u32 v7, 1024, v6")
    a("v_add_u32 v8, 2048, v6")
    a("v_add_u32 v9, 3072, v6")
    a("v_lshl_add_u32 v4, v10, 1, v11")
    a("s_lshl_b32 s5, s8, 3")
    a("s_add_u32 s5, s5, 2")
    a("v_add_u32 v4, s5, v4")
    a(f"s_mul_i32 s5, s8, 24576")
    a(f"s_add_u32 s5, s5, {L_P[1]-24576}")
    a("s_cmp_eq_u32 s8, 0")
    a("s_cselect_b32 s5, 0, s5")
    a("v_lshlrev_b32 v5, 6, v10")
    a("v_lshl_add_u32 v5, v11, 4, v5")
    a("v_add_u32 v5, s5, v5")
    a("v_bfe_u32 v10, v4, 2, 2")
    a("v_lshlrev_b32 v10, 4, v10")
    a("v_lshl_add_u32 v10, v4, 6, v10")
    a(f"v_add_u32 v10, {L_U}, v10")
    a("v_add_u32 v4, 4, v4")
    a("v_bfe_u32 v11, v4, 2, 2")
    a("v_lshlrev_b32 v11, 4, v11")
    a("v_lshl_add_u32 v11, v4, 6, v11")
    a(f"v_add_u32 v11, {L_U}, v11")
    AC = 12
    def F(b, mu): return (44 if b == 0 else 104) + 4*mu
    def X(b, tau):
        if tau == 7: return 164
        return (76 if b == 0 else 136) + 4*tau
    def loads(b):
        out = []
        for k in range(8):
            mp = 7-k
            base = 6 + (mp >> 1); o = (mp & 1)*128 + 16*b
            out.append(f"ds_read2_b32 {vr(F(b,k),2)}, v{base} offset0:{o} offset1:{o+1}")
            out.append(f"ds_read2_b32 {vr(F(b,k)+2,2)}, v{base} offset0:{o+2} offset1:{o+3}")
            out.append(f"ds_read_b128 {vr(X(b,k),4)}, v{10+b} offset:{2048*k}")
        return out
    def unit(b, inter):
        order = [(0, 7)] + [(mu, t) for mu in range(8) for t in range(mu, 8) if (mu, t) != (0, 7)]
        inter = list(inter)
        for k, (mu, t) in enumerate(order):
            cin = "0" if (b == 0 and mu == 0) else vr(AC+4*t,4)
            a(f"v_mfma_f32_16x16x32_bf16 {vr(AC+4*t,4)}, {vr(F(b,mu),4)}, {vr(X(b,t-mu),4)}, {cin}")
            if k >= 1 and inter: a(inter.pop(0))
        assert not inter
    lds_wait(a, SY_KR, 3)
    lds_wait(a, SY_UREADY, 1)
    lds_wait(a, SY_GDONE, 4)
    stamp(a, 4)
    for ln in loads(0): a(ln)
    a("s_mov_b32 s10, 16")
    a("s_mov_b32 s11, 3")
    a.label("C_LOOP")
    a("s_waitcnt lgkmcnt(0)")
    unit(0, loads(1))
    a("s_waitcnt lgkmcnt(0)")
    adv = [f"v_add_u32 v{6+k}, {2*KC_STRIDE}, v{6+k}" for k in range(4)] + ["v_xor_b32 v10, s10, v10", "v_xor_b32 v11, s10, v11"]
    unit(1, adv + loads(0))
    a("s_mov_b32 s10, 48")
    a("s_sub_u32 s11, s11, 1")
    a("s_nop 3")
    for t in range(8):
        a(f"ds_write_b128 v5, {vr(AC+4*t,4)} offset:{1024*t}")
    a("v_add_u32 v5, 8192, v5")
    a("s_cmp_lg_u32 s11, 0")
    a("s_cbranch_scc1 C_LOOP")
    a("s_waitcnt lgkmcnt(0)")
    lds_add(a, SY_PD)
    stamp(a, 5)
    a("s_lshl_b32 s5, s8, 11")
    a("v_lshl_add_u32 v6, v0, 5, s5")
    a(f"v_add_u32 v7, {L_P[1]}, v6")
    a(f"v_add_u32 v8, {L_P[3]}, v6")
    a("v_bfe_u32 v9, v0, 2, 2")
    a("v_lshlrev_b32 v9, 4, v9")
    a("v_lshl_add_u32 v9, v0, 6, v9")
    a("s_lshl_b32 s5, s8, 12")
    a(f"s_add_u32 s5, s5, {L_U+2048}")
    a("v_add_u32 v9, s5, v9")
    a("v_xor_b32 v10, 16, v9")
    a("v_xor_b32 v11, 32, v9")
    a("v_lshrrev_b32 v4, 2, v0")
    a("v_mul_u32_u24 v4, 36864, v4")
    a("v_and_b32 v5, 3, v0")
    a("v_lshl_add_u32 v4, v5, 4, v4")
    a(f"s_mul_i32 s5, s8, {16*36864}")
    a("s_mul_i32 s11, s31, 192")
    a("s_add_u32 s11, s11, s5")
    a(f"s_add_u32 s11, s11, {AF_OFF}")
    a("s_mov_b32 s73, 0xffff0000")
    Ub = 12; Pb = 24; Tb = 120
    for c in range(3):
        a(f"ds_read_b128 {vr(Ub+4*c,4)}, v{9+c}")
    get_nonce(a)
    for c in range(3):
        for k in range(4):
            a(f"v_lshlrev_b32 v{Tb+8*c+2*k}, 16, v{Ub+4*c+k}")
            a(f"v_and_b32 v{Tb+8*c+2*k+1}, s73, v{Ub+4*c+k}")
        for k in range(8):
            a(f"v_mul_f32 v{Tb+8*c+k}, s{12+c}, v{Tb+8*c+k}")
    for k in range(12):
        a(f"v_cvt_pk_bf16_f32 v{Ub+k}, v{Tb+2*k}, v{Tb+2*k+1}")
    for k in range(12):
        a(f"v_lshlrev_b32 v{Tb+2*k}, 16, v{Ub+k}")
        a(f"v_and_b32 v{Tb+2*k+1}, s73, v{Ub+k}")
    lds_wait(a, SY_PD, 4)
    for c in range(3):
        for w in range(4):
            reg, off = {0: (6, 0), 1: (7, 0), 2: (7, 24576), 3: (8, 0)}[w]
            for hh in range(2):
                a(f"ds_read_b128 {vr(Pb+32*c+8*w+4*hh,4)}, v{reg} offset:{off+8192*c+16*hh}")
    for c in range(3):
        P = Pb + 32*c
        a(f"s_waitcnt lgkmcnt({min(15, 16-8*c)})" if c < 2 else "s_waitcnt lgkmcnt(0)")
        for k in range(4):
            a(f"v_pk_add_f32 {vr(P+2*k,2)}, {vr(P+2*k,2)}, {vr(P+8+2*k,2)}")
            a(f"v_pk_add_f32 {vr(P+16+2*k,2)}, {vr(P+16+2*k,2)}, {vr(P+24+2*k,2)}")
        for k in range(4):
            a(f"v_pk_add_f32 {vr(P+2*k,2)}, {vr(P+2*k,2)}, {vr(P+16+2*k,2)}")
        for k in range(4):
            a(f"v_cvt_pk_bf16_f32 v{P+8+k}, v{P+2*k}, v{P+2*k+1}")
        for k in range(4):
            a(f"v_lshlrev_b32 v{P+2*k}, 16, v{P+8+k}")
            a(f"v_and_b32 v{P+2*k+1}, s73, v{P+8+k}")
        for k in range(4):
            a(f"v_pk_add_f32 {vr(P+2*k,2)}, {vr(P+2*k,2)}, {vr(Tb+8*c+2*k,2)}")
        for k in range(4):
            a(f"v_cvt_pk_bf16_f32 v{P+8+k}, v{P+2*k}, v{P+2*k+1}")
        a(f"buffer_store_dwordx4 {vr(P+8,4)}, v4, s[16:19], s11 offen offset:{64*c} sc1")
    a("s_lshl_b32 s11, s31, 7")
    a(f"s_add_u32 s11, s11, {FL_A}")
    a("s_waitcnt vmcnt(0)")
    publish(a, SY_CA, 4, "s11", 10)
    a("s_cmp_eq_u32 s3, 11")
    a("s_cbranch_scc1 M_GATE")
    finish(a)

def fetch_nonce(a, tag, first_issued=False):
    ok = tag + "_NOK"
    for k in range(4):
        if not (first_issued and k == 0):
            a(f"s_load_dword s74, s[{S_DBG}:{S_DBG+1}], {64*k}")
        a("s_waitcnt lgkmcnt(0)")
        a("s_cmp_lg_u32 s74, 0")
        a(f"s_cbranch_scc1 {ok}")
        a("s_sleep 8")
    a(f"s_mov_b32 s97, {SPIN_MAX>>4}")
    a("v_mov_b32 v20, 0")
    a.label(tag + "_NL")
    a(f"global_load_dword v21, v20, s[{S_DBG}:{S_DBG+1}] sc1")
    a("s_waitcnt vmcnt(0)")
    a("v_readfirstlane_b32 s74, v21")
    a("s_cmp_lg_u32 s74, 0")
    a(f"s_cbranch_scc1 {ok}")
    a("s_sub_u32 s97, s97, 1")
    a(f"s_cbranch_scc0 {tag}_NL")
    a("s_mov_b32 s74, 1")
    a.label(ok)
    a("v_mov_b32 v21, s74")

def gen_free(a):
    a("s_sub_u32 s30, s2, 224")
    a("s_cmp_ge_u32 s3, 8")
    a("s_cbranch_scc1 R_AUX")
    a("s_and_b32 s4, s2, 3")
    a("s_lshl_b32 s4, s4, 3")
    a("s_lshr_b32 s5, s30, 2")
    a("s_add_u32 s4, s4, s5")
    a("s_lshl_b32 s4, s4, 3")
    a("s_add_u32 s4, s4, s3")
    a(f"s_mov_b32 s10, {X_BYTES}")
    a("s_mov_b32 s11, 0x20000")
    a("s_mul_i32 s5, s4, 9216")
    a("s_mul_i32 s20, s3, 9216")
    a("v_lshlrev_b32 v6, 4, v0")
    for g in range(3):
        a(f"s_add_u32 m0, s20, {4096*g}")
        a(f"s_add_u32 s6, s5, {4096*g}")
        for i in range(4 if g < 2 else 1):
            a(f"buffer_load_dwordx4 v6, s[8:11], s6 offen offset:{1024*i} lds")
    GX = 72; GW = 108; UX = 32
    a("v_and_b32 v8, 7, v0")
    a("v_lshlrev_b32 v8, 4, v8")
    a("s_barrier")
    a("v_bfe_u32 v9, v0, 2, 2")
    a("v_mul_u32_u24 v9, 1152, v9")
    a("v_lshrrev_b32 v10, 4, v0")
    a("v_lshl_add_u32 v9, v10, 5, v9")
    a("v_and_b32 v10, 3, v0")
    a("v_lshl_add_u32 v9, v10, 3, v9")
    a("v_add_u32 v9, s20, v9")
    a("v_lshrrev_b32 v11, 3, v0")
    a("v_mul_u32_u24 v10, 1152, v11")
    a("v_add3_u32 v10, v10, v8, s20")
    a(f"s_add_u32 s5, s5, {UT_OFF}")
    a("s_waitcnt vmcnt(0)")
    stamp(a, 1)
    for i in range(9):
        a(f"ds_read_b64_tr_b16 {vr(UX+4*i,2)}, v9 offset:{128*i}")
        a(f"ds_read_b64_tr_b16 {vr(UX+4*i+2,2)}, v9 offset:{128*i+4608}")
        if i == 5: a("s_waitcnt lgkmcnt(6)")
    a("s_waitcnt lgkmcnt(0)")
    for i in range(9):
        a(f"buffer_store_dwordx4 {vr(UX+4*i,4)}, v6, s[16:19], s5 offen offset:{1024*(i%4)} sc1")
        if i % 4 == 3: a("s_add_u32 s5, s5, 4096")
    for i in range(9):
        a(f"ds_read_b128 {vr(GX+4*i,4)}, v10 offset:{128*i}")
    get_nonce(a)
    a("s_lshl_b32 s7, s30, 7")
    a(f"s_add_u32 s7, s7, {FL_UT}")
    a("s_waitcnt vmcnt(0)")
    publish(a, SY_KR, 8, "s7", 12)
    stamp(a, 2)
    for i in range(9):
        a(f"global_load_dwordx4 {vr(GW+4*i,4)}, v8, s[{S_GW}:{S_GW+1}] offset:{128*i}")
    a("s_waitcnt vmcnt(0)")
    a("s_mov_b32 s73, 0xffff0000")
    for k in range(8): a(f"v_mov_b32 v{16+k}, 0")
    a("s_waitcnt lgkmcnt(0)")
    for i in range(9):
        for k in range(4):
            a(f"v_lshlrev_b32 v{32+2*k}, 16, v{GX+4*i+k}")
            a(f"v_and_b32 v{33+2*k}, s73, v{GX+4*i+k}")
            a(f"v_lshlrev_b32 v{40+2*k}, 16, v{GW+4*i+k}")
            a(f"v_and_b32 v{41+2*k}, s73, v{GW+4*i+k}")
        for k in range(4):
            a(f"v_pk_mul_f32 {vr(32+2*k,2)}, {vr(32+2*k,2)}, {vr(40+2*k,2)}")
        for k in range(4):
            a(f"v_cvt_pk_bf16_f32 v{40+k}, v{32+2*k}, v{33+2*k}")
        for k in range(4):
            a(f"v_lshlrev_b32 v{32+2*k}, 16, v{40+k}")
            a(f"v_and_b32 v{33+2*k}, s73, v{40+k}")
        for k in range(4):
            a(f"v_pk_add_f32 {vr(16+2*k,2)}, {vr(16+2*k,2)}, {vr(32+2*k,2)}")
    a("v_pk_add_f32 v[16:17], v[16:17], v[18:19]")
    a("v_pk_add_f32 v[20:21], v[20:21], v[22:23]")
    a("v_pk_add_f32 v[16:17], v[16:17], v[20:21]")
    a("v_add_f32 v24, v16, v17")
    a("s_nop 1")
    a("v_add_f32_dpp v24, v24, v24 quad_perm:[1,0,3,2] row_mask:0xf bank_mask:0xf")
    a("s_nop 1")
    a("v_add_f32_dpp v24, v24, v24 quad_perm:[2,3,0,1] row_mask:0xf bank_mask:0xf")
    a("s_nop 1")
    a("v_add_f32_dpp v24, v24, v24 row_half_mirror row_mask:0xf bank_mask:0xf")
    a("v_cvt_pk_bf16_f32 v24, v24, v24")
    a("v_and_b32 v24, s73, v24")
    a(f"v_mul_f32 v24, {fhex(-LOG2E)}, v24")
    a("v_exp_f32 v24, v24")
    a("s_nop 0")
    a("v_add_f32 v24, 1.0, v24")
    a("v_rcp_f32 v24, v24")
    a("s_nop 0")
    a("v_cvt_pk_bf16_f32 v24, v24, v24")
    a("v_and_b32 v24, s73, v24")
    a("v_sub_f32 v25, 1.0, v24")
    a("v_cvt_pk_bf16_f32 v25, v25, v25")
    a("v_and_b32 v25, s73, v25")
    a("v_lshlrev_b32 v11, 3, v11")
    a("s_lshl_b32 s7, s4, 6")
    a(f"s_add_u32 s7, s7, {G_OFF}")
    a("s_mov_b32 exec_lo, 0x01010101")
    a("s_mov_b32 exec_hi, 0x01010101")
    a("buffer_store_dwordx2 v[24:25], v11, s[16:19], s7 offen sc1")
    a("s_mov_b64 exec, -1")
    a("s_branch R_WO")
    a.label("R_AUX")
    a("s_cmp_lg_u32 s3, 11")
    a("s_cbranch_scc1 R_NB")
    a("s_cmp_lg_u32 s30, 0")
    a("s_cbranch_scc1 R_NB")
    a("s_memrealtime s[60:61]")
    a("s_waitcnt lgkmcnt(0)")
    a("s_or_b32 s60, s60, 1")
    a("v_mov_b32 v14, s60")
    a("v_lshlrev_b32 v15, 6, v0")
    a("s_mov_b64 exec, 15")
    a(f"global_store_dword v15, v14, s[{S_DBG}:{S_DBG+1}] sc1")
    a("s_mov_b64 exec, -1")
    a.label("R_NB")
    a("s_barrier")
    a("s_cmp_lg_u32 s3, 11")
    a("s_cbranch_scc1 R_W1")
    a("s_sleep 24")
    fetch_nonce(a, "R")
    stamp(a, 1)
    a(f"ds_write_b32 v3, v21 offset:{4*SY_NONCE}")
    a.label("R_W1")
    lds_wait(a, SY_KR, 8, sleep=4)
    a.label("R_WO")
    a("s_add_u32 s4, s3, 4")
    a("s_sub_u32 s5, s4, 12")
    a("s_cmp_ge_u32 s4, 12")
    a("s_cselect_b32 s4, s5, s4")
    a("s_lshl_b32 s4, s4, 5")
    a("s_add_u32 s4, s4, s30")
    a("s_cmp_ge_u32 s4, 324")
    a("s_cbranch_scc1 R_PUB")
    a("s_mul_i32 s5, s4, 3641")
    a("s_lshr_b32 s5, s5, 16")
    a("s_mul_i32 s6, s5, 18")
    a("s_sub_u32 s6, s4, s6")
    a("v_lshrrev_b32 v13, 4, v4")
    a("v_lshl_add_u32 v13, v13, 1, v4")
    emit_tau(a, 14, 4, 15)
    a("v_lshrrev_b32 v15, 1, v14")
    a("v_mul_u32_u24 v24, 18, v15")
    a("v_and_b32 v14, 1, v14")
    a("v_add3_u32 v14, v24, v14, 16")
    a("s_mul_i32 s7, s6, 36")
    a("s_sub_u32 s8, s6, 16")
    a("s_mul_i32 s8, s8, 288")
    a("s_cmp_ge_u32 s6, 16")
    a("s_cselect_b32 s7, s8, s7")
    a("s_cselect_b64 vcc, -1, 0")
    a("v_cndmask_b32 v24, v13, v14, vcc")
    a("v_add_u32 v24, s7, v24")
    a("v_mul_u32_u24 v24, 1152, v24")
    a("v_lshl_add_u32 v24, v5, 4, v24")
    a("s_lshl_b32 s8, s5, 6")
    a("v_add_u32 v24, s8, v24")
    a(f"global_load_dwordx4 v[28:31], v24, s[{S_WO}:{S_WO+1}]")
    a(f"global_load_dwordx4 v[32:35], v24, s[{S_WO}:{S_WO+1}] offset:32")
    ident_nat(a, 16, 20, 10)
    a("v_lshlrev_b32 v26, 4, v0")
    a("s_lshl_b32 s8, s4, 11")
    a(f"s_add_u32 s8, s8, {WOF_OFF}")
    a("s_waitcnt vmcnt(0)")
    a("v_mfma_f32_32x32x16_bf16 v[40:55], v[28:31], v[16:19], 0")
    a("v_mfma_f32_32x32x16_bf16 v[40:55], v[32:35], v[20:23], v[40:55]")
    a("s_nop 15")
    for r in range(8):
        a(f"v_cvt_pk_bf16_f32 v{56+r}, v{40+2*r}, v{41+2*r}")
    a("buffer_store_dwordx4 v[56:59], v26, s[16:19], s8 offen sc1")
    a("buffer_store_dwordx4 v[60:63], v26, s[16:19], s8 offen offset:1024 sc1")
    a.label("R_PUB")
    get_nonce(a)
    a("s_lshl_b32 s9, s30, 7")
    a(f"s_add_u32 s9, s9, {FL_WO}")
    a("s_waitcnt vmcnt(0)")
    publish(a, SY_CA, 12, "s9", 10)
    stamp(a, 3)
    a("s_cmp_ge_u32 s3, 8")
    a("s_cbranch_scc1 F_FIN")
    a(f"s_sleep {os.environ.get('FS','32')}")
    lds_add(a, SY_CQ)
    a("s_branch F_ATTN")

def gen_misc(a):
    a("s_min_u32 s31, s31, 191")
    a("v_lshl_add_u32 v16, v4, 7, 0")
    a(f"v_add_u32 v16, {FL_UT}, v16")
    a("v_lshrrev_b32 v6, 4, v0")
    a("v_and_b32 v10, 3, v0")
    a("v_xor_b32 v9, v6, v10")
    a("v_min_u32 v9, 2, v9")
    a("v_lshrrev_b32 v10, 2, v0")
    a("v_mul_u32_u24 v10, 9216, v10")
    a("v_lshl_add_u32 v9, v9, 4, v10")
    a("s_mul_i32 s5, s31, 48")
    a(f"s_add_u32 s5, s5, {UT_OFF}")
    a("v_mov_b32 v8, 0x7ff00000")
    for _ in range(3): a("s_barrier")
    a(f"s_load_dword s74, s[{S_DBG}:{S_DBG+1}], 0")
    for _ in range(2): a("s_barrier")
    fetch_nonce(a, "M", True)
    stamp(a, 1)
    a("s_barrier")
    a("s_barrier")
    dskip_load(a)
    a("buffer_load_dword v12, v16, s[16:19], 0 offen sc1")
    a("s_barrier")
    a("s_mov_b32 s26, 0")
    a("s_waitcnt vmcnt(0)")
    a("v_cmp_ne_u32 vcc, s74, v12")
    a("s_cmp_ge_u32 s2, 192")
    a("s_cbranch_scc1 M_LASTB")
    a("s_cmp_eq_u64 vcc, 0")
    a(f"s_cbranch_scc{1 if os.environ.get('GE','1') == '1' else 1} M_GATHER" if os.environ.get('GE','1') == '1' else "s_nop 0")
    a("s_mov_b32 s26, 1")
    a("s_barrier")
    a(f"ds_write_b32 v3, v21 offset:{4*SY_NONCE}")
    flag_wait_multi(a, [16], 12, sleep=2)
    a.label("M_GATHER")
    stamp(a, 2)
    a(f"s_mov_b32 m0, {L_U}")
    a("s_nop 0")
    a("buffer_load_dwordx4 v8, s[16:19], 0 offen lds")
    a("buffer_load_dwordx4 v8, s[16:19], 0 offen offset:1024 lds")
    for j in range(16):
        a(f"s_mov_b32 m0, {L_U+2048+1024*j}")
        a("s_nop 0")
        a(f"buffer_load_dwordx4 v9, s[16:19], s5 offen {SC} lds")
        a(f"s_add_u32 s5, s5, {16*9216}")
    a("s_cmp_lg_u32 s26, 0")
    a("s_cbranch_scc1 M_NOB")
    a.label("M_LASTB")
    a("s_barrier")
    a(f"ds_write_b32 v3, v21 offset:{4*SY_NONCE}")
    a("s_cmp_ge_u32 s2, 192")
    a("s_cbranch_scc1 F_FIN")
    a.label("M_NOB")
    dskip_read(a)
    a("s_waitcnt vmcnt(0)")
    lds_add(a, SY_UREADY)
    stamp(a, 3)
    a("s_branch F_CONV")
    a.label("M_GATE")
    a("v_lshlrev_b32 v6, 4, v0")
    a("v_and_b32 v9, 31, v0")
    a("v_lshlrev_b32 v9, 7, v9")
    a(f"v_add_u32 v9, {FL_WO}, v9")
    lds_wait(a, SY_CA, 4, sleep=8)
    flag_wait_multi(a, [9], 12, sleep=32)
    a("s_lshr_b32 s7, s2, 5")
    a("s_mul_i32 s5, s7, 110592")
    a(f"s_add_u32 s5, s5, {WOF_OFF}")
    a("s_mov_b32 s6, 0")
    a.label("M_WL")
    a("s_mov_b32 m0, s6")
    a("s_add_u32 s6, s6, 4096")
    for i in range(4):
        a(f"buffer_load_dwordx4 v6, s[16:19], s5 offen offset:{1024*i} {SC} lds")
    a("s_add_u32 s5, s5, 4096")
    a("s_waitcnt vmcnt(4)")
    a("s_cmp_lt_u32 s6, 110592")
    a("s_cbranch_scc1 M_WL")
    a("v_and_b32 v9, 31, v0")
    a("s_lshl_b32 s5, s7, 12")
    a(f"s_add_u32 s5, s5, {FL_A}")
    a("v_lshl_add_u32 v9, v9, 7, s5")
    flag_wait_multi(a, [9], 12, sleep=32)
    a("s_and_b32 s4, s2, 7")
    a("s_lshl_b32 s4, s4, 2")
    a("s_bfe_u32 s5, s2, 0x20003")
    a("s_add_u32 s4, s4, s5")
    a(f"s_mul_i32 s5, s4, {2*36864}")
    a("s_mul_i32 s6, s7, 6144")
    a("s_add_u32 s5, s5, s6")
    a(f"s_add_u32 s5, s5, {AF_OFF}")
    for tt in range(2):
        for hf in range(2):
            a(f"s_mov_b32 m0, {L_A + 6144*tt + 3072*hf}")
            a(f"s_add_u32 s6, s5, {36864*tt + 3072*hf}")
            for i in range(3):
                a(f"buffer_load_dwordx4 v6, s[16:19], s6 offen offset:{1024*i} {SC} lds")
    a(f"s_mov_b32 m0, {L_G}")
    a("s_lshl_b32 s5, s4, 9")
    a(f"s_add_u32 s5, s5, {G_OFF}")
    a("s_mov_b32 exec_hi, 0")
    a(f"buffer_load_dwordx4 v6, s[16:19], s5 offen {SC} lds")
    a("s_mov_b64 exec, -1")
    a("s_waitcnt vmcnt(0)")
```

```python
import math
TILE=110592
VOFF=73728
QKV_OFF=0
QKV_SZ=64*TILE
OF_OFF=QKV_OFF+QKV_SZ
OF_SZ=64*36*1024
WOF_OFF=OF_OFF+OF_SZ
WOF_SZ=18*36*1024
UT_OFF=WOF_OFF+WOF_SZ
UT_SZ=256*9216
AF_OFF=UT_OFF+UT_SZ
AF_SZ=64*576*64
G_OFF=AF_OFF+AF_SZ
G_SZ=2048*8
FL_OFF=G_OFF+G_SZ
FL_UT=FL_OFF
FL_QKV=FL_UT+32*128
FL_WO=FL_QKV+224*128
FL_A=FL_WO+32*128
FL_O=FL_A+192*128
OX_OFF=FL_O+256*128
OX_SZ=64*32*128
WS_USED=OX_OFF+OX_SZ
X_BYTES=2048*576*2
W_BYTES=576*1728*2
WO_BYTES=576*576*2
QSCALE = (18**-0.5)*math.log2(math.e)
S_X=32; S_LOGA=34; S_AIM=36; S_CR=38; S_CI=40; S_LOGDT=42; S_DSKIP=44; S_W=48; S_WO=50; S_GW=52; S_OUT=54; S_DBG=56; S_WS=58
L_RING=0
KC_STRIDE=4288
L_KC=131072
L_U=32768
L_P=[0, 51200, 75776, 100352]
L_UEND=L_KC+6*KC_STRIDE
L_XCH=131072
L_A=110592
L_G=L_A+12288
L_SYNC=163840-256
LDS_TOTAL=163840
SY_FULL=0
SY_FREE=12
SY_NONCE=24
SY_GO=4
SY_UREADY=26
SY_GDONE=1
SY_INV=6
SY_KR=2
SY_PD=3
SY_GO3=27
SY_ISS=28
SY_CQ=29
SY_CA=30
SY_CO=31
SY_STG=11
assert L_UEND <= L_SYNC
if __name__=="__main__":
    for k,v in list(globals().items()):
        if k.isupper(): print(k,v)
```

```python
import os, math, struct
from asmlib import *
from layout2 import *

LOG2E = math.log2(math.e)
SC = os.environ.get("SC", "sc1")
SCKV = os.environ.get("SCKV", "")
SPIN_MAX = 1 << 22
XP = os.environ.get("XP","")
XPF = os.environ.get("XPF","1") == "1"
CPF = os.environ.get("CPF", "1" if PROF else "0") == "1"
PROG = os.environ.get("PROG","1") == "1"
FINE = os.environ.get("FINE","0") == "1"
MINSLEEP = int(os.environ.get("MINSLEEP","0"))
ULATE = os.environ.get("ULATE","0") == "1"
STG = 32768
ROT = os.environ.get("ROT","4")
PROFB = os.environ.get("PROF","0") == "2"
PROFC = os.environ.get("PROF","0") == "3"
PROFD = os.environ.get("PROF","0") == "4"
_stamp = stamp
def stamp(a, i, force=False):
    if PROFD: return
    if PROFC and not force and i not in (0,7): return
    _stamp(a, i)

def emit_tau(a, dst, src, t):
    a(f"v_lshrrev_b32 v{t}, 1, v{src}")
    a(f"v_xor_b32 v{t}, v{t}, v{src}")
    a(f"v_and_b32 v{t}, 4, v{t}")
    a(f"v_mul_u32_u24 v{t}, 3, v{t}")
    a(f"v_xor_b32 v{dst}, v{src}, v{t}")

def emit_ident(a, dst, e, t0, t1, n=4):
    a(f"v_and_b32 v{t0}, 1, v{e}")
    a(f"v_lshlrev_b32 v{t0}, 4, v{t0}")
    a(f"v_mov_b32 v{t1}, 0x3f80")
    a(f"v_lshlrev_b32 v{t0}, v{t0}, v{t1}")
    a(f"v_ashrrev_i32 v{t1}, 1, v{e}")
    for q in range(n):
        a(f"v_cmp_eq_u32 s[{60+2*q}:{61+2*q}], {q}, v{t1}")
    a("s_nop 1")
    for q in range(n):
        a(f"v_cndmask_b32 v{dst+q}, 0, v{t0}, s[{60+2*q}:{61+2*q}]")

def ident_nat(a, lo, hi, t):
    a(f"v_lshlrev_b32 v{t}, 3, v5")
    a(f"v_sub_u32 v{t}, v4, v{t}")
    emit_ident(a, lo, t, t+1, t+2)
    a(f"v_subrev_u32 v{t}, 16, v{t}")
    emit_ident(a, hi, t, t+1, t+2)

def exp_precise(a, dst, x, t0, t1):
    a(f"v_mul_f32 v{t0}, s70, v{x}")
    a(f"v_fma_f32 v{t1}, v{x}, s70, -v{t0}")
    a(f"v_fma_f32 v{t1}, v{x}, s71, v{t1}")
    a(f"v_exp_f32 v{t0}, v{t0}")
    a(f"v_mul_f32 v{t1}, s72, v{t1}")
    a(f"v_fma_f32 v{dst}, v{t0}, v{t1}, v{t0}")

def lds_add(a, word):
    a("s_mov_b64 exec, 1")
    a(f"ds_add_u32 v3, v1 offset:{4*word}")
    a("s_mov_b64 exec, -1")

def lds_wait(a, word, val, sleep=0, pre_read=False, ge=True):
    lab = a.newlabel("LW"); ok = a.newlabel("LWOK")
    if pre_read:
        a("v_readfirstlane_b32 s96, v2")
        a(f"s_cmp_ge_u32 s96, {val}")
        a(f"s_cbranch_scc1 {ok}")
    a(f"s_mov_b32 s97, {SPIN_MAX}")
    a.label(lab)
    a(f"ds_read_b32 v2, v3 offset:{4*word}")
    a("s_waitcnt lgkmcnt(0)")
    a("v_readfirstlane_b32 s96, v2")
    a(f"s_cmp_ge_u32 s96, {val}")
    a(f"s_cbranch_scc1 {ok}")
    sleep = max(sleep, MINSLEEP)
    if sleep: a(f"s_sleep {sleep}")
    a("s_sub_u32 s97, s97, 1")
    a(f"s_cbranch_scc0 {lab}")
    a.label(ok)

def full_wait(a, n, sleep=0):
    lab = a.newlabel("FL"); ok = a.newlabel("FLOK")
    a(f"s_mov_b32 s97, {SPIN_MAX}")
    a.label(lab)
    a(f"ds_read_b128 v[164:167], v3 offset:{4*SY_FULL}")
    a("s_waitcnt lgkmcnt(0)")
    a("v_min3_u32 v164, v164, v165, v166")
    a("v_min_u32 v164, v164, v167")
    a("s_nop 0")
    a("v_readfirstlane_b32 s96, v164")
    a(f"s_cmp_ge_u32 s96, {n}")
    a(f"s_cbranch_scc1 {ok}")
    if sleep: a(f"s_sleep {sleep}")
    a("s_sub_u32 s97, s97, 1")
    a(f"s_cbranch_scc0 {lab}")
    a.label(ok)

def get_nonce(a):
    lds_wait(a, SY_NONCE, 1)
    a("s_mov_b32 s74, s96")

def flag_set(a, soff, t):
    a(f"v_mov_b32 v{t}, 0")
    a(f"v_mov_b32 v{t+1}, s74")
    a("s_mov_b64 exec, 1")
    a(f"buffer_store_dword v{t+1}, v{t}, s[16:19], {soff} offen sc1")
    a("s_mov_b64 exec, -1")

def publish(a, word, nwaves, soff, t):
    skip = a.newlabel("PB")
    a("s_mov_b64 exec, 1")
    a(f"ds_add_rtn_u32 v2, v3, v1 offset:{4*word}")
    a("s_mov_b64 exec, -1")
    a("s_waitcnt lgkmcnt(0)")
    a("v_readfirstlane_b32 s96, v2")
    a(f"s_cmp_lg_u32 s96, {nwaves-1 if isinstance(nwaves, int) else nwaves}")
    a(f"s_cbranch_scc1 {skip}")
    flag_set(a, soff, t)
    a.label(skip)

def flag_wait_multi(a, voffs, t, sleep=2):
    lab = a.newlabel("FW"); ok = a.newlabel("FWOK")
    a(f"s_mov_b32 s97, {SPIN_MAX>>4}")
    a.label(lab)
    for k, v in enumerate(voffs):
        a(f"buffer_load_dword v{t+k}, v{v}, s[16:19], 0 offen sc1")
    a("s_waitcnt vmcnt(0)")
    for k in range(len(voffs)):
        a(f"v_xor_b32 v{t+k}, s74, v{t+k}")
    for k in range(1, len(voffs)):
        a(f"v_or_b32 v{t}, v{t}, v{t+k}")
    a(f"v_cmp_ne_u32 vcc, 0, v{t}")
    a("s_cmp_eq_u64 vcc, 0")
    a(f"s_cbranch_scc1 {ok}")
    if sleep: a(f"s_sleep {sleep}")
    a("s_sub_u32 s97, s97, 1")
    a(f"s_cbranch_scc0 {lab}")
    a.label(ok)

def flag_wait(a, voff, n, t, sleep=2):
    lab = a.newlabel("FW"); ok = a.newlabel("FWOK")
    op = {1: "dword", 2: "dwordx2", 4: "dwordx4"}[n]
    a(f"s_mov_b32 s97, {SPIN_MAX>>4}")
    a.label(lab)
    a(f"buffer_load_{op} {vr(t,n)}, v{voff}, s[16:19], 0 offen sc1")
    a("s_waitcnt vmcnt(0)")
    for k in range(n):
        a(f"v_xor_b32 v{t+k}, s74, v{t+k}")
    for k in range(1, n):
        a(f"v_or_b32 v{t}, v{t}, v{t+k}")
    a(f"v_cmp_ne_u32 vcc, 0, v{t}")
    a("s_cmp_eq_u64 vcc, 0")
    a(f"s_cbranch_scc1 {ok}")
    if sleep: a(f"s_sleep {sleep}")
    a("s_sub_u32 s97, s97, 1")
    a(f"s_cbranch_scc0 {lab}")
    a.label(ok)

def finish(a):
    stamp_flush(a, 0)
    a("s_endpgm")

def start_sync(a):
    a("s_waitcnt lgkmcnt(0)")
    a("s_barrier")

def gen(a, name):
    kernel_begin(a, name)
    a("s_cmp_ge_u32 s2, 256")
    a("s_cbranch_scc1 F_END")
    a("s_load_dwordx2 s[8:9], s[0:1], 0")
    a("s_load_dwordx2 s[12:13], s[0:1], 64")
    a("s_load_dwordx2 s[16:17], s[0:1], 104")
    a("s_load_dwordx16 s[32:47], s[0:1], 0")
    a("s_load_dwordx8 s[48:55], s[0:1], 64")
    a("s_load_dwordx4 s[56:59], s[0:1], 96")
    stamp_init(a)
    if CPF:
        a("s_getpc_b64 s[60:61]")
        a("s_lshr_b32 s62, s2, 3")
        a("s_lshl_b32 s62, s62, 10")
        a("s_add_u32 s60, s60, s62")
        a("s_addc_u32 s61, s61, 0")
        a("v_lshlrev_b32 v20, 7, v0")
        a("v_mov_b32 v21, s61")
        a("v_add_co_u32 v20, vcc, s60, v20")
        a("s_nop 1")
        a("v_addc_co_u32 v21, vcc, 0, v21, vcc")
        a("v_cmp_gt_u32 vcc, 8, v0")
        a("s_and_saveexec_b64 s[64:65], vcc")
        a("s_cbranch_execz CPF_SKIP")
        a("global_load_dword v22, v[20:21], off")
        a.label("CPF_SKIP")
        a("s_mov_b64 exec, s[64:65]")
    a("v_lshrrev_b32 v1, 6, v0")
    a("v_and_b32 v0, 63, v0")
    a("v_readfirstlane_b32 s3, v1")
    a("v_mov_b32 v2, 0")
    a(f"v_mov_b32 v3, {L_SYNC}")
    a("v_lshl_add_u32 v4, v0, 2, v3")
    a("ds_write_b32 v4, v2")
    a("v_mov_b32 v1, 1")
    a("v_and_b32 v4, 31, v0")
    a("v_lshrrev_b32 v5, 5, v0")
    a("s_bfe_u32 s6, s2, 0x20003")
    a("s_lshr_b32 s7, s2, 5")
    a("s_and_b32 s4, s2, 3")
    a("s_lshl_b32 s4, s4, 2")
    a("s_add_u32 s4, s4, s6")
    a("s_bfe_u32 s5, s2, 0x10002")
    a("s_mul_i32 s5, s5, 7")
    a("s_add_u32 s5, s5, s7")
    a(f"s_mov_b32 s18, {WS_USED}")
    a("s_mov_b32 s19, 0x20000")
    a("s_cmp_eq_u32 s5, 13")
    a("s_cselect_b32 s27, 7, 15")
    a("v_lshrrev_b32 v7, 4, v0")
    a("v_lshlrev_b32 v8, 2, v7")
    a("v_sub_u32 v8, v0, v8")
    a("v_and_b32 v8, s27, v8")
    a("v_mul_u32_u24 v7, 3456, v7")
    a("v_lshl_add_u32 v6, v8, 4, v7")
    a("v_lshrrev_b32 v9, 3, v0")
    a("v_and_b32 v10, 7, v0")
    a("v_lshrrev_b32 v11, 1, v9")
    a("v_xor_b32 v10, v10, v11")
    a("v_mul_u32_u24 v9, 1152, v9")
    a("v_lshl_add_u32 v7, v10, 4, v9")
    a("v_xor_b32 v10, 4, v10")
    a("v_lshl_add_u32 v8, v10, 4, v9")
    a("v_add_u32 v8, 8192, v8")
    a("v_add_u32 v9, 12800, v6")
    a("s_lshl_b32 s22, s5, 8")
    a(f"s_mul_i32 s27, s3, {4*13824}")
    a("s_add_u32 s22, s22, s27")
    a("s_lshl_b32 s23, s4, 2")
    a("s_add_u32 s23, s23, s3")
    a(f"s_mul_i32 s23, s23, {32*1152}")
    a("s_lshl_b32 s24, s3, 12")
    a("s_lshl_b32 s20, s6, 1")
    a("s_add_u32 s20, s20, s7")
    a("s_sub_u32 s27, s20, 9")
    a("s_cmp_ge_u32 s20, 9")
    a("s_cselect_b32 s20, s27, s20")
    if ROT != "9":
        n1 = int(ROT); n2 = 9 - n1
        a("s_add_u32 s20, s6, s7")
        a("s_mov_b32 s21, s20")
        for reg, n in (("s20", n1), ("s21", n2)):
            for _ in range(9 // n):
                a(f"s_sub_u32 s27, {reg}, {n}")
                a(f"s_cmp_ge_u32 {reg}, {n}")
                a(f"s_cselect_b32 {reg}, s27, {reg}")
        a(f"s_add_u32 s21, s21, {n1}")
    a("s_and_b32 s31, s2, 7")
    a("s_mul_i32 s31, s31, 36")
    a("s_lshr_b32 s27, s2, 3")
    a("s_add_u32 s31, s31, s27")
    a("s_max_u32 s27, s27, 28")
    a("s_add_u32 s31, s31, s27")
    a("s_sub_u32 s31, s31, 28")
    a("s_or_b32 s27, s2, s3")
    a("s_memrealtime s[60:61]")
    a("s_cmp_lg_u32 s27, 0")
    a("s_waitcnt lgkmcnt(0)")
    a("s_cbranch_scc1 F_NN")
    a("s_or_b32 s60, s60, 1")
    a("v_mov_b32 v14, s60")
    a("v_lshlrev_b32 v15, 6, v0")
    a("s_mov_b64 exec, 15")
    a(f"global_store_dword v15, v14, s[{S_DBG}:{S_DBG+1}] sc1")
    a("s_mov_b64 exec, -1")
    a.label("F_NN")
    a("s_cmp_ge_u32 s3, 8")
    a("s_cbranch_scc1 F_KGEN")
    a("s_cmp_ge_u32 s2, 224")
    a("s_cbranch_scc1 F_FREE")
    a("s_cmp_ge_u32 s3, 4")
    a("s_cbranch_scc1 F_GEMM")
    gen_loader(a)
    a.label("F_FREE")
    gen_free(a)
    a.label("F_GEMM")
    gen_gemm(a)
    a.label("F_ATTN")
    gen_attn(a)
    a.label("F_P3")
    gen_p3(a)
    a.label("F_KGEN")
    gen_kgen(a)
    gen_conv(a)
    a.label("F_GATE")
    gen_gate(a)
    gen_misc(a)
    a.label("F_FIN")
    stamp_flush(a, 0)
    a.label("F_END")
    a("s_endpgm")

def gen_loader(a):
    a("s_add_u32 s12, s12, s22")
    a("s_addc_u32 s13, s13, 0")
    a("s_add_u32 s8, s8, s23")
    a("s_addc_u32 s9, s9, 0")
    def chunk(i):
        n1 = int(ROT)
        reg, lo, hi = ("s20", 0, n1) if i < n1 else ("s21", n1, 9)
        a(f"s_mul_i32 s25, {reg}, {16*13824}")
        a(f"s_lshl_b32 s26, {reg}, 7")
        a("s_add_u32 s14, s12, s25")
        a("s_addc_u32 s15, s13, 0")
        a("s_add_u32 s10, s8, s26")
        a("s_addc_u32 s11, s9, 0")
        for hf in range(2):
            a(f"s_add_u32 m0, s24, {(i % 4) * 32768 + hf*2048}")
            if hf:
                a(f"s_add_u32 s14, s14, {2*13824}")
                a("s_addc_u32 s15, s15, 0")
            else: a(f"s_add_u32 {reg}, {reg}, 1")
            a("global_load_lds_dwordx4 v6, s[14:15]")
            a("global_load_lds_dwordx4 v9, s[14:15] offset:1024")
            a("s_add_u32 m0, m0, 16384")
            if hf:
                a(f"s_add_u32 s10, s10, {2*9216}")
                a("s_addc_u32 s11, s11, 0")
            else:
                a(f"s_cmp_eq_u32 {reg}, {hi}")
                a(f"s_cselect_b32 {reg}, {lo}, {reg}")
            a("global_load_lds_dwordx4 v7, s[10:11]")
            a("global_load_lds_dwordx4 v8, s[10:11] offset:1024")
    stamp(a, 1)
    chunk(0); chunk(1)
    gather_setup(a, 1)
    for i in range(-1, 6):
        a("s_waitcnt vmcnt(8)")
        if i == -1: stamp(a, 2)
        if i == 3: stamp(a, 3)
        a("s_barrier")
        if i == 5:
            a("s_cmp_lg_u32 s3, 3")
            a("s_cbranch_scc1 L_N3")
            fetch_nonce(a, "L", True)
            a("buffer_load_dword v12, v16, s[16:19], 0 offen sc1")
            a.label("L_N3")
        chunk(i + 3)
        if i == 2: a(f"s_load_dword s74, s[{S_DBG}:{S_DBG+1}], 0")
    a("s_waitcnt vmcnt(8) lgkmcnt(0)")
    a("v_cmp_ne_u32 vcc, s74, v12")
    a("s_barrier")
    a("s_cmp_eq_u32 s3, 3")
    a("s_cbranch_scc1 L_W3")
    a("s_waitcnt vmcnt(0)")
    stamp(a, 4)
    a("s_barrier")
    a("s_cmp_eq_u32 s3, 2")
    a("s_cbranch_scc1 F_GATE")
    a("s_branch F_ATTN")
    a.label("L_W3")
    a("s_cmp_eq_u64 vcc, 0")
    a("s_cbranch_scc0 L_LATE")
    gather_issue(a)
    a("s_waitcnt vmcnt(18)")
    a("s_barrier")
    a(f"ds_write_b32 v3, v21 offset:{4*SY_NONCE}")
    a("s_branch L_GD")
    a.label("L_LATE")
    a("s_waitcnt vmcnt(0)")
    a("s_barrier")
    a(f"ds_write_b32 v3, v21 offset:{4*SY_NONCE}")
    flag_wait_multi(a, [16], 12, sleep=4)
    gather_issue(a)
    a.label("L_GD")
    a("s_waitcnt vmcnt(0)")
    lds_add(a, SY_UREADY)
    stamp(a, 4)
    a("s_branch F_ATTN")

def gather_setup(a, cmax):
    a("v_lshlrev_b32 v16, 7, v4")
    a(f"v_add_u32 v16, {FL_UT}, v16")
    a("v_lshrrev_b32 v17, 4, v0")
    a("v_and_b32 v18, 3, v0")
    a("v_xor_b32 v17, v17, v18")
    a(f"v_min_u32 v17, {cmax}, v17")
    a("v_lshrrev_b32 v18, 2, v0")
    a("v_mul_u32_u24 v18, 9216, v18")
    a("v_lshl_add_u32 v17, v17, 4, v18")
    a("v_mov_b32 v18, 0x7ff00000")
    a("s_lshl_b32 s29, s31, 5")
    a(f"s_add_u32 s29, s29, {UT_OFF}")

def gather_issue(a):
    lab = a.newlabel("GI")
    a(f"s_mov_b32 m0, {L_U}")
    a("s_mov_b32 s27, 16")
    a("buffer_load_dwordx4 v18, s[16:19], 0 offen lds")
    a("buffer_load_dwordx4 v18, s[16:19], 0 offen offset:1024 lds")
    for j in range(16):
        a(f"s_mov_b32 m0, {L_U+2048+1024*j}")
        a(f"s_add_u32 s27, s29, {16*9216*j}")
        a(f"buffer_load_dwordx4 v17, s[16:19], s27 offen {SC} lds")

ACC = 16; FB = 80
def gen_gemm(a):
    a("s_sub_u32 s8, s3, 4")
    a("s_lshl_b32 s6, s4, 2")
    a("s_add_u32 s6, s6, s8")
    a("v_bfe_u32 v10, v0, 2, 2")
    a("v_bfe_u32 v11, v0, 4, 1")
    a("v_and_b32 v12, 3, v0")
    a("v_lshlrev_b32 v6, 11, v5")
    a("v_lshl_add_u32 v6, v10, 8, v6")
    a("v_lshl_add_u32 v6, v11, 5, v6")
    a("v_lshl_add_u32 v6, v12, 3, v6")
    for p in range(4):
        a(f"v_add_u32 v12, {p}, v10")
        a("v_and_b32 v12, 3, v12")
        a(f"v_lshl_add_u32 v{148+p}, v12, 6, v6")
        a(f"v_add_u32 v{152+p}, 0x10000, v{148+p}")
    a("s_lshl_b32 s7, s8, 12")
    a("s_add_u32 s7, s7, 16384")
    a("v_lshl_add_u32 v14, v4, 7, s7")
    a("v_bfe_u32 v15, v4, 1, 3")
    a("v_xor_b32 v15, v15, v5")
    for sp in range(4):
        a(f"v_xor_b32 v12, {2*sp}, v15")
        a(f"v_lshl_add_u32 v{140+sp}, v12, 4, v14")
        a(f"v_add_u32 v{144+sp}, 0x10000, v{140+sp}")
    emit_tau(a, 13, 4, 14)
    a("v_lshlrev_b32 v156, 4, v13")
    a("v_lshl_add_u32 v156, v5, 3, v156")
    a("v_mul_u32_u24 v157, 9216, v5")
    a("v_lshl_add_u32 v157, v4, 4, v157")
    a(f"s_mul_i32 s26, s6, {TILE}")
    a("s_lshl_b32 s27, s5, 13")
    a("s_add_u32 s20, s26, s27")
    a("s_add_u32 s21, s20, 4096")
    a("s_lshl_b32 s27, s5, 11")
    a("s_add_u32 s22, s26, s27")
    a(f"s_add_u32 s22, s22, {VOFF - 9*2048}")
    a("s_add_u32 s23, s22, 18432")
    a(f"s_mov_b32 s28, {fhex(QSCALE)}")
    a("s_mov_b32 s29, s28")
    a("s_lshl_b32 s24, s5, 4")
    a("s_add_u32 s24, s24, s4")
    a("s_lshl_b32 s24, s24, 7")
    a(f"s_add_u32 s24, s24, {FL_QKV}")
    NB = 3
    def reads(s):
        i, sp = divmod(s, 4)
        slot = i % 4
        buf = FB + 20*(s % NB)
        m, x = (152, 144+sp) if slot >= 2 else (148, 140+sp)
        so = (slot % 2) * 32768
        out = [f"ds_read_b128 {vr(buf+16,4)}, v{x} offset:{so}"]
        for p in range(4):
            for j in range(2):
                out.append(f"ds_read_b64_tr_b16 {vr(buf+4*p+2*j,2)}, v{m+p} offset:{so+sp*4096+j*1024}")
        return out
    def mf(s, p, swap):
        buf = FB + 20*(s % NB)
        cin = "0" if s == 0 else vr(ACC+16*p,16)
        w, x = vr(buf+4*p,4), vr(buf+16,4)
        if swap: w, x = x, w
        a(f"v_mfma_f32_32x32x16_bf16 {vr(ACC+16*p,16)}, {w}, {x}, {cin}")
    def mfmas(s, swap, inter=(), cuts=(3, 5, 7, 30)):
        inter = list(inter)
        for p in range(4):
            mf(s, p, swap)
            for ln in inter[(cuts[p-1] if p else 0):cuts[p]]: a(ln)
    def loop(swap):
        for s in range(34):
            i, sp = divmod(s, 4)
            a("s_waitcnt lgkmcnt(9)")
            if PROFD and not swap and s % 2 == 0 and s >= 2:
                if s >= 4: a(f"s_mov_b32 s{80 + s//2 - 2}, s98")
                a("s_memtime s[98:99]")
            if sp == 2:
                mfmas(s, swap, ["s_barrier"] + reads(s+2), cuts=(4, 6, 8, 30))
            else:
                mfmas(s, swap, reads(s+2))
        a("s_waitcnt lgkmcnt(9)")
        mf(34, 0, swap); mf(34, 1, swap)
        a("s_waitcnt lgkmcnt(0)")
        mf(35, 0, swap)
        lds_add(a, SY_GDONE)
        mf(35, 1, swap); mf(34, 2, swap); mf(35, 2, swap); mf(34, 3, swap); mf(35, 3, swap)
        stamp(a, 3)
        a("s_nop 4")
    a("s_barrier")
    stamp(a, 2)
    a("s_setprio 2")
    for ln in reads(0): a(ln)
    for ln in reads(1): a(ln)
    a("s_cmp_ge_u32 s5, 9")
    a("s_cbranch_scc1 G_V")
    loop(False)
    for p in range(4):
        A0 = ACC+16*p
        lab = a.newlabel("G_NS")
        a(f"s_cmp_gt_u32 s5, {4 if p < 2 else 3}")
        a(f"s_cbranch_scc1 {lab}")
        for k in range(8): a(f"v_pk_mul_f32 {vr(A0+2*k,2)}, {vr(A0+2*k,2)}, s[28:29]")
        a.label(lab)
        for r in range(8): a(f"v_cvt_pk_bf16_f32 v{A0+r}, v{A0+2*r}, v{A0+2*r+1}")
        for q in range(4):
            a(f"buffer_store_dwordx2 {vr(A0+2*q,2)}, v156, s[16:19], s{20 + p//2} offen offset:{(p%2)*2048 + q*512} sc1")
    a("s_branch G_PUB")
    a.label("G_V")
    loop(True)
    for p in range(4):
        A0 = ACC+16*p
        if p == 2:
            a("s_cmp_eq_u32 s5, 13")
            a("s_cbranch_scc1 G_PUB")
        for r in range(8): a(f"v_cvt_pk_bf16_f32 v{A0+r}, v{A0+2*r}, v{A0+2*r+1}")
        for t in range(2):
            a(f"buffer_store_dwordx4 {vr(A0+4*t,4)}, v157, s[16:19], s{22+t} offen offset:{p*512} sc1")
    a.label("G_PUB")
    stamp(a, 1)
    get_nonce(a)
    a("s_setprio 0")
    a("s_waitcnt vmcnt(0)")
    publish(a, SY_CQ, 4, "s24", 10)
    stamp(a, 4)

QA=16; QAX=20; QB=24; QBX=28; SA=32; SB=48; OA=64; OB=80; KVB=96
ONES=0x3f803f80
def kb(b): return KVB+14*b
def kx(b): return KVB+14*b+4
def v0r(b): return KVB+14*b+6
def v1r(b): return KVB+14*b+10
def kv_loads(b, wrap=True):
    return [f"buffer_load_dwordx4 {vr(kb(b),4)}, v7, s[16:19], s20 offen {SCKV}",
            f"buffer_load_dwordx2 {vr(kx(b),2)}, v8, s[16:19], s20 offen {SCKV}",
            "s_mov_b64 exec, s[22:23]",
            f"buffer_load_dwordx4 {vr(v0r(b),4)}, v9, s[16:19], s20 offen {SCKV}",
            f"buffer_load_dwordx4 {vr(v1r(b),4)}, v154, s[16:19], s20 offen {SCKV}",
            "s_mov_b64 exec, -1",
            f"s_add_u32 s20, s20, {TILE}"] + (["s_cmp_eq_u32 s20, s29", "s_cselect_b32 s20, s28, s20"] if (b == 3 and wrap) else [])

def qk(a, S, buf, Q, QX):
    a(f"v_mfma_f32_32x32x8_bf16 {vr(S,16)}, {vr(kx(buf),2)}, {vr(QX,2)}, 0")
    a(f"v_mfma_f32_32x32x16_bf16 {vr(S,16)}, {vr(kb(buf),4)}, {vr(Q,4)}, {vr(S,16)}")

def gen_attn(a):
    a("s_and_b32 s4, s2, 7")
    a("s_lshl_b32 s4, s4, 2")
    a("s_bfe_u32 s5, s2, 0x20003")
    a("s_add_u32 s4, s4, s5")
    a("s_lshr_b32 s5, s2, 5")
    a("s_lshr_b32 s6, s3, 2")
    a("s_and_b32 s7, s3, 3")
    a("s_lshl_b32 s7, s7, 1")
    a("s_lshl_b32 s5, s5, 3")
    a("s_add_u32 s7, s5, s7")
    a("s_add_u32 s30, s7, s6")
    a("s_xor_b32 s31, s30, 1")
    a("s_mul_i32 s12, s4, 18")
    a("s_lshr_b32 s13, s12, 3")
    a("s_lshl_b32 s8, s13, 9")
    a(f"s_add_u32 s9, s8, {72*512}")
    a("v_lshl_add_u32 v7, v0, 4, s9")
    a("v_lshlrev_b32 v8, 4, v4")
    a("v_lshl_add_u32 v8, v5, 3, v8")
    a("s_add_u32 s9, s9, 1024")
    a("v_add_u32 v8, s9, v8")
    a(f"v_subrev_u32 v155, {72*512}, v7")
    a(f"v_subrev_u32 v156, {72*512}, v8")
    a(f"s_mul_i32 s24, s30, {TILE}")
    a(f"s_mul_i32 s25, s31, {TILE}")
    a("v_mul_u32_u24 v9, 9216, v5")
    a("v_lshl_add_u32 v9, v4, 4, v9")
    a("s_lshl_b32 s9, s12, 4")
    a(f"s_add_u32 s9, s9, {VOFF}")
    a("v_add_u32 v9, s9, v9")
    a("v_add_u32 v154, 18432, v9")
    a("s_mov_b32 s22, 0x3ffff")
    a("s_mov_b32 s23, 0x3ffff")
    a(f"s_mul_i32 s14, s6, {32*TILE}")
    a(f"s_add_u32 s29, s14, {32*TILE}")
    a("s_mov_b32 s28, s14")
    a("v_mov_b32 v6, 0xdddddddd")
    a("s_mov_b32 s15, 0")
    a(f"v_mov_b32 v10, {ONES}")
    a("v_and_b32 v11, 27, v4")
    a("v_cmp_eq_u32 vcc, 18, v11")
    a("s_and_b32 s9, s4, 3")
    a("v_lshlrev_b32 v12, 2, v5")
    a("v_cndmask_b32 v10, 0, v10, vcc")
    a("v_subrev_u32 v12, s9, v12")
    for k in range(4):
        a(f"v_cmp_le_i32 s[{60+2*k}:{61+2*k}], {-k}, v12")
    a("v_lshlrev_b32 v12, 1, v5")
    a("v_subrev_u32 v12, s9, v12")
    for k in range(2):
        a(f"v_cmp_ge_i32 s[{68+2*k}:{69+2*k}], {-k}, v12")
    for b in range(4):
        for r in range(8): a(f"v_mov_b32 v{v0r(b)+r}, v10")
    for r in range(16):
        a(f"v_mov_b32 v{OA+r}, 0")
        a(f"v_mov_b32 v{OB+r}, 0")
    for r in range(8):
        a(f"v_mov_b32 v{SB+8+r}, 0")
    a("v_bfe_u32 v11, v0, 3, 2")
    a("v_and_b32 v12, 1, v11")
    a("s_add_u32 s9, s13, 72")
    a("v_lshl_add_u32 v13, v12, 1, s9")
    a("v_lshrrev_b32 v13, 4, v13")
    a("s_add_u32 s9, s12, 1152")
    a("v_mad_u32_u24 v14, v12, 17, s9")
    a("v_lshrrev_b32 v14, 7, v14")
    a("v_cmp_gt_u32 vcc, 2, v11")
    a("v_lshl_add_u32 v15, v12, 1, s13")
    a("v_lshrrev_b32 v15, 4, v15")
    a("v_cndmask_b32 v13, v14, v13, vcc")
    a("v_and_b32 v11, 7, v0")
    a("s_lshl_b32 s9, s6, 3")
    a("v_add_u32 v14, s9, v11")
    a("v_lshl_add_u32 v13, v13, 4, v14")
    a("v_and_b32 v11, 1, v0")
    a("s_lshr_b32 s9, s5, 2")
    a("v_add_u32 v11, s9, v11")
    a("v_cmp_eq_u32 vcc, 0, v5")
    a("v_lshl_add_u32 v15, v15, 4, v11")
    a("s_lshl_b32 s26, s6, 2")
    a("v_cndmask_b32 v11, v15, v13, vcc")
    a("v_lshlrev_b32 v11, 7, v11")
    a(f"v_add_u32 v152, {FL_QKV}, v11")
    a("v_add_u32 v13, s26, v3")
    get_nonce(a)
    a("s_cmp_ge_u32 s3, 2")
    a("s_cbranch_scc1 A_WAITGO")
    a("s_lshl_b32 s26, s3, 10")
    a("v_mov_b32 v12, s26")
    a("s_lshl_b32 s26, s3, 2")
    a("v_cndmask_b32 v12, 0, v12, vcc")
    a("v_add_u32 v14, v152, v12")
    a("v_add_u32 v15, s26, v3")
    lds_wait(a, SY_CQ, 1, sleep=2)
    a(f"s_mov_b32 s97, {SPIN_MAX>>4}")
    a("s_lshr_b32 s27, s5, 3")
    a.label("A_POLL")
    a("buffer_load_dword v12, v14, s[16:19], 0 offen sc1")
    a("s_waitcnt vmcnt(0)")
    a("v_cmp_eq_u32 vcc, s74, v12")
    a("s_lshr_b32 s26, vcc_lo, 16")
    a("s_and_b32 s26, s26, vcc_lo")
    a("s_lshr_b32 s9, s26, 8")
    a("s_and_b32 s26, s26, s9")
    a("s_cmp_eq_u32 vcc_hi, -1")
    a("s_cselect_b32 s26, s26, 0")
    a("s_bitcmp1_b32 s26, s27" if PROG else "s_cmp_eq_u32 s26, 0xff")
    a("s_cbranch_scc1 A_POK")
    a(f"s_sleep {os.environ.get('PS','2')}")
    a("s_sub_u32 s97, s97, 1")
    a("s_cbranch_scc0 A_POLL")
    a("s_mov_b32 s26, 0xff")
    a.label("A_POK")
    a("s_mov_b32 s96, s27")
    a("s_cmp_eq_u32 s26, 0xff")
    a("s_cselect_b32 s26, 8, 24")
    a("s_add_u32 s96, s96, s26")
    a("v_mov_b32 v12, s96")
    a(f"ds_write_b32 v15, v12 offset:{4*SY_GO}")
    a.label("A_WAITGO")
    a(f"s_mov_b32 s97, {SPIN_MAX}")
    a.label("A_WG")
    a(f"ds_read_b32 v2, v13 offset:{4*SY_GO}")
    a("s_waitcnt lgkmcnt(0)")
    a("v_readfirstlane_b32 s96, v2")
    a("s_cmp_lg_u32 s96, 0")
    a("s_cbranch_scc1 A_GO")
    a("s_sleep 1")
    a("s_sub_u32 s97, s97, 1")
    a("s_cbranch_scc0 A_WG")
    a.label("A_GO")
    a(f"buffer_load_dwordx4 {vr(QA,4)}, v155, s[16:19], s24 offen {SC}")
    a(f"buffer_load_dwordx2 {vr(QAX,2)}, v156, s[16:19], s24 offen {SC}")
    a("s_and_b32 s26, s96, 7")
    a(f"s_mul_i32 s26, s26, {4*TILE}")
    a("s_add_u32 s20, s14, s26")
    a("s_lshr_b32 s27, s96, 4")
    stamp(a, 5)
    for ln in kv_loads(0): a(ln)
    a(f"buffer_load_dwordx4 {vr(QB,4)}, v155, s[16:19], s25 offen {SC}")
    a(f"buffer_load_dwordx2 {vr(QBX,2)}, v156, s[16:19], s25 offen {SC}")
    for b in (1, 2):
        for ln in kv_loads(b): a(ln)
    a("s_mov_b32 s21, 8")
    a("s_setprio 2")
    a("s_waitcnt vmcnt(8)")
    a("buffer_load_dword v153, v152, s[16:19], 0 offen sc1")
    for Q in (QA, QB):
        for k in range(6):
            a(f"v_cndmask_b32 v{Q+k}, 0, v{Q+k}, s[{60+2*k}:{61+2*k}]")
    qk(a, SA, 0, QA, QAX)
    a("s_nop 15")
    def ex(S, r): a(f"v_exp_f32 v{S+r}, v{S+r}")
    n1,n2,n3,n4 = 2,3,4,3
    def phase(X, Y, OX, OY, vY_hi, vX_lo, kbuf, QY, QYX, pre=(), post=()):
        r = 0
        for _ in range(n1): ex(X,r); r += 1
        a(f"v_smfmac_f32_32x32x32_bf16 {vr(OY,16)}, {vr(vY_hi,4)}, {vr(Y+8,8)}, v6")
        for ln in pre: a(ln)
        for _ in range(n2): ex(X,r); r += 1
        a(f"v_mfma_f32_32x32x8_bf16 {vr(Y,16)}, {vr(kx(kbuf),2)}, {vr(QYX,2)}, 0")
        for _ in range(n3): ex(X,r); r += 1
        a(f"v_mfma_f32_32x32x16_bf16 {vr(Y,16)}, {vr(kb(kbuf),4)}, {vr(QY,4)}, {vr(Y,16)}")
        for ln in post: a(ln)
        for _ in range(n4): ex(X,r); r += 1
        a(f"v_smfmac_f32_32x32x32_bf16 {vr(OX,16)}, {vr(vX_lo,4)}, {vr(X,8)}, v6")
        while r < 16: ex(X,r); r += 1
    a(".p2align 3")
    a.label("A_LOOP")
    for (cnt, pr) in eval(os.environ.get('PRS','((4,1),(1,0))')):
        lab = a.newlabel("A_PR")
        a(f"s_cmp_lg_u32 s21, {cnt}")
        a(f"s_cbranch_scc1 {lab}")
        a(f"s_setprio {pr}")
        a.label(lab)
    for u in range(4):
        pb = (u+3) % 4
        chk = ["s_cmp_lg_u32 s27, 0", "s_cbranch_scc1 A_CHK", "A_CHKD:"] if u == 1 else []
        phase(SA, SB, OA, OB, v1r(pb), v0r(u), u, QB, QBX, post=chk + kv_loads(pb))
        post = ["s_nop 3"]
        if u == 3: post = ["s_sub_u32 s21, s21, 1", "s_nop 1", "s_cmp_lg_u32 s21, 0"]
        phase(SB, SA, OB, OA, v1r(u), v0r(u), (u+1) % 4, QA, QAX, pre=["s_waitcnt vmcnt(8)"], post=post)
    a("s_cbranch_scc1 A_LOOP")
    a("s_nop 1")
    a(f"v_smfmac_f32_32x32x32_bf16 {vr(OB,16)}, {vr(v1r(3),4)}, {vr(SB+8,8)}, v6")
    stamp(a, 6)
    a.label("A_FINAL")
    a("s_mul_i32 s24, s3, 2816")
    a(f"s_add_u32 s24, s24, {L_XCH}")
    a("v_lshl_add_u32 v10, v0, 4, s24")
    a("s_xor_b32 s25, s3, 4")
    a("s_mul_i32 s25, s25, 2816")
    a(f"s_add_u32 s25, s25, {L_XCH}")
    a("v_lshl_add_u32 v11, v0, 4, s25")
    a("v_lshl_add_u32 v12, v0, 2, s24")
    a("v_lshl_add_u32 v13, v0, 2, s25")
    emit_tau(a, 14, 4, 15)
    a("s_barrier")
    a(f"ds_write_b128 v10, {vr(OB,4)}")
    a(f"ds_write_b128 v10, {vr(OB+4,4)} offset:1024")
    a(f"ds_write_b32 v12, v{OB+8} offset:2048")
    a(f"ds_write_b32 v12, v{OB+9} offset:2304")
    a(f"ds_write_b32 v12, v{OB+10} offset:2560")
    a("s_waitcnt vmcnt(0) lgkmcnt(0)")
    a("s_barrier")
    a(f"ds_read_b128 {vr(SA,4)}, v11")
    a(f"ds_read_b128 {vr(SA+4,4)}, v11 offset:1024")
    a(f"ds_read_b32 v{SA+8}, v13 offset:2048")
    a(f"ds_read_b32 v{SA+9}, v13 offset:2304")
    a(f"ds_read_b32 v{SA+10}, v13 offset:2560")
    a("s_mul_i32 s26, s30, 36")
    a("s_add_u32 s27, s26, s4")
    a("s_lshl_b32 s27, s27, 10")
    a(f"s_add_u32 s27, s27, {OF_OFF}")
    a("s_lshl_b32 s28, s30, 5")
    a("s_add_u32 s28, s28, s4")
    a("s_lshl_b32 s28, s28, 7")
    a(f"s_add_u32 s28, s28, {OX_OFF}")
    a("v_lshl_add_u32 v15, v5, 5, v14")
    a("v_lshlrev_b32 v15, 4, v15")
    a("v_lshlrev_b32 v14, 2, v14")
    a("s_waitcnt lgkmcnt(0)")
    for r in range(11):
        a(f"v_add_f32 v{SA+r}, v{SA+r}, v{OA+r}")
    a(f"v_rcp_f32 v{SA+11}, v{SA+10}")
    a(f"v_mov_b32 v{SA+12}, v{SA+10}")
    for r in range(10):
        a(f"v_mul_f32 v{OA+r}, v{SA+r}, v{SA+11}")
    for r in range(5):
        a(f"v_cvt_pk_bf16_f32 v{SB+r}, v{OA+2*r}, v{OA+2*r+1}")
    a(f"buffer_store_dwordx4 {vr(SB,4)}, v15, s[16:19], s27 offen sc1")
    a("s_mov_b32 exec_hi, 0")
    a(f"buffer_store_dword v{SB+4}, v14, s[16:19], s28 offen sc1")
    a("s_mov_b64 exec, -1")
    for r in range(10):
        a(f"v_fma_f32 v{SA+12}, v{SA+r}, 0, v{SA+12}")
    lo, hi = (2.0**-60, 2.0**60) if os.environ.get("FORCEFB","0") != "1" else (2.0**40, 2.0**60)
    a(f"s_mov_b32 s28, {fhex(lo)}")
    a(f"s_mov_b32 s29, {fhex(hi)}")
    a(f"v_cmp_le_f32 vcc, s28, v{SA+12}")
    a(f"v_cmp_ge_f32 s[24:25], s29, v{SA+12}")
    a("s_and_b64 vcc, vcc, s[24:25]")
    a("s_cmp_eq_u64 vcc, -1")
    a("s_cselect_b32 s24, 0, 1")
    a("s_lshl_b32 s25, s3, 2")
    a(f"s_add_u32 s25, s25, {L_XCH+8*2816}")
    a("v_mov_b32 v10, s25")
    a("v_mov_b32 v11, s24")
    a("ds_write_b32 v10, v11")
    a("v_and_b32 v10, 7, v0")
    a("v_lshlrev_b32 v10, 2, v10")
    a(f"v_add_u32 v10, {L_XCH+8*2816}, v10")
    a("s_waitcnt lgkmcnt(0)")
    a("s_barrier")
    a("ds_read_b32 v11, v10")
    a("s_lshl_b32 s24, s5, 2")
    a("s_add_u32 s24, s24, s4")
    a("s_lshl_b32 s24, s24, 7")
    a(f"s_add_u32 s24, s24, {FL_O}")
    a("s_waitcnt lgkmcnt(0)")
    a("v_cmp_ne_u32 vcc, 0, v11")
    a("s_cmp_eq_u64 vcc, 0")
    a("s_cbranch_scc1 A_DONE")
    a("s_cmp_lg_u32 s15, 0")
    a("s_cbranch_scc1 A_DONE")
    a("s_mov_b32 s15, 1")
    a("s_mov_b32 s20, 0")
    a("s_mov_b32 s21, 64")
    a("v_mov_b32 v157, 0xff800000")
    a("v_mov_b32 v158, 0xff800000")
    a("s_waitcnt vmcnt(0)")
    a.label("A_MAXLOOP")
    for ln in kv_loads(0)[:2]: a(ln)
    a(f"s_add_u32 s20, s20, {TILE}")
    a("s_waitcnt vmcnt(0)")
    qk(a, SA, 0, QA, QAX); qk(a, SB, 0, QB, QBX)
    a("s_nop 15")
    for r in range(8):
        a(f"v_max3_f32 v157, v157, v{SA+2*r}, v{SA+2*r+1}")
        a(f"v_max3_f32 v158, v158, v{SB+2*r}, v{SB+2*r+1}")
    a("s_sub_u32 s21, s21, 1")
    a("s_cmp_lg_u32 s21, 0")
    a("s_cbranch_scc1 A_MAXLOOP")
    for m in (157, 158):
        a(f"v_mov_b32 v12, v{m}")
        a("s_nop 1")
        a(f"v_permlane32_swap_b32 v12, v{m}")
        a("s_nop 1")
        a(f"v_max_f32 v{m}, v{m}, v12")
    for r in range(16):
        a(f"v_mov_b32 v{OA+r}, 0")
        a(f"v_mov_b32 v{OB+r}, 0")
    a("s_mov_b32 s20, s14")
    a("s_mov_b32 s21, 32")
    a.label("A_SLOWLOOP")
    for ln in kv_loads(0): a(ln)
    a("s_waitcnt vmcnt(0)")
    qk(a, SA, 0, QA, QAX); qk(a, SB, 0, QB, QBX)
    a("s_nop 15")
    for r in range(16):
        a(f"v_sub_f32 v{SA+r}, v{SA+r}, v157")
        a(f"v_sub_f32 v{SB+r}, v{SB+r}, v158")
    for r in range(32): ex(SA, r)
    a("s_nop 1")
    a(f"v_smfmac_f32_32x32x32_bf16 {vr(OA,16)}, {vr(v0r(0),4)}, {vr(SA,8)}, v6")
    a(f"v_smfmac_f32_32x32x32_bf16 {vr(OB,16)}, {vr(v0r(0),4)}, {vr(SB,8)}, v6")
    a(f"v_smfmac_f32_32x32x32_bf16 {vr(OA,16)}, {vr(v1r(0),4)}, {vr(SA+8,8)}, v6")
    a(f"v_smfmac_f32_32x32x32_bf16 {vr(OB,16)}, {vr(v1r(0),4)}, {vr(SB+8,8)}, v6")
    a("s_sub_u32 s21, s21, 1")
    a("s_cmp_lg_u32 s21, 0")
    a("s_cbranch_scc1 A_SLOWLOOP")
    a("s_branch A_FINAL")
    a.label("A_CHK")
    a("s_mov_b32 s27, 0")
    a("s_waitcnt vmcnt(4)")
    a("v_cmp_ne_u32 vcc, s74, v153")
    a("s_cmp_eq_u64 vcc, 0")
    a("s_cbranch_scc1 A_CHKD")
    flag_wait_multi(a, [152], 153, sleep=1)
    a("s_branch A_CHKD")
    a.label("A_DONE")
    a("s_waitcnt vmcnt(0)")
    publish(a, SY_CO, 8, "s24", 10)

def gen_p3(a):
    MIMIC = int(os.environ.get("MIMIC", "1"))
    a("s_cmp_ge_u32 s2, 192")
    a("s_cbranch_scc1 F_FIN")
    if PROFB: stamp(a, 1)
    a("s_and_b32 s4, s2, 7")
    a("s_lshl_b32 s4, s4, 2")
    a("s_bfe_u32 s5, s2, 0x20003")
    a("s_add_u32 s4, s4, s5")
    a("s_lshr_b32 s5, s2, 5")
    a("s_and_b32 s6, s3, 1")
    a("s_lshr_b32 s7, s3, 1")
    a("s_lshl_b32 s8, s4, 1")
    a("s_add_u32 s8, s8, s6")
    a("v_lshlrev_b32 v6, 4, v0")
    a("s_cmp_eq_u32 s7, 3")
    a("s_cselect_b32 s9, 0, s7")
    a("s_add_u32 s10, s9, 1")
    a("s_cmp_eq_u32 s10, 3")
    a("s_cselect_b32 s10, 0, s10")
    a("s_add_u32 s11, s10, 1")
    a("s_cmp_eq_u32 s11, 3")
    a("s_cselect_b32 s11, 0, s11")
    a("s_lshl_b32 s12, s7, 13")
    a("v_bfe_u32 v12, v0, 2, 2")
    a("v_lshl_add_u32 v13, v5, 2, v12")
    a("v_lshrrev_b32 v14, 1, v12")
    a("v_lshl_add_u32 v14, v5, 2, v14")
    a("v_mul_u32_u24 v14, 18, v14")
    a("v_and_b32 v12, 1, v12")
    a("v_add3_u32 v14, v14, v12, 16")
    a("v_sub_u32 v14, v14, v13")
    a("v_mul_u32_u24 v14, 192, v14")
    a("v_mul_u32_u24 v13, 192, v13")
    a("v_bfe_u32 v12, v0, 4, 1")
    a("v_lshl_add_u32 v13, v12, 5, v13")
    a("v_and_b32 v12, 3, v0")
    a("v_lshl_add_u32 v13, v12, 3, v13")
    a(f"s_mul_i32 s26, s7, {8*18*192}")
    for j in range(3):
        a(f"s_lshl_b32 s13, s{9+j}, 6")
        a("s_add_u32 s13, s13, s26")
        a(f"v_add_u32 v{8+j}, s13, v13")
    DA = 16; OFr = 64; WF = 100; DY = 148
    NW = 4
    a("s_mul_i32 s13, s6, 6144")
    a("s_lshl_b32 s14, s9, 11")
    a("s_add_u32 s13, s13, s14")
    a(f"s_add_u32 s13, s13, {L_A}")
    a("v_lshlrev_b32 v7, 6, v4")
    a("v_lshl_add_u32 v7, v5, 4, v7")
    a("v_add_u32 v7, s13, v7")
    a(f"ds_read_b128 {vr(DA,4)}, v7")
    a(f"ds_read_b128 {vr(DA+4,4)}, v7 offset:32")
    a("s_lshl_b32 s13, s6, 8")
    a(f"s_add_u32 s13, s13, {L_G}")
    a("v_lshl_add_u32 v7, v4, 3, s13")
    a("ds_read_b64 v[12:13], v7")
    ident_nat(a, DA+8, DA+12, DA+16)
    a("s_waitcnt lgkmcnt(0)")
    a(f"v_mfma_f32_32x32x16_bf16 {vr(DY,16)}, {vr(DA,4)}, {vr(DA+8,4)}, 0")
    a(f"v_mfma_f32_32x32x16_bf16 {vr(DY,16)}, {vr(DA+4,4)}, {vr(DA+12,4)}, {vr(DY,16)}")
    def wreads(i):
        for j in range(3):
            if i == 8: a(f"v_add_u32 v{8+j}, v14, v{8+j}")
            o, d = (3456*i, 1536) if i < 8 else (0, 6912)
            a(f"ds_read_b64_tr_b16 {vr(WF+12*(i%NW)+4*j,2)}, v{8+j} offset:{o}")
            a(f"ds_read_b64_tr_b16 {vr(WF+12*(i%NW)+4*j+2,2)}, v{8+j} offset:{o+d}")
    for i in range(NW): wreads(i)
    a("s_lshr_b32 s13, s4, 2")
    a("s_lshl_b32 s13, s13, 2")
    a("s_add_u32 s13, s13, s7")
    a("s_lshl_b32 s13, s13, 10")
    a(f"s_add_u32 s13, s13, {FL_O}")
    a("v_and_b32 v11, 7, v0")
    a("v_lshl_add_u32 v11, v11, 7, s13")
    a("s_mul_i32 s14, s8, 36864")
    a("s_add_u32 s14, s14, s12")
    a(f"s_add_u32 s14, s14, {OF_OFF}")
    a("s_add_u32 s24, s14, 4096")
    a("s_lshl_b32 s25, s8, 2")
    a("s_add_u32 s25, s25, s7")
    a("s_lshl_b32 s25, s25, 10")
    a(f"s_add_u32 s25, s25, {OX_OFF}")
    a("v_lshlrev_b32 v7, 9, v5")
    a("v_lshl_add_u32 v7, v4, 2, v7")
    a("s_mov_b32 s27, 0xffff0000")
    g = 12; og = 13
    for r in range(16): a(f"v_mul_f32 v{DY+r}, v{DY+r}, v{g}")
    if MIMIC:
        for k in range(8): a(f"v_cvt_pk_bf16_f32 v{DY+2*k}, v{DY+2*k}, v{DY+2*k+1}")
        for k in range(8):
            a(f"v_and_b32 v{DY+2*k+1}, s27, v{DY+2*k}")
            a(f"v_lshlrev_b32 v{DY+2*k}, 16, v{DY+2*k}")
    a("s_mul_i32 s20, s6, 36864")
    for j in range(3):
        a(f"s_sub_u32 s21, s7, s{9+j}")
        a("s_sub_u32 s21, s21, 1")
        a("s_and_b32 s21, s21, 3")
        a("s_lshl_b32 s21, s21, 12")
        a(f"s_mul_i32 s22, s{9+j}, 12288")
        a("s_add_u32 s21, s21, s22")
        a("s_add_u32 s21, s21, s20")
        a(f"v_add_u32 v{164+j}, s21, v6")
    a("s_mul_i32 s21, s9, 12288")
    a("s_add_u32 s21, s21, s20")
    a("v_add_u32 v167, s21, v6")
    srd(a, 20, S_OUT, X_BYTES)
    a("s_lshl_b32 s28, s8, 5")
    a("v_add_u32 v15, s28, v4")
    a("v_mul_u32_u24 v15, 1152, v15")
    a("v_lshl_add_u32 v15, v5, 4, v15")
    a("s_mul_i32 s28, s5, 3")
    a("s_add_u32 s28, s28, s9")
    a("s_lshl_b32 s28, s28, 6")
    flag_wait_multi(a, [11], 2, sleep=1)
    if PROFB: stamp(a, 2)
    for i in range(8):
        a(f"buffer_load_dwordx4 {vr(OFr+4*i,4)}, v6, s[16:19], s{14 if i < 4 else 24} offen offset:{(i%4)*1024} {SC}")
    for k in range(4):
        a(f"buffer_load_dword v{OFr+32+k}, v7, s[16:19], s25 offen offset:{128*k} {SC}")
    for i in range(9):
        nl = min(15, 6*min(NW-1, 8-i))
        a(f"s_waitcnt vmcnt({(7-i+4) if i < 8 else 0}) lgkmcnt({nl})")
        for j in (1, 2, 0):
            cin = "0" if i == 0 else vr(DA+16*j,16)
            a(f"v_mfma_f32_32x32x16_bf16 {vr(DA+16*j,16)}, {vr(WF+12*(i%NW)+4*j,4)}, {vr(OFr+4*i,4)}, {cin}")
        if i + NW < 9: wreads(i+NW)
    if PROFB: stamp(a, 3)
    a("s_barrier")
    a("s_nop 8")
    for j in (1, 2):
        for q in range(4):
            a(f"ds_write_b128 v{164+j}, {vr(DA+16*j+4*q,4)} offset:{1024*q}")
    a("s_cmp_lg_u32 s7, 3")
    a("s_cbranch_scc1 P_OWN")
    for q in range(4):
        a(f"ds_write_b128 v164, {vr(DA+4*q,4)} offset:{1024*q}")
    a("s_waitcnt lgkmcnt(0)")
    a("s_barrier")
    a("s_branch F_FIN")
    a.label("P_OWN")
    a("s_waitcnt lgkmcnt(0)")
    a("s_barrier")
    if PROFB: stamp(a, 4)
    PB = OFr; R = 32
    for q in range(12):
        a(f"ds_read_b128 {vr(PB+4*q,4)}, v167 offset:{1024*q}")
    for sl in range(3):
        a(f"s_waitcnt lgkmcnt({8-4*sl})")
        for k in range(8):
            a(f"v_pk_add_f32 {vr(DA+2*k,2)}, {vr(DA+2*k,2)}, {vr(PB+16*sl+2*k,2)}")
    def rnd():
        for k in range(8): a(f"v_cvt_pk_bf16_f32 v{DA+2*k}, v{DA+2*k}, v{DA+2*k+1}")
        for k in range(8):
            a(f"v_and_b32 v{DA+2*k+1}, s27, v{DA+2*k}")
            a(f"v_lshlrev_b32 v{DA+2*k}, 16, v{DA+2*k}")
    if MIMIC == 1:
        rnd()
        for k in range(8): a(f"v_pk_mul_f32 {vr(DA+2*k,2)}, {vr(DA+2*k,2)}, v[12:13] op_sel:[0,1] op_sel_hi:[1,1]")
        rnd()
        for k in range(8): a(f"v_pk_add_f32 {vr(DA+2*k,2)}, {vr(DA+2*k,2)}, {vr(DY+2*k,2)}")
    else:
        for k in range(8): a(f"v_pk_fma_f32 {vr(DA+2*k,2)}, {vr(DA+2*k,2)}, v[12:13], {vr(DY+2*k,2)} op_sel:[0,1,0] op_sel_hi:[1,1,1]")
    for k in range(8):
        a(f"v_cvt_pk_bf16_f32 v{R+k}, v{DA+2*k}, v{DA+2*k+1}")
    a("s_nop 1")
    for k in (0, 4):
        a(f"v_permlane32_swap_b32 v{R+k}, v{R+k+2}")
        a(f"v_permlane32_swap_b32 v{R+k+1}, v{R+k+3}")
    a(f"buffer_store_dwordx4 {vr(R,4)}, v15, s[20:23], s28 offen")
    a(f"buffer_store_dwordx4 {vr(R+4,4)}, v15, s[20:23], s28 offen offset:32")
    if PROF: a("s_waitcnt vmcnt(0)")
    finish(a)

def cmuls(a, lst):
    for (d, x, w) in lst:
        a(f"v_pk_mul_f32 {vr(d,2)}, {vr(x,2)}, {vr(w,2)} op_sel:[0,0] op_sel_hi:[0,1]")
    for (d, x, w) in lst:
        a(f"v_pk_fma_f32 {vr(d,2)}, {vr(x,2)}, {vr(w,2)}, {vr(d,2)} op_sel:[1,1,0] op_sel_hi:[1,0,1] neg_lo:[0,1,0]")

class Rec:
    def __init__(self): self.l = []
    def __call__(self, t): self.l.append(t)

def cmul_ip(a, lst, T):
    for k, (x, w) in enumerate(lst):
        a(f"v_pk_mul_f32 {vr(T+2*k,2)}, {vr(x,2)}, {vr(w,2)} op_sel:[0,0] op_sel_hi:[0,1]")
    for k, (x, w) in enumerate(lst):
        a(f"v_pk_fma_f32 {vr(x,2)}, {vr(x,2)}, {vr(w,2)}, {vr(T+2*k,2)} op_sel:[1,1,0] op_sel_hi:[1,0,1] neg_lo:[0,1,0]")

def param_issue(a, dst, dch):
    a("s_lshl_b32 s4, s31, 1")
    a("s_add_u32 s4, s4, s8")
    a("s_lshl_b32 s6, s4, 8")
    a("s_lshl_b32 s7, s9, 7")
    a("s_add_u32 s6, s6, s7")
    a("v_lshl_add_u32 v14, v0, 1, s6")
    a("s_lshl_b32 s6, s4, 1")
    a("v_mov_b32 v15, s6")
    a(f"global_load_ushort v{dst}, v15, s[{S_LOGDT}:{S_LOGDT+1}] offset:{2*dch}")
    for k, reg in enumerate((S_LOGA, S_AIM, S_CR, S_CI)):
        a(f"global_load_ushort v{dst+1+k}, v14, s[{reg}:{reg+1}] offset:{256*dch}")
    if dch == 0:
        a("s_lshl_b32 s6, s31, 2")
        a("s_lshl_b32 s7, s30, 1")
        a("s_sub_u32 s7, s7, 1")
        a("v_min_u32 v14, s7, v0")
        a("v_lshl_add_u32 v14, v14, 1, s6")
        a(f"global_load_ushort v157, v14, s[{S_DSKIP}:{S_DSKIP+1}]")

def gen_kgen(a):
    a("s_bfe_u32 s8, s3, 0x10001")
    a("s_and_b32 s9, s3, 1")
    a("s_cmp_ge_u32 s2, 224")
    a("s_cselect_b32 s30, 2, 1")
    a(f"s_mov_b32 s29, {L_KC}")
    a(f"s_cselect_b32 s29, {L_KC4}, s29")
    a("s_cbranch_scc0 K_NF")
    a("s_setprio 3")
    param_issue(a, 8, 0)
    param_issue(a, 150, 2)
    a("s_and_b32 s4, s2, 7")
    a("s_mul_i32 s4, s4, 18432")
    a("s_bfe_u32 s5, s2, 0x20003")
    a("s_lshl_b32 s5, s5, 2")
    a("s_add_u32 s5, s5, s3")
    a("s_sub_u32 s5, s5, 8")
    a("s_mul_i32 s5, s5, 1152")
    a("s_add_u32 s4, s4, s5")
    a("v_min_u32 v14, 8, v0")
    a("v_lshl_add_u32 v14, v14, 7, s4")
    for k, reg in enumerate((S_LOGA, S_AIM, S_CR, S_CI)):
        if XPF: a(f"global_load_dword v{160+k}, v14, s[{reg}:{reg+1}]")
    a("s_barrier")
    a.label("K_NF")
    hi = struct.unpack("<f", struct.pack("<f", LOG2E))[0]
    a(f"s_mov_b32 s70, {fhex(hi)}")
    a(f"s_mov_b32 s71, {fhex(LOG2E-hi)}")
    a(f"s_mov_b32 s72, {fhex(math.log(2.0))}")
    a("s_mov_b32 s73, 0xffff0000")
    a("s_mov_b32 s60, 0x01000100")
    a("s_mov_b32 s61, 0x03020302")
    a("s_mov_b32 s62, 0x01000302")
    a(f"s_mul_i32 s5, s8, {2*KC_STRIDE}")
    a("s_add_u32 s5, s5, s29")
    a("s_mov_b32 s11, 1")
    a.label("K_JOB")
    A = 16; T = 32; W1 = 40; W2 = 42; G1 = 44; G2 = 46; C0 = 14
    RY = 48; RX0 = 64; RX1 = 80; RX2 = 96
    E = 108
    r = Rec()
    r("s_cmp_lg_u32 s30, 1")
    r("s_cbranch_scc1 K_NI")
    param_issue(r, 8, 0)
    r("K_NI:")
    n_issue = len(r.l)
    r(f"s_mul_i32 s6, s9, {KC_STRIDE}")
    r("s_add_u32 s6, s6, s5")
    r(f"v_lshl_add_u32 v{E}, v0, 2, s6")
    for k in range(1, 4): r(f"v_add_u32 v{E+k}, {1088*k}, v{E}")
    r("v_and_b32 v18, 15, v0")
    r("v_lshrrev_b32 v19, 4, v0")
    r(f"v_mul_u32_u24 v{E+4}, 272, v18")
    r(f"v_lshl_add_u32 v{E+4}, v19, 4, v{E+4}")
    r(f"v_add_u32 v{E+4}, s6, v{E+4}")
    r("v_lshrrev_b32 v20, 1, v19")
    r("v_lshlrev_b32 v20, 8, v20")
    r("v_and_b32 v21, 1, v19")
    r("v_lshl_add_u32 v20, v21, 3, v20")
    r("v_lshl_add_u32 v20, v18, 4, v20")
    r(f"v_add_u32 v{E+5}, s5, v20")
    r("v_cmp_gt_u32 vcc, 2, v19")
    r("v_lshlrev_b32 v21, 2, v18")
    r("v_lshlrev_b32 v22, 3, v18")
    r("v_cndmask_b32 v21, v21, v22, vcc")
    r("v_lshl_add_u32 v21, v19, 7, v21")
    r(f"v_add_u32 v{E+6}, s5, v21")
    r("v_mov_b32 v22, 64")
    r("v_mov_b32 v23, 4")
    r("v_cndmask_b32 v22, v22, v23, vcc")
    r(f"v_add_u32 v{E+7}, v22, v{E+6}")
    r("v_lshlrev_b32 v23, 7, v19")
    r("v_lshl_add_u32 v23, v18, 1, v23")
    r(f"v_add_u32 v{E+8}, s5, v23")
    r(f"v_lshl_add_u32 v{E+9}, v0, 1, s5")
    r("v_lshlrev_b32 v20, 4, v4")
    r("v_cmp_eq_u32 vcc, 1, v5")
    r("v_lshlrev_b32 v21, 3, v4")
    r("v_add_u32 v21, 508, v21")
    r("v_cndmask_b32 v20, v20, v21, vcc")
    r(f"v_add_u32 v{E+10}, s5, v20")
    def sel(dst, f, t):
        r(f"v_mov_b32 v{dst}, {f}")
        r(f"v_mov_b32 v20, {t}")
        r(f"v_cndmask_b32 v{dst}, v{dst}, v20, vcc")
    sel(E+11, "0x05040706", "0x03020504")
    sel(E+12, "0x01000302", "0x01000100")
    sel(E+13, "0x01000302", "0x03020504")
    sel(E+14, "0x01000302", "0x05040504")
    r("v_and_b32 v20, 1, v0")
    r("v_cmp_eq_u32 vcc, 1, v20")
    r("v_lshlrev_b32 v22, 4, v0")
    r("v_sub_u32 v21, 1008, v22")
    sel(E+15, "0x01000302", "0x03020302")
    r(f"v_add_u32 v{E+16}, s5, v21")
    r(f"v_add_u32 v{E+17}, s5, v22")
    r(f"v_mov_b32 v{E+18}, 0")
    r("s_lshl_b32 s6, s8, 2")
    r(f"v_add_u32 v{E+19}, s6, v3")
    n_const = len(r.l)
    r("s_waitcnt vmcnt(0)")
    def pack(base, row, src): r(f"v_cvt_pk_bf16_f32 v{base+row}, v{src}, v{src+1}")
    r("v_lshlrev_b32 v8, 16, v8")
    r("v_lshlrev_b32 v6, 16, v9")
    exp_precise(r, 8, 8, T+2, T+3)
    exp_precise(r, 6, 6, T, T+1)
    r("v_lshlrev_b32 v7, 16, v10")
    r("v_cvt_pk_bf16_f32 v8, v8, v8")
    r("v_cvt_pk_bf16_f32 v6, v6, v6")
    r(f"v_lshlrev_b32 v{C0}, 16, v11")
    r("v_and_b32 v8, s73, v8")
    r("v_and_b32 v6, s73, v6")
    r(f"v_lshlrev_b32 v{C0+1}, 16, v12")
    r("v_mul_f32 v7, v7, v8")
    r("v_mul_f32 v6, v6, v8")
    r(f"v_mul_f32 v{C0}, v{C0}, v8")
    r(f"v_mul_f32 v{C0+1}, v{C0+1}, v8")
    r("v_mul_f32 v7, 0.15915494, v7")
    r("v_mul_f32 v6, s70, v6")
    r(f"v_add_f32 v{C0}, v{C0}, v{C0}")
    r(f"v_add_f32 v{C0+1}, v{C0+1}, v{C0+1}")
    r(f"v_mov_b32 v{RY}, 0x3f80")
    Q = A+2
    anc = ((W1, 1, False), (A, 8, True), (G1, 128, False))
    for k, (dst, p, conj) in enumerate(anc):
        r(f"v_mul_f32 v{Q+4*k+1}, {fhex(float(-p if conj else p))}, v7")
    for k, (dst, p, conj) in enumerate(anc):
        r(f"v_mul_f32 v{Q+4*k}, {fhex(-float(p))}, v6")
    for k in range(3): r(f"v_fract_f32 v{Q+4*k+1}, v{Q+4*k+1}")
    for k in range(3): r(f"v_exp_f32 v{Q+4*k}, v{Q+4*k}")
    for k in range(3):
        r(f"v_cos_f32 v{Q+4*k+2}, v{Q+4*k+1}")
        r(f"v_sin_f32 v{Q+4*k+3}, v{Q+4*k+1}")
    r("s_nop 0")
    for k, (dst, p, conj) in enumerate(anc):
        r(f"v_mul_f32 v{dst}, v{Q+4*k}, v{Q+4*k+2}")
        r(f"v_mul_f32 v{dst+1}, v{Q+4*k}, v{Q+4*k+3}")
    Y = lambda j: A + 2*(j-1)
    cmuls(r, [(Y(2), Y(1), Y(1)), (W2, W1, W1), (G2, G1, G1)])
    cmuls(r, [(Y(4), Y(2), Y(2)), (Y(3), Y(2), Y(1))])
    pack(RY, 1, Y(1)); pack(RY, 2, Y(2))
    cmuls(r, [(Y(8), Y(4), Y(4)), (Y(5), Y(4), Y(1)), (Y(6), Y(4), Y(2)), (Y(7), Y(4), Y(3))])
    for j in range(3, 9): pack(RY, j, Y(j))
    cmul_ip(r, [(Y(j), Y(8)) for j in (1,2,3,4)], T)
    cmul_ip(r, [(Y(j), Y(8)) for j in (5,6,7)], T)
    for j in range(1, 8): pack(RY, 8+j, Y(j))
    Z = lambda i: A + 2*i
    r(f"v_mov_b32 v{Z(0)}, v{C0}")
    r(f"v_mov_b32 v{Z(0)+1}, v{C0+1}")
    cmuls(r, [(Z(1), C0, W1), (Z(2), C0, W2), (T, W2, W2)])
    cmuls(r, [(Z(3), Z(1), W2), (Z(4), C0, T), (Z(5), Z(1), T), (Z(6), Z(2), T)])
    cmuls(r, [(Z(7), Z(3), T)])
    for i in range(8): pack(RX0, i, Z(i))
    cmul_ip(r, [(Z(i), G1) for i in (0,2,4,6)], T)
    cmul_ip(r, [(Z(i), G1) for i in (1,3,5,7)], T)
    for i in range(8): pack(RX0, 8+i, Z(i))
    cmul_ip(r, [(Z(i), G1) for i in (0,2,4,6)], T)
    cmuls(r, [(Z(i+1), Z(i), G1) for i in (0,2,4,6)])
    for ii in range(4): pack(RX1, ii, Z(2*ii))
    for ii in range(4): pack(RX1, 4+ii, Z(2*ii+1))
    for q in range(2):
        cmul_ip(r, [(Z(i), G2) for i in (0,4,1,5)], T)
        for k, i in enumerate((0,4,1,5)): pack(RX1, 8+4*q+k, Z(i))
    for q in range(4):
        cmul_ip(r, [(Z(0), G2), (Z(1), G2)], T)
        pack(RX2, 2*q, Z(0)); pack(RX2, 2*q+1, Z(1))
    cmul_ip(r, [(Z(0), G2)], T)
    pack(RX2, 8, Z(0))
    KI = int(os.environ.get("KI", "2")); KM = int(os.environ.get("KM", "4"))
    consts = r.l[n_issue:n_const]; issue = r.l[:n_issue]; maths = r.l[n_const:]
    per = -(-len(maths) // (9 - KM))
    print("kgen", len(consts), len(maths), "per segment", per)
    def bar():
        lab = a.newlabel("K_B")
        a("s_cmp_lg_u32 s30, 1")
        a(f"s_cbranch_scc1 {lab}")
        a("s_barrier")
        a.label(lab)
    if KI == 0:
        for ln in issue: a(ln)
    for ln in consts: a(ln)
    for k in range(1, 10):
        bar()
        if k == KI:
            for ln in issue: a(ln)
        if KM <= k < 9:
            for ln in maths[(k-KM)*per:(k-KM+1)*per]: a(ln)
    stamp(a, 2)
    a(f"s_setprio {os.environ.get('KPR','1')}")
    XF2 = 16; AC = 132
    for (base, rows, dst) in ((RY, 16, RY), (RX0, 16, RX0), (RX1, 16, RX1), (RX2, 10, XF2)):
        for row in range(0, rows, 2):
            o = 68*(row % 4)
            a(f"ds_write2_b32 v{E+row//4}, v{base+row}, v{base+row+1} offset0:{o} offset1:{o+68}")
        for ks in range(4):
            a(f"ds_read_b128 {vr(dst+4*ks,4)}, v{E+4} offset:{ks*64}")
    for t, xf in enumerate((RX0, RX1, XF2)):
        a(f"s_waitcnt lgkmcnt({(15, 9, 0)[t]})")
        for ks in range(4):
            cin = "0" if ks == 0 else vr(AC+4*t,4)
            a(f"v_mfma_f32_16x16x32_bf16 {vr(AC+4*t,4)}, {vr(xf+4*ks,4)}, {vr(RY+4*ks,4)}, {cin}")
    a("s_cmp_eq_u32 s9, 0")
    a("s_cbranch_scc1 K_LEAD")
    a("s_nop 5")
    for t in range(3):
        a(f"ds_write_b128 v{E+17}, {vr(AC+4*t,4)} offset:{KC_STRIDE+1024*t}")
    a("s_waitcnt lgkmcnt(0)")
    a("s_mov_b64 exec, 1")
    a(f"ds_add_u32 v{E+19}, v1 offset:{4*SY_KP}")
    a("s_mov_b64 exec, -1")
    a("s_branch K_NEXT")
    a.label("K_LEAD")
    a(f"s_mov_b32 s97, {SPIN_MAX}")
    a.label("K_PW")
    a(f"ds_read_b32 v2, v{E+19} offset:{4*SY_KP}")
    a("s_waitcnt lgkmcnt(0)")
    a("v_readfirstlane_b32 s96, v2")
    a("s_cmp_ge_u32 s96, s11")
    a("s_cbranch_scc1 K_PWOK")
    a("s_sub_u32 s97, s97, 1")
    a("s_cbranch_scc0 K_PW")
    a.label("K_PWOK")
    for t in range(3):
        a(f"ds_read_b128 {vr(72+4*t,4)}, v{E+17} offset:{KC_STRIDE+1024*t}")
    a("s_waitcnt lgkmcnt(0)")
    for i in range(6):
        a(f"v_pk_add_f32 {vr(AC+2*i,2)}, {vr(AC+2*i,2)}, {vr(72+2*i,2)}")
    for i in range(6):
        a(f"v_cvt_pk_bf16_f32 v{24+i}, v{AC+2*i}, v{AC+2*i+1}")
    a(f"ds_write_b64 v{E+5}, v[24:25]")
    a(f"ds_write_b32 v{E+6}, v26 offset:512")
    a(f"ds_write_b32 v{E+7}, v27 offset:512")
    a(f"ds_write_b16 v{E+8}, v28 offset:1024")
    a(f"ds_write_b16_d16_hi v{E+8}, v28 offset:1056")
    a(f"ds_write_b16 v{E+8}, v29 offset:1088")
    a(f"ds_write_b16_d16_hi v{E+8}, v29 offset:1120")
    a(f"ds_read_u16 v30, v{E+9} offset:1024")
    a(f"ds_read_u16 v31, v{E+9} offset:1152")
    a(f"ds_read_u16 v34, v{E+9} offset:1026")
    a(f"ds_read_u16 v35, v{E+9} offset:1154")
    a(f"ds_read2_b32 v[32:33], v{E} offset0:192 offset1:193")
    a(f"ds_read2_b32 v[36:37], v{E+10} offset0:0 offset1:1")
    a(f"ds_read2_b32 v[38:39], v{E+10} offset0:2 offset1:3")
    a("s_waitcnt lgkmcnt(0)")
    a("v_lshl_or_b32 v30, v34, 16, v30")
    a("v_lshl_or_b32 v31, v35, 16, v31")
    a("v_perm_b32 v64, v33, v33, s60")
    a("v_perm_b32 v65, v32, v32, s61")
    a("v_perm_b32 v66, v32, v32, s62")
    a("v_perm_b32 v67, v32, v32, s60")
    a(f"v_perm_b32 v68, v39, v38, v{E+11}")
    a(f"v_perm_b32 v69, v38, v38, v{E+12}")
    a(f"v_perm_b32 v70, v38, v37, v{E+13}")
    a(f"v_perm_b32 v71, v37, v36, v{E+14}")
    a(f"ds_write_b128 v{E+16}, v[64:67] offset:2048")
    a(f"ds_write_b128 v{E+16}, v[68:71] offset:3072")
    for (src, dst) in ((30, 56), (31, 60)):
        a(f"v_perm_b32 v{dst}, v{src}, v{src}, s61")
        a(f"v_perm_b32 v{dst+1}, v{src}, v{src}, v{E+15}")
        a(f"v_perm_b32 v{dst+2}, v{src}, v{src}, s60")
        a(f"v_perm_b32 v{dst+3}, v{src}, v{src}, s60")
    a(f"ds_write_b128 v{E+16}, v[56:59] offset:1024")
    a(f"ds_write_b128 v{E+16}, v[60:63]")
    a("s_mov_b64 exec, 0xffff")
    a(f"ds_write_b32 v{E}, v{E+18} offset:4096")
    a(f"ds_write_b32 v{E}, v{E+18} offset:{KC_STRIDE+4096}")
    a("s_mov_b64 exec, -1")
    for i in range(4):
        a(f"ds_read_b128 {vr(72+8*i,4)}, v{E+17} offset:{1024*i}")
        a(f"ds_read_b32 v{76+8*i}, v{E+17} offset:{1024*i+16}")
    for i in range(4):
        a(f"s_waitcnt lgkmcnt({6-2*i+i})")
        for k in range(4):
            a(f"v_alignbit_b32 v{72+8*i+k}, v{73+8*i+k}, v{72+8*i+k}, 16")
        a(f"ds_write_b128 v{E+17}, {vr(72+8*i,4)} offset:{KC_STRIDE+1024*i}")
    a("s_waitcnt lgkmcnt(0)")
    lds_add(a, SY_KR)
    a.label("K_NEXT")
    for k in range(5): a(f"v_mov_b32 v{8+k}, v{150+k}")
    a(f"s_add_u32 s5, s5, {4*KC_STRIDE}")
    a("s_add_u32 s11, s11, 1")
    a("s_cmp_le_u32 s11, s30")
    a("s_cbranch_scc1 K_JOB")
    stamp(a, 3)

def gen_conv(a):
    a("s_setprio 3")
    a("s_lshl_b32 s13, s30, 1")
    a("s_sub_u32 s14, s13, 1")
    a("s_sub_u32 s8, s3, 8")
    a("v_and_b32 v10, 15, v0")
    a("v_lshrrev_b32 v11, 4, v0")
    a("v_sub_u32 v6, 15, v10")
    a("v_lshl_add_u32 v6, v11, 3, v6")
    a("v_and_b32 v7, 1, v6")
    a(f"v_mul_u32_u24 v7, {KC_STRIDE-2}, v7")
    a("v_lshl_add_u32 v6, v6, 1, v7")
    a("s_lshl_b32 s5, s8, 7")
    a("s_add_u32 s5, s5, s29")
    a("v_add_u32 v6, s5, v6")
    a("v_add_u32 v7, 1024, v6")
    a("v_add_u32 v8, 2048, v6")
    a("v_add_u32 v9, 3072, v6")
    a("v_lshl_add_u32 v4, v10, 1, v11")
    a("s_lshl_b32 s5, s8, 3")
    a("s_add_u32 s5, s5, 2")
    a("v_add_u32 v4, s5, v4")
    a("s_lshl_b32 s5, s8, 14")
    a(f"s_add_u32 s6, s5, {L_P[2]-32768}")
    a("s_cmp_ge_u32 s8, 2")
    a("s_cselect_b32 s5, s6, s5")
    a("v_lshrrev_b32 v5, 2, v0")
    a("v_and_b32 v5, 8, v5")
    a("v_xor_b32 v5, v5, v0")
    a("v_lshl_add_u32 v5, v5, 4, s5")
    a("v_bfe_u32 v10, v4, 2, 2")
    a("v_lshlrev_b32 v10, 4, v10")
    a("v_lshl_add_u32 v10, v4, 6, v10")
    a(f"v_add_u32 v10, {L_U}, v10")
    a("v_add_u32 v4, 4, v4")
    a("v_bfe_u32 v11, v4, 2, 2")
    a("v_lshlrev_b32 v11, 4, v11")
    a("v_lshl_add_u32 v11, v4, 6, v11")
    a(f"v_add_u32 v11, {L_U}, v11")
    a(f"s_mul_i32 s5, s8, {16*36864}")
    a("s_lshl_b32 s24, s31, 7")
    a(f"s_add_u32 s25, s24, {FL_A}")
    a("s_add_u32 s24, s24, s5")
    a(f"s_add_u32 s24, s24, {AF_OFF}")
    a("s_mov_b32 s26, 0")
    a("s_mov_b32 s27, 0")
    a("v_lshlrev_b32 v12, 16, v157")
    a("s_nop 0")
    for c in range(4): a(f"v_readlane_b32 s{20+c}, v12, {c}")
    AC = 12
    def F(b, mu): return (44 if b == 0 else 104) + 4*mu
    def X(b, tau):
        if tau == 7: return 164
        return (76 if b == 0 else 136) + 4*tau
    def loads(b):
        out = []
        for k in range(8):
            mp = 7-k
            base = 6 + (mp >> 1); o = (mp & 1)*128 + 16*b
            out.append(f"ds_read2_b32 {vr(F(b,k),2)}, v{base} offset0:{o} offset1:{o+1}")
            out.append(f"ds_read2_b32 {vr(F(b,k)+2,2)}, v{base} offset0:{o+2} offset1:{o+3}")
            out.append(f"ds_read_b128 {vr(X(b,k),4)}, v{10+b} offset:{2048*k}")
        return out
    def unit(b, inter):
        order = [(0, 7)] + [(mu, t) for mu in range(8) for t in range(mu, 8) if (mu, t) != (0, 7)]
        inter = list(inter)
        for k, (mu, t) in enumerate(order):
            cin = "0" if (b == 0 and mu == 0) else vr(AC+4*t,4)
            a(f"v_mfma_f32_16x16x32_bf16 {vr(AC+4*t,4)}, {vr(F(b,mu),4)}, {vr(X(b,t-mu),4)}, {cin}")
            if k >= 1 and inter: a(inter.pop(0))
        assert not inter
    lds_wait(a, SY_UREADY, 1, sleep=1)
    lds_wait(a, SY_GDONE, 4)
    lds_wait(a, SY_KR, "s13")
    get_nonce(a)
    stamp(a, 4)
    a.label("C_JOB")
    for ln in loads(0): a(ln)
    a("s_mov_b32 s10, 16")
    a.label("C_LOOP")
    a("s_waitcnt lgkmcnt(0)")
    unit(0, loads(1))
    a("s_waitcnt lgkmcnt(0)")
    adv = [f"v_add_u32 v{6+k}, {2*KC_STRIDE}, v{6+k}" for k in range(4)] + ["v_xor_b32 v10, s10, v10", "v_xor_b32 v11, s10, v11"]
    unit(1, adv + loads(0))
    a("s_add_u32 s10, s10, 32")
    a("s_nop 4")
    for t in range(8):
        a(f"ds_write_b128 v5, {vr(AC+4*t,4)} offset:{1024*t}")
    a("v_xor_b32 v5, 8192, v5")
    a("s_cmp_eq_u32 s10, 48")
    a("s_cbranch_scc1 C_LOOP")
    a("s_waitcnt lgkmcnt(0)")
    lds_add(a, SY_PD)
    stamp(a, 5)
    Ub = 12; Tb = 20; Pb = 44; Ad = 36
    a("s_lshl_b32 s5, s8, 11")
    a(f"v_bfe_u32 v{Ad}, v0, 1, 4")
    a(f"v_and_b32 v{Ad+1}, 1, v0")
    a(f"v_mul_u32_u24 v{Ad+1}, 40, v{Ad+1}")
    a(f"v_xor_b32 v{Ad}, v{Ad}, v{Ad+1}")
    a(f"v_and_b32 v{Ad+1}, 32, v0")
    a(f"v_lshl_add_u32 v{Ad}, v{Ad+1}, 1, v{Ad}")
    a(f"v_lshl_add_u32 v{Ad}, v{Ad}, 4, s5")
    a(f"v_add_u32 v{Ad+1}, {L_P[2]}, v{Ad}")
    a(f"v_bfe_u32 v{Ad+2}, v0, 2, 2")
    a(f"v_lshlrev_b32 v{Ad+2}, 4, v{Ad+2}")
    a(f"v_xor_b32 v{Ad+2}, s27, v{Ad+2}")
    a(f"v_lshl_add_u32 v{Ad+2}, v0, 6, v{Ad+2}")
    a("s_lshl_b32 s5, s8, 12")
    a(f"s_add_u32 s5, s5, {L_U+2048}")
    a(f"v_add_u32 v{Ad+2}, s5, v{Ad+2}")
    a(f"v_xor_b32 v{Ad+3}, 16, v{Ad+2}")
    for c in range(2):
        a(f"ds_read_b128 {vr(Ub+4*c,4)}, v{Ad+2+c}")
    a("v_lshrrev_b32 v4, 2, v0")
    a("v_mul_u32_u24 v4, 36864, v4")
    a(f"v_and_b32 v{Ad+4}, 3, v0")
    a(f"v_lshl_add_u32 v4, v{Ad+4}, 4, v4")
    a("s_add_u32 s26, s26, 4")
    a("s_waitcnt lgkmcnt(0)")
    for c in range(2):
        for k in range(4):
            a(f"v_lshlrev_b32 v{Tb+8*c+2*k}, 16, v{Ub+4*c+k}")
            a(f"v_and_b32 v{Tb+8*c+2*k+1}, s73, v{Ub+4*c+k}")
        for k in range(8):
            a(f"v_mul_f32 v{Tb+8*c+k}, s{20+c}, v{Tb+8*c+k}")
    for k in range(8):
        a(f"v_cvt_pk_bf16_f32 v{Ub+k}, v{Tb+2*k}, v{Tb+2*k+1}")
    for k in range(8):
        a(f"v_lshlrev_b32 v{Tb+2*k}, 16, v{Ub+k}")
        a(f"v_and_b32 v{Tb+2*k+1}, s73, v{Ub+k}")
    lds_wait(a, SY_PD, "s26")
    for c in range(2):
        for w in range(4):
            for hh in range(2):
                a(f"ds_read_b128 {vr(Pb+32*c+8*w+4*hh,4)}, v{Ad+w//2} offset:{16384*(w%2)+8192*c+256*hh}")
    for c in range(2):
        P = Pb + 32*c
        a(f"s_waitcnt lgkmcnt({8-8*c})")
        for k in range(4):
            a(f"v_pk_add_f32 {vr(P+2*k,2)}, {vr(P+2*k,2)}, {vr(P+8+2*k,2)}")
            a(f"v_pk_add_f32 {vr(P+16+2*k,2)}, {vr(P+16+2*k,2)}, {vr(P+24+2*k,2)}")
        for k in range(4):
            a(f"v_pk_add_f32 {vr(P+2*k,2)}, {vr(P+2*k,2)}, {vr(P+16+2*k,2)}")
        for k in range(4):
            a(f"v_cvt_pk_bf16_f32 v{P+8+k}, v{P+2*k}, v{P+2*k+1}")
        for k in range(4):
            a(f"v_lshlrev_b32 v{P+2*k}, 16, v{P+8+k}")
            a(f"v_and_b32 v{P+2*k+1}, s73, v{P+8+k}")
        for k in range(4):
            a(f"v_pk_add_f32 {vr(P+2*k,2)}, {vr(P+2*k,2)}, {vr(Tb+8*c+2*k,2)}")
        for k in range(4):
            a(f"v_cvt_pk_bf16_f32 v{Ub+4*c+k}, v{P+2*k}, v{P+2*k+1}")
        a(f"buffer_store_dwordx4 {vr(Ub+4*c,4)}, v4, s[16:19], s24 offen offset:{64*c} sc1")
    a("s_lshr_b32 s5, s26, 2")
    a("s_cmp_ge_u32 s5, s30")
    a("s_cbranch_scc1 C_PUB")
    lds_add(a, SY_WP)
    a("s_add_u32 s24, s24, 128")
    a("s_mov_b32 s27, 32")
    a("s_mov_b32 s20, s22")
    a("s_mov_b32 s21, s23")
    lds_wait(a, SY_WP, 4)
    a("s_branch C_JOB")
    a.label("C_PUB")
    a("s_waitcnt vmcnt(0)")
    a("s_mov_b64 exec, 1")
    a(f"ds_add_rtn_u32 v2, v3, v1 offset:{4*SY_CA}")
    a("s_mov_b64 exec, -1")
    a("s_waitcnt lgkmcnt(0)")
    a("v_readfirstlane_b32 s96, v2")
    a("s_cmp_lg_u32 s96, 3")
    a("s_cbranch_scc1 C_END")
    a(f"v_lshlrev_b32 v{Ad}, 7, v0")
    a(f"v_mov_b32 v{Ad+1}, s74")
    a("s_mov_b32 exec_lo, s14")
    a("s_mov_b32 exec_hi, 0")
    a(f"buffer_store_dword v{Ad+1}, v{Ad}, s[16:19], s25 offen sc1")
    a("s_mov_b64 exec, -1")
    a.label("C_END")
    a("s_cmp_lg_u32 s3, 11")
    a("s_cbranch_scc1 F_FIN")
    a("s_cmp_lt_u32 s2, 192")
    a("s_cbranch_scc1 M_GATE")
    finish(a)

def fetch_nonce(a, tag, first_issued=False):
    ok = tag + "_NOK"
    for k in range(4):
        if not (first_issued and k == 0):
            a(f"s_load_dword s74, s[{S_DBG}:{S_DBG+1}], {64*k}")
        a("s_waitcnt lgkmcnt(0)")
        a("s_cmp_lg_u32 s74, 0")
        a(f"s_cbranch_scc1 {ok}")
        a("s_sleep 8")
    a(f"s_mov_b32 s97, {SPIN_MAX>>4}")
    a("v_mov_b32 v20, 0")
    a.label(tag + "_NL")
    a(f"global_load_dword v21, v20, s[{S_DBG}:{S_DBG+1}] sc1")
    a("s_waitcnt vmcnt(0)")
    a("v_readfirstlane_b32 s74, v21")
    a("s_cmp_lg_u32 s74, 0")
    a(f"s_cbranch_scc1 {ok}")
    a("s_sub_u32 s97, s97, 1")
    a(f"s_cbranch_scc0 {tag}_NL")
    a("s_mov_b32 s74, 1")
    a.label(ok)
    a("v_mov_b32 v21, s74")

def gen_free(a):
    a("s_sub_u32 s30, s2, 224")
    a("s_and_b32 s4, s2, 3")
    a("s_lshl_b32 s4, s4, 3")
    a("s_lshr_b32 s5, s30, 2")
    a("s_add_u32 s4, s4, s5")
    a("s_lshl_b32 s4, s4, 3")
    a("s_add_u32 s4, s4, s3")
    a(f"s_mov_b32 s10, {X_BYTES}")
    a("s_mov_b32 s11, 0x20000")
    a("s_mul_i32 s5, s4, 9216")
    a("s_mul_i32 s20, s3, 9216")
    a("v_lshlrev_b32 v6, 4, v0")
    for g in range(3):
        a(f"s_add_u32 m0, s20, {4096*g}")
        a(f"s_add_u32 s6, s5, {4096*g}")
        for i in range(4 if g < 2 else 1):
            a(f"buffer_load_dwordx4 v6, s[8:11], s6 offen offset:{1024*i} lds")
    GX = 72; GW = 108; UX = 32
    a("s_barrier")
    a("v_bfe_u32 v9, v0, 2, 2")
    a("v_mul_u32_u24 v9, 1152, v9")
    a("v_lshrrev_b32 v10, 4, v0")
    a("v_lshl_add_u32 v9, v10, 5, v9")
    a("v_and_b32 v10, 3, v0")
    a("v_lshl_add_u32 v9, v10, 3, v9")
    a("v_add_u32 v9, s20, v9")
    a(f"s_add_u32 s5, s5, {UT_OFF}")
    a("s_waitcnt vmcnt(0)")
    stamp(a, 1)
    for i in range(9):
        a(f"ds_read_b64_tr_b16 {vr(UX+4*i,2)}, v9 offset:{128*i}")
        a(f"ds_read_b64_tr_b16 {vr(UX+4*i+2,2)}, v9 offset:{128*i+4608}")
        if i == 5: a("s_waitcnt lgkmcnt(6)")
    a("s_waitcnt lgkmcnt(0)")
    for i in range(9):
        a(f"buffer_store_dwordx4 {vr(UX+4*i,4)}, v6, s[16:19], s5 offen offset:{1024*(i%4)} sc1")
        if i % 4 == 3: a("s_add_u32 s5, s5, 4096")
    fetch_nonce(a, "R")
    a(f"ds_write_b32 v3, v21 offset:{4*SY_NONCE}")
    a("s_lshl_b32 s7, s30, 7")
    a(f"s_add_u32 s7, s7, {FL_UT}")
    a("s_waitcnt vmcnt(0)")
    publish(a, SY_UP, 8, "s7", 12)
    lds_add(a, SY_GDONE)
    stamp(a, 2)
    a("s_cmp_eq_u32 s3, 2")
    a("s_cbranch_scc1 F_GATE")
    a("s_cmp_lg_u32 s3, 3")
    a("s_cbranch_scc1 F_ATTN")
    gather_setup(a, 3)
    flag_wait_multi(a, [16], 12, sleep=2)
    gather_issue(a)
    a("s_waitcnt vmcnt(0)")
    lds_add(a, SY_UREADY)
    stamp(a, 4)
    a(f"s_sleep {os.environ.get('FS','32')}")
    lds_add(a, SY_CQ)
    a("s_branch F_ATTN")

def gen_gate(a):
    GX = 72; GW = 108
    a("s_and_b32 s4, s2, 3")
    a("s_lshl_b32 s4, s4, 6")
    a("s_lshr_b32 s5, s2, 2")
    a("s_add_u32 s4, s4, s5")
    a("s_mul_i32 s5, s4, 9216")
    a("v_and_b32 v8, 7, v0")
    a("v_lshlrev_b32 v8, 4, v8")
    a("v_lshrrev_b32 v11, 3, v0")
    a("v_mul_u32_u24 v10, 1152, v11")
    a("v_add3_u32 v10, v10, v8, s5")
    for i in range(9):
        a(f"global_load_dwordx4 {vr(GX+4*i,4)}, v10, s[{S_X}:{S_X+1}] offset:{128*i}")
    for i in range(9):
        a(f"global_load_dwordx4 {vr(GW+4*i,4)}, v8, s[{S_GW}:{S_GW+1}] offset:{128*i}")
    get_nonce(a)
    a("s_waitcnt vmcnt(0)")
    a("s_mov_b32 s73, 0xffff0000")
    for k in range(8): a(f"v_mov_b32 v{16+k}, 0")
    a("s_waitcnt lgkmcnt(0)")
    for i in range(9):
        for k in range(4):
            a(f"v_lshlrev_b32 v{32+2*k}, 16, v{GX+4*i+k}")
            a(f"v_and_b32 v{33+2*k}, s73, v{GX+4*i+k}")
            a(f"v_lshlrev_b32 v{40+2*k}, 16, v{GW+4*i+k}")
            a(f"v_and_b32 v{41+2*k}, s73, v{GW+4*i+k}")
        for k in range(4):
            a(f"v_pk_mul_f32 {vr(32+2*k,2)}, {vr(32+2*k,2)}, {vr(40+2*k,2)}")
        for k in range(4):
            a(f"v_cvt_pk_bf16_f32 v{40+k}, v{32+2*k}, v{33+2*k}")
        for k in range(4):
            a(f"v_lshlrev_b32 v{32+2*k}, 16, v{40+k}")
            a(f"v_and_b32 v{33+2*k}, s73, v{40+k}")
        for k in range(4):
            a(f"v_pk_add_f32 {vr(16+2*k,2)}, {vr(16+2*k,2)}, {vr(32+2*k,2)}")
    a("v_pk_add_f32 v[16:17], v[16:17], v[18:19]")
    a("v_pk_add_f32 v[20:21], v[20:21], v[22:23]")
    a("v_pk_add_f32 v[16:17], v[16:17], v[20:21]")
    a("v_add_f32 v24, v16, v17")
    a("s_nop 1")
    a("v_add_f32_dpp v24, v24, v24 quad_perm:[1,0,3,2] row_mask:0xf bank_mask:0xf")
    a("s_nop 1")
    a("v_add_f32_dpp v24, v24, v24 quad_perm:[2,3,0,1] row_mask:0xf bank_mask:0xf")
    a("s_nop 1")
    a("v_add_f32_dpp v24, v24, v24 row_half_mirror row_mask:0xf bank_mask:0xf")
    a("v_cvt_pk_bf16_f32 v24, v24, v24")
    a("v_and_b32 v24, s73, v24")
    a(f"v_mul_f32 v24, {fhex(-LOG2E)}, v24")
    a("v_exp_f32 v24, v24")
    a("s_nop 0")
    a("v_add_f32 v24, 1.0, v24")
    a("v_rcp_f32 v24, v24")
    a("s_nop 0")
    a("v_cvt_pk_bf16_f32 v24, v24, v24")
    a("v_and_b32 v24, s73, v24")
    a("v_sub_f32 v25, 1.0, v24")
    a("v_cvt_pk_bf16_f32 v25, v25, v25")
    a("v_and_b32 v25, s73, v25")
    a("v_lshlrev_b32 v11, 3, v11")
    a("s_lshl_b32 s7, s4, 6")
    a(f"s_add_u32 s7, s7, {G_OFF}")
    a("s_mov_b32 exec_lo, 0x01010101")
    a("s_mov_b32 exec_hi, 0x01010101")
    a("buffer_store_dwordx2 v[24:25], v11, s[16:19], s7 offen sc1")
    a("s_mov_b64 exec, -1")
    a("s_lshl_b32 s7, s4, 7")
    a(f"s_add_u32 s7, s7, {FL_G}")
    a("s_waitcnt vmcnt(0)")
    flag_set(a, "s7", 12)
    stamp(a, 3)
    a("s_branch F_ATTN")

def gen_misc(a):
    a.label("M_GATE")
    a("v_lshlrev_b32 v6, 4, v0")
    for k in range(3):
        a(f"v_add_u32 v7, {64*k}, v0")
        a("v_mul_u32_u24 v8, 171, v7")
        a("v_lshrrev_b32 v8, 11, v8")
        a("v_mul_u32_u24 v8, 960, v8")
        a(f"v_add_u32 v{20+k}, v8, v6")
    a("s_lshr_b32 s7, s2, 5")
    a("s_mul_i32 s5, s7, 192")
    a(f"s_add_u32 s20, s{S_WO}, s5")
    a(f"s_addc_u32 s21, s{S_WO+1}, 0")
    a("s_mov_b32 s6, 0")
    lds_wait(a, SY_CA, 4, sleep=8)
    a.label("M_WL")
    a("s_mov_b32 m0, s6")
    a("s_add_u32 s6, s6, 3072")
    for i in range(3):
        a(f"global_load_lds_dwordx4 v{20+i}, s[20:21] offset:{1024*i}")
    a(f"s_add_u32 s20, s20, {16*1152}")
    a("s_addc_u32 s21, s21, 0")
    a("s_waitcnt vmcnt(6)")
    a("s_cmp_lt_u32 s6, 110592")
    a("s_cbranch_scc1 M_WL")
    a("v_min_u32 v9, 47, v0")
    a("s_mul_i32 s5, s7, 6144")
    a(f"s_add_u32 s5, s5, {FL_A}")
    a("v_lshl_add_u32 v9, v9, 7, s5")
    a("s_and_b32 s4, s2, 7")
    a("s_lshl_b32 s4, s4, 2")
    a("s_bfe_u32 s5, s2, 0x20003")
    a("s_add_u32 s4, s4, s5")
    a("s_lshl_b32 s5, s4, 10")
    a(f"s_add_u32 s5, s5, {FL_G}")
    a("v_and_b32 v10, 7, v0")
    a("v_lshl_add_u32 v10, v10, 7, s5")
    flag_wait_multi(a, [9, 10], 12, sleep=32)
    a(f"s_mul_i32 s5, s4, {2*36864}")
    a("s_mul_i32 s6, s7, 6144")
    a("s_add_u32 s5, s5, s6")
    a(f"s_add_u32 s5, s5, {AF_OFF}")
    for tt in range(2):
        for hf in range(2):
            a(f"s_mov_b32 m0, {L_A + 6144*tt + 3072*hf}")
            a(f"s_add_u32 s6, s5, {36864*tt + 3072*hf}")
            for i in range(3):
                a(f"buffer_load_dwordx4 v6, s[16:19], s6 offen offset:{1024*i} {SC} lds")
    a(f"s_mov_b32 m0, {L_G}")
    a("s_lshl_b32 s5, s4, 9")
    a(f"s_add_u32 s5, s5, {G_OFF}")
    a("s_mov_b32 exec_hi, 0")
    a(f"buffer_load_dwordx4 v6, s[16:19], s5 offen {SC} lds")
    a("s_mov_b64 exec, -1")
    a("s_waitcnt vmcnt(0)")
```

```python
import math
TILE=110592
VOFF=73728
QKV_OFF=0
QKV_SZ=64*TILE
OF_OFF=QKV_OFF+QKV_SZ
OF_SZ=64*36*1024
WOF_OFF=OF_OFF+OF_SZ
WOF_SZ=18*36*1024
UT_OFF=WOF_OFF+WOF_SZ
UT_SZ=256*9216
AF_OFF=UT_OFF+UT_SZ
AF_SZ=64*576*64
G_OFF=AF_OFF+AF_SZ
G_SZ=2048*8
FL_OFF=G_OFF+G_SZ
FL_UT=FL_OFF
FL_QKV=FL_UT+32*128
FL_G=FL_QKV+224*128
FL_A=FL_G+256*128
FL_O=FL_A+288*128
OX_OFF=FL_O+256*128
OX_SZ=64*32*128
WS_USED=OX_OFF+OX_SZ
X_BYTES=2048*576*2
W_BYTES=576*1728*2
WO_BYTES=576*576*2
QSCALE = (18**-0.5)*math.log2(math.e)
S_X=32; S_LOGA=34; S_AIM=36; S_CR=38; S_CI=40; S_LOGDT=42; S_DSKIP=44; S_W=48; S_WO=50; S_GW=52; S_OUT=54; S_DBG=56; S_WS=58
L_RING=0
KC_STRIDE=4416
L_KC=131072
L_KC4=L_KC-4*KC_STRIDE
L_U=32768
L_P=[0, 16384, 51200, 67584]
L_UEND=L_KC+4*KC_STRIDE
L_XCH=131072
L_A=110592
L_G=L_A+12288
L_SYNC=163840-256
LDS_TOTAL=163840
SY_FULL=0
SY_FREE=12
SY_NONCE=24
SY_GO=4
SY_UREADY=26
SY_GDONE=1
SY_KP=6
SY_UP=8
SY_WP=9
SY_KR=2
SY_PD=3
SY_GO3=27
SY_ISS=28
SY_CQ=29
SY_CA=30
SY_CO=31
SY_STG=11
assert L_UEND <= L_SYNC
if __name__=="__main__":
    for k,v in list(globals().items()):
        if k.isupper(): print(k,v)
```

```python
class Asm:
    def __init__(self):
        self.lines = []
        self._lab = 0
    def __call__(self, s=""):
        for ln in s.split("\n"):
            ln = ln.strip()
            if ln == "": continue
            if ln.endswith(":") or ln.startswith(".") or ln.startswith(";"):
                self.lines.append(ln)
            else:
                self.lines.append("    " + ln)
    def label(self, name): self.lines.append(name + ":")
    def newlabel(self, base="L"):
        self._lab += 1
        return f"{base}_{self._lab}"
    def text(self): return "\n".join(self.lines) + "\n"

def vr(b, n=1):
    return f"v{b}" if n == 1 else f"v[{b}:{b+n-1}]"
def sr(b, n=1):
    return f"s{b}" if n == 1 else f"s[{b}:{b+n-1}]"
def ar(b, n=1):
    return f"a{b}" if n == 1 else f"a[{b}:{b+n-1}]"

def srd(a, d, base, nbytes):
    if d != base:
        a(f"s_mov_b32 s{d}, s{base}")
        a(f"s_mov_b32 s{d+1}, s{base+1}")
    a(f"s_mov_b32 s{d+2}, {nbytes}")
    a(f"s_mov_b32 s{d+3}, 0x20000")

import struct
def f2u(x): return struct.unpack("<I", struct.pack("<f", x))[0]
def fhex(x): return "0x%08x" % f2u(x)

def kernel_begin(a, name):
    a(f".globl {name}")
    a(".p2align 8")
    a(f".type {name},@function")
    a.label(name)

def kernel_desc(name, vgpr, sgpr=102, accum=None):
    if accum is None: accum = (vgpr + 3) // 4 * 4
    return f""".p2align 6
.amdhsa_kernel {name}
  .amdhsa_next_free_vgpr {vgpr}
  .amdhsa_next_free_sgpr {sgpr}
  .amdhsa_accum_offset {accum}
  .amdhsa_group_segment_fixed_size 0
  .amdhsa_kernarg_size 112
  .amdhsa_user_sgpr_count 2
  .amdhsa_user_sgpr_kernarg_segment_ptr 1
  .amdhsa_system_sgpr_workgroup_id_x 1
.end_amdhsa_kernel
"""


import os
PROF = bool(int(os.environ.get("PROF", "0")))
PROF_OFF = 18*1024*1024
PROF_SZ = 4*256*16*64
def stamp(a, i):
    if PROF:
        a(f"s_memrealtime s[{80+2*i}:{81+2*i}]")
def stamp_init(a):
    if PROF:
        for i in range(1,8): a(f"s_mov_b64 s[{80+2*i}:{81+2*i}], 0")
        stamp(a, 0)
def stamp_flush(a, kidx, ws_sreg=58):
    if not PROF: return
    if os.environ.get("DBGOUT"):
        stamp(a, 7)
        a("s_waitcnt lgkmcnt(0)")
        a("s_mov_b64 exec, 1")
        for (slot, wave, free, st, op) in eval(os.environ["DBGOUT"]):
            lab = a.newlabel("DB")
            a(f"s_cmp_lg_u32 s3, {wave}")
            a(f"s_cbranch_scc1 {lab}")
            a("s_cmp_ge_u32 s2, 224")
            a(f"s_cbranch_scc{0 if free else 1} {lab}")
            a(f"s_sub_u32 s75, s{80+2*st}, s74")
            a("v_mov_b32 v1, s75")
            a(f"v_mov_b32 v2, {4*slot}")
            a(f"global_atomic_{op} v2, v1, s[56:57]")
            a.label(lab)
        return
    if os.environ.get("PROF","0") != "4": stamp(a, 7)
    if os.environ.get("HWID","0") == "1":
        a("s_waitcnt lgkmcnt(0)")
        a("s_getreg_b32 s92, hwreg(HW_REG_HW_ID)")
        a("s_getreg_b32 s93, hwreg(HW_REG_XCC_ID)")
    a("s_mov_b64 exec, -1")
    a(f"s_mov_b32 s76, s{ws_sreg}")
    a(f"s_mov_b32 s77, s{ws_sreg+1}")
    a(f"s_mov_b32 s78, {PROF_OFF+PROF_SZ}")
    a("s_mov_b32 s79, 0x20000")
    a(f"s_add_u32 s75, s2, {kidx*256}")
    a("s_lshl_b32 s75, s75, 4")
    a("s_add_u32 s75, s75, s3")
    a("s_lshl_b32 s75, s75, 6")
    a(f"s_add_u32 s75, s75, {PROF_OFF}")
    a("s_waitcnt lgkmcnt(0)")
    a("v_mov_b32 v1, 0")
    for i in range(16):
        a(f"v_writelane_b32 v1, s{80+i}, {i}")
    a("v_mbcnt_lo_u32_b32 v2, -1, 0")
    a("v_lshlrev_b32 v2, 2, v2")
    a("s_mov_b64 exec, 0xffff")
    a("buffer_store_dword v1, v2, s[76:79], s75 offen")

def cstamp(a, i):
    if PROF:
        a(f"s_memtime s[{80+2*i}:{81+2*i}]")
```

```python
import os, math, struct
from asmlib import *
from layout2 import *

LOG2E = math.log2(math.e)
SC = os.environ.get("SC", "sc1")
SCKV = os.environ.get("SCKV", "")
SPIN_MAX = 1 << 22
XP = os.environ.get("XP","")
GM = os.environ.get("GM","early")
GPE = os.environ.get("GPE","b7")
XPF = os.environ.get("XPF","0") == "1"
CPF = os.environ.get("CPF", "1" if PROF else "0") == "1"
PROG = os.environ.get("PROG","1") == "1"
FINE = os.environ.get("FINE","0") == "1"
MINSLEEP = int(os.environ.get("MINSLEEP","0"))
ULATE = os.environ.get("ULATE","0") == "1"
STG = 32768
ROT = os.environ.get("ROT","4")
PROFB = os.environ.get("PROF","0") == "2"
PROFC = os.environ.get("PROF","0") == "3"
PROFD = os.environ.get("PROF","0") == "4"
_stamp = stamp
def stamp(a, i, force=False):
    if PROFD: return
    if PROFC and not force and i not in (0,7): return
    _stamp(a, i)

def emit_tau(a, dst, src, t):
    a(f"v_lshrrev_b32 v{t}, 1, v{src}")
    a(f"v_xor_b32 v{t}, v{t}, v{src}")
    a(f"v_and_b32 v{t}, 4, v{t}")
    a(f"v_mul_u32_u24 v{t}, 3, v{t}")
    a(f"v_xor_b32 v{dst}, v{src}, v{t}")

def emit_ident(a, dst, e, t0, t1, n=4):
    a(f"v_and_b32 v{t0}, 1, v{e}")
    a(f"v_lshlrev_b32 v{t0}, 4, v{t0}")
    a(f"v_mov_b32 v{t1}, 0x3f80")
    a(f"v_lshlrev_b32 v{t0}, v{t0}, v{t1}")
    a(f"v_ashrrev_i32 v{t1}, 1, v{e}")
    for q in range(n):
        a(f"v_cmp_eq_u32 s[{60+2*q}:{61+2*q}], {q}, v{t1}")
    a("s_nop 1")
    for q in range(n):
        a(f"v_cndmask_b32 v{dst+q}, 0, v{t0}, s[{60+2*q}:{61+2*q}]")

def ident_nat(a, lo, hi, t):
    a(f"v_lshlrev_b32 v{t}, 3, v5")
    a(f"v_sub_u32 v{t}, v4, v{t}")
    emit_ident(a, lo, t, t+1, t+2)
    a(f"v_subrev_u32 v{t}, 16, v{t}")
    emit_ident(a, hi, t, t+1, t+2)

def exp_precise(a, dst, x, t0, t1):
    a(f"v_mul_f32 v{t0}, s70, v{x}")
    a(f"v_fma_f32 v{t1}, v{x}, s70, -v{t0}")
    a(f"v_fma_f32 v{t1}, v{x}, s71, v{t1}")
    a(f"v_exp_f32 v{t0}, v{t0}")
    a(f"v_mul_f32 v{t1}, s72, v{t1}")
    a(f"v_fma_f32 v{dst}, v{t0}, v{t1}, v{t0}")

def lds_add(a, word):
    a("s_mov_b64 exec, 1")
    a(f"ds_add_u32 v3, v1 offset:{4*word}")
    a("s_mov_b64 exec, -1")

def lds_wait(a, word, val, sleep=0, pre_read=False, ge=True):
    lab = a.newlabel("LW"); ok = a.newlabel("LWOK")
    if pre_read:
        a("v_readfirstlane_b32 s96, v2")
        a(f"s_cmp_ge_u32 s96, {val}")
        a(f"s_cbranch_scc1 {ok}")
    a(f"s_mov_b32 s97, {SPIN_MAX}")
    a.label(lab)
    a(f"ds_read_b32 v2, v3 offset:{4*word}")
    a("s_waitcnt lgkmcnt(0)")
    a("v_readfirstlane_b32 s96, v2")
    a(f"s_cmp_ge_u32 s96, {val}")
    a(f"s_cbranch_scc1 {ok}")
    sleep = max(sleep, MINSLEEP)
    if sleep: a(f"s_sleep {sleep}")
    a("s_sub_u32 s97, s97, 1")
    a(f"s_cbranch_scc0 {lab}")
    a.label(ok)

def full_wait(a, n, sleep=0):
    lab = a.newlabel("FL"); ok = a.newlabel("FLOK")
    a(f"s_mov_b32 s97, {SPIN_MAX}")
    a.label(lab)
    a(f"ds_read_b128 v[164:167], v3 offset:{4*SY_FULL}")
    a("s_waitcnt lgkmcnt(0)")
    a("v_min3_u32 v164, v164, v165, v166")
    a("v_min_u32 v164, v164, v167")
    a("s_nop 0")
    a("v_readfirstlane_b32 s96, v164")
    a(f"s_cmp_ge_u32 s96, {n}")
    a(f"s_cbranch_scc1 {ok}")
    if sleep: a(f"s_sleep {sleep}")
    a("s_sub_u32 s97, s97, 1")
    a(f"s_cbranch_scc0 {lab}")
    a.label(ok)

def get_nonce(a):
    lds_wait(a, SY_NONCE, 1)
    a("s_mov_b32 s74, s96")

def flag_set(a, soff, t):
    a(f"v_mov_b32 v{t}, 0")
    a(f"v_mov_b32 v{t+1}, s74")
    a("s_mov_b64 exec, 1")
    a(f"buffer_store_dword v{t+1}, v{t}, s[16:19], {soff} offen sc1")
    a("s_mov_b64 exec, -1")

def publish(a, word, nwaves, soff, t):
    skip = a.newlabel("PB")
    a("s_mov_b64 exec, 1")
    a(f"ds_add_rtn_u32 v2, v3, v1 offset:{4*word}")
    a("s_mov_b64 exec, -1")
    a("s_waitcnt lgkmcnt(0)")
    a("v_readfirstlane_b32 s96, v2")
    a(f"s_cmp_lg_u32 s96, {nwaves-1 if isinstance(nwaves, int) else nwaves}")
    a(f"s_cbranch_scc1 {skip}")
    flag_set(a, soff, t)
    a.label(skip)

def flag_wait_multi(a, voffs, t, sleep=2):
    lab = a.newlabel("FW"); ok = a.newlabel("FWOK")
    a(f"s_mov_b32 s97, {SPIN_MAX>>4}")
    a.label(lab)
    for k, v in enumerate(voffs):
        a(f"buffer_load_dword v{t+k}, v{v}, s[16:19], 0 offen sc1")
    a("s_waitcnt vmcnt(0)")
    for k in range(len(voffs)):
        a(f"v_xor_b32 v{t+k}, s74, v{t+k}")
    for k in range(1, len(voffs)):
        a(f"v_or_b32 v{t}, v{t}, v{t+k}")
    a(f"v_cmp_ne_u32 vcc, 0, v{t}")
    a("s_cmp_eq_u64 vcc, 0")
    a(f"s_cbranch_scc1 {ok}")
    if sleep: a(f"s_sleep {sleep}")
    a("s_sub_u32 s97, s97, 1")
    a(f"s_cbranch_scc0 {lab}")
    a.label(ok)

def flag_wait(a, voff, n, t, sleep=2):
    lab = a.newlabel("FW"); ok = a.newlabel("FWOK")
    op = {1: "dword", 2: "dwordx2", 4: "dwordx4"}[n]
    a(f"s_mov_b32 s97, {SPIN_MAX>>4}")
    a.label(lab)
    a(f"buffer_load_{op} {vr(t,n)}, v{voff}, s[16:19], 0 offen sc1")
    a("s_waitcnt vmcnt(0)")
    for k in range(n):
        a(f"v_xor_b32 v{t+k}, s74, v{t+k}")
    for k in range(1, n):
        a(f"v_or_b32 v{t}, v{t}, v{t+k}")
    a(f"v_cmp_ne_u32 vcc, 0, v{t}")
    a("s_cmp_eq_u64 vcc, 0")
    a(f"s_cbranch_scc1 {ok}")
    if sleep: a(f"s_sleep {sleep}")
    a("s_sub_u32 s97, s97, 1")
    a(f"s_cbranch_scc0 {lab}")
    a.label(ok)

def finish(a):
    stamp_flush(a, 0)
    a("s_endpgm")

def start_sync(a):
    a("s_waitcnt lgkmcnt(0)")
    a("s_barrier")

def gen(a, name):
    kernel_begin(a, name)
    a("s_cmp_ge_u32 s2, 256")
    a("s_cbranch_scc1 F_END")
    a("s_load_dwordx2 s[8:9], s[0:1], 0")
    a("s_load_dwordx2 s[12:13], s[0:1], 64")
    a("s_load_dwordx2 s[16:17], s[0:1], 104")
    a("s_load_dwordx16 s[32:47], s[0:1], 0")
    a("s_load_dwordx8 s[48:55], s[0:1], 64")
    a("s_load_dwordx4 s[56:59], s[0:1], 96")
    stamp_init(a)
    if CPF:
        a("s_getpc_b64 s[60:61]")
        a("s_lshr_b32 s62, s2, 3")
        a("s_lshl_b32 s62, s62, 10")
        a("s_add_u32 s60, s60, s62")
        a("s_addc_u32 s61, s61, 0")
        a("v_lshlrev_b32 v20, 7, v0")
        a("v_mov_b32 v21, s61")
        a("v_add_co_u32 v20, vcc, s60, v20")
        a("s_nop 1")
        a("v_addc_co_u32 v21, vcc, 0, v21, vcc")
        a("v_cmp_gt_u32 vcc, 8, v0")
        a("s_and_saveexec_b64 s[64:65], vcc")
        a("s_cbranch_execz CPF_SKIP")
        a("global_load_dword v22, v[20:21], off")
        a.label("CPF_SKIP")
        a("s_mov_b64 exec, s[64:65]")
    a("v_lshrrev_b32 v1, 6, v0")
    a("v_and_b32 v0, 63, v0")
    a("v_readfirstlane_b32 s3, v1")
    a("v_mov_b32 v2, 0")
    a("s_cmp_lt_u32 s3, 4")
    a("s_cselect_b32 s27, 8, -4")
    a("s_cmp_ge_u32 s2, 224")
    a("s_cselect_b32 s27, s27, 0")
    a("s_add_u32 s3, s3, s27")
    a(f"v_mov_b32 v3, {L_SYNC}")
    a("v_lshl_add_u32 v4, v0, 2, v3")
    a("ds_write_b32 v4, v2")
    a("v_mov_b32 v1, 1")
    a("v_and_b32 v4, 31, v0")
    a("v_lshrrev_b32 v5, 5, v0")
    a("s_bfe_u32 s6, s2, 0x20003")
    a("s_lshr_b32 s7, s2, 5")
    a("s_and_b32 s4, s2, 3")
    a("s_lshl_b32 s4, s4, 2")
    a("s_add_u32 s4, s4, s6")
    a("s_bfe_u32 s5, s2, 0x10002")
    a("s_mul_i32 s5, s5, 7")
    a("s_add_u32 s5, s5, s7")
    a(f"s_mov_b32 s18, {WS_USED}")
    a("s_mov_b32 s19, 0x20000")
    a("s_cmp_eq_u32 s5, 13")
    a("s_cselect_b32 s27, 7, 15")
    a("v_lshrrev_b32 v7, 4, v0")
    a("v_lshlrev_b32 v8, 2, v7")
    a("v_sub_u32 v8, v0, v8")
    a("v_and_b32 v8, s27, v8")
    a("v_mul_u32_u24 v7, 3456, v7")
    a("v_lshl_add_u32 v6, v8, 4, v7")
    a("v_lshrrev_b32 v9, 3, v0")
    a("v_and_b32 v10, 7, v0")
    a("v_lshrrev_b32 v11, 1, v9")
    a("v_xor_b32 v10, v10, v11")
    a("v_mul_u32_u24 v9, 1152, v9")
    a("v_lshl_add_u32 v7, v10, 4, v9")
    a("v_xor_b32 v10, 4, v10")
    a("v_lshl_add_u32 v8, v10, 4, v9")
    a("v_add_u32 v8, 8192, v8")
    a("v_add_u32 v9, 12800, v6")
    a("s_lshl_b32 s22, s5, 8")
    a(f"s_mul_i32 s27, s3, {4*13824}")
    a("s_add_u32 s22, s22, s27")
    a("s_lshl_b32 s23, s4, 2")
    a("s_add_u32 s23, s23, s3")
    a(f"s_mul_i32 s23, s23, {32*1152}")
    a("s_lshl_b32 s24, s3, 12")
    a("s_lshl_b32 s20, s6, 1")
    a("s_add_u32 s20, s20, s7")
    a("s_sub_u32 s27, s20, 9")
    a("s_cmp_ge_u32 s20, 9")
    a("s_cselect_b32 s20, s27, s20")
    if ROT != "9":
        n1 = int(ROT); n2 = 9 - n1
        a("s_add_u32 s20, s6, s7")
        a("s_mov_b32 s21, s20")
        for reg, n in (("s20", n1), ("s21", n2)):
            for _ in range(9 // n):
                a(f"s_sub_u32 s27, {reg}, {n}")
                a(f"s_cmp_ge_u32 {reg}, {n}")
                a(f"s_cselect_b32 {reg}, s27, {reg}")
        a(f"s_add_u32 s21, s21, {n1}")
    a("s_and_b32 s31, s2, 7")
    a("s_mul_i32 s31, s31, 36")
    a("s_lshr_b32 s27, s2, 3")
    a("s_add_u32 s31, s31, s27")
    a("s_max_u32 s27, s27, 28")
    a("s_add_u32 s31, s31, s27")
    a("s_sub_u32 s31, s31, 28")
    a("s_cmp_ge_u32 s2, 224")
    a("s_cselect_b32 s27, 4, s3")
    a("s_cmp_ge_u32 s27, 4")
    a("s_waitcnt lgkmcnt(0)")
    a("s_cbranch_scc1 F_OTHER")
    a("s_or_b32 s27, s2, s3")
    a("s_cbranch_scc0 F_NONCE")
    a.label("F_NN")
    gen_loader(a)
    a.label("F_NONCE")
    a("s_memrealtime s[60:61]")
    a("v_lshlrev_b32 v15, 6, v0")
    a("s_waitcnt lgkmcnt(0)")
    a("s_or_b32 s60, s60, 1")
    a("v_mov_b32 v14, s60")
    a("s_mov_b64 exec, 15")
    a(f"global_store_dword v15, v14, s[{S_DBG}:{S_DBG+1}] sc1")
    a("s_mov_b64 exec, -1")
    a("s_branch F_NN")
    a.label("F_OTHER")
    a("s_cmp_lt_u32 s3, 8")
    a("s_cbranch_scc1 F_MAIN")
    kgen_head(a)
    a.label("F_MAIN")
    a("s_cmp_lt_u32 s2, 224")
    a("s_cbranch_scc1 F_GEMM")
    gen_free(a)
    a.label("F_GEMM")
    gen_gemm(a)
    a.label("F_ATTN")
    gen_attn(a)
    a.label("F_P3")
    gen_p3(a)
    a.label("F_KGEN")
    gen_kgen(a)
    gen_conv(a)
    RING_PIECE()
    a.label("F_GATE")
    gen_gate(a)
    gen_misc(a)
    a.label("F_FIN")
    stamp_flush(a, 0)
    a.label("F_END")
    a("s_endpgm")

def gen_loader(a):
    a("s_add_u32 s12, s12, s22")
    a("s_addc_u32 s13, s13, 0")
    a("s_add_u32 s8, s8, s23")
    a("s_addc_u32 s9, s9, 0")
    def chunk(i):
        n1 = int(ROT)
        reg, lo, hi = ("s20", 0, n1) if i < n1 else ("s21", n1, 9)
        a(f"s_mul_i32 s25, {reg}, {16*13824}")
        a(f"s_lshl_b32 s26, {reg}, 7")
        a("s_add_u32 s14, s12, s25")
        a("s_addc_u32 s15, s13, 0")
        a("s_add_u32 s10, s8, s26")
        a("s_addc_u32 s11, s9, 0")
        for hf in range(2):
            a(f"s_add_u32 m0, s24, {(i % 4) * 32768 + hf*2048}")
            if hf:
                a(f"s_add_u32 s14, s14, {2*13824}")
                a("s_addc_u32 s15, s15, 0")
            else: a(f"s_add_u32 {reg}, {reg}, 1")
            a("global_load_lds_dwordx4 v6, s[14:15]")
            a("global_load_lds_dwordx4 v9, s[14:15] offset:1024")
            a("s_add_u32 m0, m0, 16384")
            if hf:
                a(f"s_add_u32 s10, s10, {2*9216}")
                a("s_addc_u32 s11, s11, 0")
            else:
                a(f"s_cmp_eq_u32 {reg}, {hi}")
                a(f"s_cselect_b32 {reg}, {lo}, {reg}")
            a("global_load_lds_dwordx4 v7, s[10:11]")
            a("global_load_lds_dwordx4 v8, s[10:11] offset:1024")
    stamp(a, 1)
    chunk(0); chunk(1)
    gather_setup(a, 1)
    for i in range(-1, 6):
        a("s_waitcnt vmcnt(8)")
        if i == -1: stamp(a, 2)
        if i == 3: stamp(a, 3)
        a("s_barrier")
        chunk(i + 3)
        if i == 2: a(f"s_load_dword s74, s[{S_DBG}:{S_DBG+1}], 0")
    a("s_waitcnt vmcnt(8) lgkmcnt(0)")
    a("s_barrier")
    a("s_cmp_eq_u32 s3, 3")
    a("s_cbranch_scc1 L_W3")
    if GM == "early":
        a("s_cmp_eq_u32 s3, 2")
        a("s_cbranch_scc1 F_GATE")
    a("s_waitcnt vmcnt(0)")
    stamp(a, 4)
    a("s_barrier")
    if GM != "early":
        a("s_cmp_eq_u32 s3, 2")
        a("s_cbranch_scc1 F_GATE")
    a("s_branch F_ATTN")
    a.label("L_W3")
    a("buffer_load_dword v12, v16, s[16:19], 0 offen sc1")
    a("s_waitcnt vmcnt(1)")
    a("s_barrier")
    fetch_nonce(a, "L", True)
    a(f"ds_write_b32 v3, v21 offset:{4*SY_NONCE}")
    a("s_waitcnt vmcnt(0)")
    a("v_cmp_ne_u32 vcc, s74, v12")
    a("s_cmp_eq_u64 vcc, 0")
    a("s_cbranch_scc1 L_GI")
    flag_wait_multi(a, [16], 12, sleep=2)
    a.label("L_GI")
    gather_issue(a)
    a.label("L_GD")
    a("s_waitcnt vmcnt(0)")
    lds_add(a, SY_UREADY)
    stamp(a, 4)
    a("s_branch F_ATTN")

def gather_setup(a, cmax):
    a("s_lshr_b32 s28, s31, 4")
    a("s_lshl_b32 s29, s28, 11")
    a(f"s_add_u32 s29, s29, {FL_U1}")
    a("s_cmp_lt_u32 s28, 8")
    a(f"s_cselect_b32 s29, s29, {FL_UT}")
    a("s_cselect_b32 s28, 15, 31")
    a("v_and_b32 v16, s28, v0")
    a("v_lshl_add_u32 v16, v16, 7, s29")
    a("v_lshrrev_b32 v17, 4, v0")
    a("v_and_b32 v18, 3, v0")
    a("v_xor_b32 v17, v17, v18")
    a(f"v_min_u32 v17, {cmax}, v17")
    a("v_lshrrev_b32 v18, 2, v0")
    a("v_mul_u32_u24 v18, 9216, v18")
    a("v_lshl_add_u32 v17, v17, 4, v18")
    a("s_lshl_b32 s29, s31, 5")
    a(f"s_add_u32 s29, s29, {UT_OFF}")

def gather_issue(a):
    a("v_mov_b32 v18, 0x7ff00000")
    a(f"s_mov_b32 m0, {L_U}")
    a("s_nop 0")
    a("buffer_load_dwordx4 v18, s[16:19], 0 offen lds")
    a("buffer_load_dwordx4 v18, s[16:19], 0 offen offset:1024 lds")
    for j in range(16):
        a(f"s_mov_b32 m0, {L_U+2048+1024*j}")
        a(f"s_add_u32 s27, s29, {16*9216*j}")
        a(f"buffer_load_dwordx4 v17, s[16:19], s27 offen {SC} lds")

ACC = 16; FB = 80
def gen_gemm(a):
    a("s_sub_u32 s8, s3, 4")
    a("s_lshl_b32 s6, s4, 2")
    a("s_add_u32 s6, s6, s8")
    a("v_bfe_u32 v10, v0, 2, 2")
    a("v_bfe_u32 v11, v0, 4, 1")
    a("v_and_b32 v12, 3, v0")
    a("v_lshlrev_b32 v6, 11, v5")
    a("v_lshl_add_u32 v6, v10, 8, v6")
    a("v_lshl_add_u32 v6, v11, 5, v6")
    a("v_lshl_add_u32 v6, v12, 3, v6")
    for p in range(4):
        a(f"v_add_u32 v12, {p}, v10")
        a("v_and_b32 v12, 3, v12")
        a(f"v_lshl_add_u32 v{148+p}, v12, 6, v6")
        a(f"v_add_u32 v{152+p}, 0x10000, v{148+p}")
    a("s_lshl_b32 s7, s8, 12")
    a("s_add_u32 s7, s7, 16384")
    a("v_lshl_add_u32 v14, v4, 7, s7")
    a("v_bfe_u32 v15, v4, 1, 3")
    a("v_xor_b32 v15, v15, v5")
    for sp in range(4):
        a(f"v_xor_b32 v12, {2*sp}, v15")
        a(f"v_lshl_add_u32 v{140+sp}, v12, 4, v14")
        a(f"v_add_u32 v{144+sp}, 0x10000, v{140+sp}")
    emit_tau(a, 13, 4, 14)
    a("v_lshlrev_b32 v156, 4, v13")
    a("v_lshl_add_u32 v156, v5, 3, v156")
    a("v_mul_u32_u24 v157, 9216, v5")
    a("v_lshl_add_u32 v157, v4, 4, v157")
    a(f"s_mul_i32 s26, s6, {TILE}")
    a("s_lshl_b32 s27, s5, 13")
    a("s_add_u32 s20, s26, s27")
    a("s_add_u32 s21, s20, 4096")
    a("s_lshl_b32 s27, s5, 11")
    a("s_add_u32 s22, s26, s27")
    a(f"s_add_u32 s22, s22, {VOFF - 9*2048}")
    a("s_add_u32 s23, s22, 18432")
    a(f"s_mov_b32 s28, {fhex(QSCALE)}")
    a("s_mov_b32 s29, s28")
    a("s_lshl_b32 s24, s5, 4")
    a("s_add_u32 s24, s24, s4")
    a("s_lshl_b32 s24, s24, 7")
    a(f"s_add_u32 s24, s24, {FL_QKV}")
    for k in range(5): a(f"s_mov_b32 s{34+k}, s{20+k}")
    a("s_mov_b64 s[40:41], s[28:29]")
    a("s_mov_b32 s42, s5")
    attn_setup(a)
    NB = 3
    def reads(s):
        i, sp = divmod(s, 4)
        slot = i % 4
        buf = FB + 20*(s % NB)
        m, x = (152, 144+sp) if slot >= 2 else (148, 140+sp)
        so = (slot % 2) * 32768
        out = [f"ds_read_b128 {vr(buf+16,4)}, v{x} offset:{so}"]
        for p in range(4):
            for j in range(2):
                out.append(f"ds_read_b64_tr_b16 {vr(buf+4*p+2*j,2)}, v{m+p} offset:{so+sp*4096+j*1024}")
        return out
    def mf(s, p, swap):
        buf = FB + 20*(s % NB)
        cin = "0" if s == 0 else vr(ACC+16*p,16)
        w, x = vr(buf+4*p,4), vr(buf+16,4)
        if swap: w, x = x, w
        a(f"v_mfma_f32_32x32x16_bf16 {vr(ACC+16*p,16)}, {w}, {x}, {cin}")
    def mfmas(s, swap, inter=(), cuts=(3, 5, 7, 30)):
        inter = list(inter)
        for p in range(4):
            mf(s, p, swap)
            for ln in inter[(cuts[p-1] if p else 0):cuts[p]]: a(ln)
    def loop(swap):
        for s in range(34):
            i, sp = divmod(s, 4)
            a("s_waitcnt lgkmcnt(9)")
            if PROFD and not swap and s % 2 == 0 and s >= 2:
                if s >= 4: a(f"s_mov_b32 s{80 + s//2 - 2}, s98")
                a("s_memtime s[98:99]")
            if s == 30 and GPE == "b7":
                mfmas(s, swap, ["s_barrier", "s_setprio 2"] + reads(s+2), cuts=(5, 7, 9, 30))
            elif sp == 2:
                mfmas(s, swap, ["s_barrier"] + reads(s+2), cuts=(4, 6, 8, 30))
            else:
                mfmas(s, swap, reads(s+2))
        a("s_waitcnt lgkmcnt(9)")
        mf(34, 0, swap); mf(34, 1, swap)
        a("s_waitcnt lgkmcnt(0)")
        mf(35, 0, swap)
        lds_add(a, SY_GDONE)
        mf(35, 1, swap); mf(34, 2, swap); mf(35, 2, swap); mf(34, 3, swap); mf(35, 3, swap)
        stamp(a, 3)
        if GPE == "end": a("s_setprio 2")
        a("s_nop 4")
    a("s_barrier")
    stamp(a, 2)
    a(f"s_setprio {os.environ.get('GP','0')}")
    for ln in reads(0): a(ln)
    for ln in reads(1): a(ln)
    a("s_cmp_ge_u32 s42, 9")
    a("s_cbranch_scc1 G_V")
    loop(False)
    for p in range(4):
        A0 = ACC+16*p
        lab = a.newlabel("G_NS")
        a(f"s_cmp_gt_u32 s42, {4 if p < 2 else 3}")
        a(f"s_cbranch_scc1 {lab}")
        for k in range(8): a(f"v_pk_mul_f32 {vr(A0+2*k,2)}, {vr(A0+2*k,2)}, s[40:41]")
        a.label(lab)
        for r in range(8): a(f"v_cvt_pk_bf16_f32 v{A0+r}, v{A0+2*r}, v{A0+2*r+1}")
        for q in range(4):
            a(f"buffer_store_dwordx2 {vr(A0+2*q,2)}, v156, s[16:19], s{34 + p//2} offen offset:{(p%2)*2048 + q*512} sc1")
    a("s_branch G_PUB")
    a.label("G_V")
    loop(True)
    for p in range(4):
        A0 = ACC+16*p
        if p == 2:
            a("s_cmp_eq_u32 s42, 13")
            a("s_cbranch_scc1 G_PUB")
        for r in range(8): a(f"v_cvt_pk_bf16_f32 v{A0+r}, v{A0+2*r}, v{A0+2*r+1}")
        for t in range(2):
            a(f"buffer_store_dwordx4 {vr(A0+4*t,4)}, v157, s[16:19], s{36+t} offen offset:{p*512} sc1")
    a.label("G_PUB")
    stamp(a, 1)
    attn_init(a)
    get_nonce(a)
    a("s_setprio 0")
    a("s_waitcnt vmcnt(0)")
    publish(a, SY_CQ, 4, "s38", 14)
    stamp(a, 4)
    a("s_branch A_WAITGO")

QA=16; QAX=20; QB=24; QBX=28; SA=32; SB=48; OA=64; OB=80; KVB=96
ONES=0x3f803f80
def kb(b): return KVB+14*b
def kx(b): return KVB+14*b+4
def v0r(b): return KVB+14*b+6
def v1r(b): return KVB+14*b+10
def kv_loads(b, wrap=True):
    return [f"buffer_load_dwordx4 {vr(kb(b),4)}, v7, s[16:19], s20 offen {SCKV}",
            f"buffer_load_dwordx2 {vr(kx(b),2)}, v8, s[16:19], s20 offen {SCKV}",
            "s_mov_b64 exec, s[22:23]",
            f"buffer_load_dwordx4 {vr(v0r(b),4)}, v9, s[16:19], s20 offen {SCKV}",
            f"buffer_load_dwordx4 {vr(v1r(b),4)}, v162, s[16:19], s20 offen {SCKV}",
            "s_mov_b64 exec, -1",
            f"s_add_u32 s20, s20, {TILE}"] + (["s_cmp_eq_u32 s20, s29", "s_cselect_b32 s20, s28, s20"] if (b == 3 and wrap) else [])

def qk(a, S, buf, Q, QX):
    a(f"v_mfma_f32_32x32x8_bf16 {vr(S,16)}, {vr(kx(buf),2)}, {vr(QX,2)}, 0")
    a(f"v_mfma_f32_32x32x16_bf16 {vr(S,16)}, {vr(kb(buf),4)}, {vr(Q,4)}, {vr(S,16)}")

def attn_setup(a):
    a("s_and_b32 s4, s2, 7")
    a("s_lshl_b32 s4, s4, 2")
    a("s_bfe_u32 s5, s2, 0x20003")
    a("s_add_u32 s4, s4, s5")
    a("s_lshr_b32 s5, s2, 5")
    a("s_lshr_b32 s6, s3, 2")
    a("s_and_b32 s7, s3, 3")
    a("s_lshl_b32 s7, s7, 1")
    a("s_lshl_b32 s5, s5, 3")
    a("s_add_u32 s7, s5, s7")
    a("s_mov_b32 s30, s7")
    a("s_add_u32 s31, s30, 1")
    a("s_mul_i32 s12, s4, 18")
    a("s_lshr_b32 s13, s12, 3")
    a("s_lshl_b32 s8, s13, 9")
    a(f"s_add_u32 s9, s8, {72*512}")
    a("v_lshl_add_u32 v7, v0, 4, s9")
    a("v_lshlrev_b32 v8, 4, v4")
    a("v_lshl_add_u32 v8, v5, 3, v8")
    a("s_add_u32 s9, s9, 1024")
    a("v_add_u32 v8, s9, v8")
    a(f"v_subrev_u32 v163, {72*512}, v7")
    a(f"v_subrev_u32 v164, {72*512}, v8")
    a(f"s_mul_i32 s24, s30, {TILE}")
    a(f"s_mul_i32 s25, s31, {TILE}")
    a("v_mul_u32_u24 v9, 9216, v5")
    a("v_lshl_add_u32 v9, v4, 4, v9")
    a("s_lshl_b32 s9, s12, 4")
    a(f"s_add_u32 s9, s9, {VOFF}")
    a("v_add_u32 v9, s9, v9")
    a("v_add_u32 v162, 18432, v9")
    a("s_mov_b32 s22, 0x3ffff")
    a("s_mov_b32 s23, 0x3ffff")
    a(f"s_mul_i32 s14, s6, {32*TILE}")
    a(f"s_add_u32 s29, s14, {32*TILE}")
    a("s_mov_b32 s28, s14")
    a("v_mov_b32 v6, 0xdddddddd")
    a("s_mov_b32 s15, 0")
    a(f"v_mov_b32 v10, {ONES}")
    a("v_and_b32 v11, 27, v4")
    a("v_cmp_eq_u32 vcc, 18, v11")
    a("s_and_b32 s9, s4, 3")
    a("v_lshlrev_b32 v12, 2, v5")
    a("v_cndmask_b32 v10, 0, v10, vcc")
    a("v_subrev_u32 v12, s9, v12")
    for k in range(4):
        a(f"v_cmp_le_i32 s[{60+2*k}:{61+2*k}], {-k}, v12")
    a("v_lshlrev_b32 v12, 1, v5")
    a("v_subrev_u32 v12, s9, v12")
    for k in range(2):
        a(f"v_cmp_ge_i32 s[{68+2*k}:{69+2*k}], {-k}, v12")
    a("v_bfe_u32 v11, v0, 3, 2")
    a("v_and_b32 v12, 1, v11")
    a("s_add_u32 s9, s13, 72")
    a("v_lshl_add_u32 v13, v12, 1, s9")
    a("v_lshrrev_b32 v13, 4, v13")
    a("s_add_u32 s9, s12, 1152")
    a("v_mad_u32_u24 v14, v12, 17, s9")
    a("v_lshrrev_b32 v14, 7, v14")
    a("v_cmp_gt_u32 vcc, 2, v11")
    a("v_lshl_add_u32 v15, v12, 1, s13")
    a("v_lshrrev_b32 v15, 4, v15")
    a("v_cndmask_b32 v13, v14, v13, vcc")
    a("v_and_b32 v11, 7, v0")
    a("s_lshl_b32 s9, s6, 3")
    a("v_add_u32 v14, s9, v11")
    a("v_lshl_add_u32 v13, v13, 4, v14")
    a("v_and_b32 v11, 1, v0")
    a("s_lshr_b32 s9, s5, 2")
    a("v_add_u32 v11, s9, v11")
    a("v_cmp_eq_u32 vcc, 0, v5")
    a("v_lshl_add_u32 v15, v15, 4, v11")
    a("s_lshl_b32 s26, s6, 2")
    a("v_cndmask_b32 v11, v15, v13, vcc")
    a("v_lshlrev_b32 v11, 7, v11")
    a(f"v_add_u32 v160, {FL_QKV}, v11")
    a("v_add_u32 v13, s26, v3")

def attn_init(a):
    for b in range(4):
        for r in range(8): a(f"v_mov_b32 v{v0r(b)+r}, v10")
    for r in range(16):
        a(f"v_mov_b32 v{OA+r}, 0")
        a(f"v_mov_b32 v{OB+r}, 0")
    for r in range(8):
        a(f"v_mov_b32 v{SB+8+r}, 0")

def gen_attn(a):
    attn_setup(a)
    attn_init(a)
    get_nonce(a)
    a.label("A_READY")
    a("s_cmp_ge_u32 s3, 2")
    a("s_cbranch_scc1 A_WAITGO")
    a("s_lshl_b32 s26, s3, 10")
    a("v_mov_b32 v12, s26")
    a("s_lshl_b32 s26, s3, 2")
    a("v_cndmask_b32 v12, 0, v12, vcc")
    a("v_add_u32 v14, v160, v12")
    a("v_add_u32 v15, s26, v3")
    lds_wait(a, SY_CQ, 1, sleep=2)
    a(f"s_mov_b32 s97, {SPIN_MAX>>4}")
    a("s_lshr_b32 s27, s5, 3")
    a.label("A_POLL")
    a("buffer_load_dword v12, v14, s[16:19], 0 offen sc1")
    a("s_waitcnt vmcnt(0)")
    a("v_cmp_eq_u32 vcc, s74, v12")
    a("s_lshr_b32 s26, vcc_lo, 16")
    a("s_and_b32 s26, s26, vcc_lo")
    a("s_lshr_b32 s9, s26, 8")
    a("s_and_b32 s26, s26, s9")
    a("s_cmp_eq_u32 vcc_hi, -1")
    a("s_cselect_b32 s26, s26, 0")
    a("s_bitcmp1_b32 s26, s27" if PROG else "s_cmp_eq_u32 s26, 0xff")
    a("s_cbranch_scc1 A_POK")
    a(f"s_sleep {os.environ.get('PS','2')}")
    a("s_sub_u32 s97, s97, 1")
    a("s_cbranch_scc0 A_POLL")
    a("s_mov_b32 s26, 0xff")
    a.label("A_POK")
    a("s_mov_b32 s96, s27")
    a("s_cmp_eq_u32 s26, 0xff")
    a("s_cselect_b32 s26, 8, 24")
    a("s_add_u32 s96, s96, s26")
    a("v_mov_b32 v12, s96")
    a(f"ds_write_b32 v15, v12 offset:{4*SY_GO}")
    a.label("A_WAITGO")
    a(f"s_mov_b32 s97, {SPIN_MAX}")
    a.label("A_WG")
    a(f"ds_read_b32 v2, v13 offset:{4*SY_GO}")
    a("s_waitcnt lgkmcnt(0)")
    a("v_readfirstlane_b32 s96, v2")
    a("s_cmp_lg_u32 s96, 0")
    a("s_cbranch_scc1 A_GO")
    a("s_sleep 1")
    a("s_sub_u32 s97, s97, 1")
    a("s_cbranch_scc0 A_WG")
    a.label("A_GO")
    a(f"buffer_load_dwordx4 {vr(QA,4)}, v163, s[16:19], s24 offen {SC}")
    a(f"buffer_load_dwordx2 {vr(QAX,2)}, v164, s[16:19], s24 offen {SC}")
    a("s_and_b32 s26, s96, 7")
    a(f"s_mul_i32 s26, s26, {4*TILE}")
    a("s_add_u32 s20, s14, s26")
    a("s_lshr_b32 s27, s96, 4")
    stamp(a, 5)
    for ln in kv_loads(0): a(ln)
    a(f"buffer_load_dwordx4 {vr(QB,4)}, v163, s[16:19], s25 offen {SC}")
    a(f"buffer_load_dwordx2 {vr(QBX,2)}, v164, s[16:19], s25 offen {SC}")
    for b in (1, 2):
        for ln in kv_loads(b): a(ln)
    a("s_mov_b32 s21, 8")
    a("s_setprio 2")
    a("s_waitcnt vmcnt(8)")
    a("buffer_load_dword v161, v160, s[16:19], 0 offen sc1")
    for Q in (QA, QB):
        for k in range(6):
            a(f"v_cndmask_b32 v{Q+k}, 0, v{Q+k}, s[{60+2*k}:{61+2*k}]")
    qk(a, SA, 0, QA, QAX)
    a("s_nop 15")
    def ex(S, r): a(f"v_exp_f32 v{S+r}, v{S+r}")
    n1,n2,n3,n4 = 2,3,4,3
    def phase(X, Y, OX, OY, vY_hi, vX_lo, kbuf, QY, QYX, pre=(), post=()):
        r = 0
        for _ in range(n1): ex(X,r); r += 1
        a(f"v_smfmac_f32_32x32x32_bf16 {vr(OY,16)}, {vr(vY_hi,4)}, {vr(Y+8,8)}, v6")
        for ln in pre: a(ln)
        for _ in range(n2): ex(X,r); r += 1
        a(f"v_mfma_f32_32x32x8_bf16 {vr(Y,16)}, {vr(kx(kbuf),2)}, {vr(QYX,2)}, 0")
        for _ in range(n3): ex(X,r); r += 1
        a(f"v_mfma_f32_32x32x16_bf16 {vr(Y,16)}, {vr(kb(kbuf),4)}, {vr(QY,4)}, {vr(Y,16)}")
        for ln in post: a(ln)
        for _ in range(n4): ex(X,r); r += 1
        a(f"v_smfmac_f32_32x32x32_bf16 {vr(OX,16)}, {vr(vX_lo,4)}, {vr(X,8)}, v6")
        while r < 16: ex(X,r); r += 1
    a(".p2align 3")
    a.label("A_LOOP")
    for (cnt, pr) in eval(os.environ.get('PRS','((4,1),(1,0))')):
        lab = a.newlabel("A_PR")
        a(f"s_cmp_lg_u32 s21, {cnt}")
        a(f"s_cbranch_scc1 {lab}")
        a(f"s_setprio {pr}")
        a.label(lab)
    for u in range(4):
        pb = (u+3) % 4
        chk = ["s_cmp_lg_u32 s27, 0", "s_cbranch_scc1 A_CHK", "A_CHKD:"] if u == 1 else []
        phase(SA, SB, OA, OB, v1r(pb), v0r(u), u, QB, QBX, post=chk + kv_loads(pb))
        post = ["s_nop 3"]
        if u == 3: post = ["s_sub_u32 s21, s21, 1", "s_nop 1", "s_cmp_lg_u32 s21, 0"]
        phase(SB, SA, OB, OA, v1r(u), v0r(u), (u+1) % 4, QA, QAX, pre=["s_waitcnt vmcnt(8)"], post=post)
    a("s_cbranch_scc1 A_LOOP")
    a("s_nop 1")
    a(f"v_smfmac_f32_32x32x32_bf16 {vr(OB,16)}, {vr(v1r(3),4)}, {vr(SB+8,8)}, v6")
    stamp(a, 6)
    a.label("A_FINAL")
    a("s_and_b32 s24, s3, 3")
    a("s_lshl_b32 s25, s24, 4")
    a("v_add_u32 v13, s25, v3")
    a("s_mov_b64 exec, 1")
    a(f"ds_add_rtn_u32 v2, v13, v1 offset:{4*SY_PR}")
    a("s_mov_b64 exec, -1")
    a("s_mul_i32 s24, s24, 5632")
    a(f"s_add_u32 s24, s24, {L_XCH}")
    a("v_lshl_add_u32 v10, v0, 4, s24")
    a("v_lshl_add_u32 v12, v0, 2, s24")
    emit_tau(a, 14, 4, 15)
    a("s_add_u32 s26, s15, 1")
    a("s_waitcnt lgkmcnt(0)")
    a("v_readfirstlane_b32 s96, v2")
    a("s_bitcmp1_b32 s96, 0")
    a("s_cbranch_scc1 A_SECOND")
    lds_wait(a, SY_CA, 4)
    for k, O in enumerate((OA, OB)):
        a(f"ds_write_b128 v10, {vr(O,4)} offset:{2816*k}")
        a(f"ds_write_b128 v10, {vr(O+4,4)} offset:{2816*k+1024}")
        for r in range(3):
            a(f"ds_write_b32 v12, v{O+8+r} offset:{2816*k+2048+256*r}")
    a("s_waitcnt lgkmcnt(0)")
    a("s_mov_b64 exec, 1")
    a(f"ds_add_u32 v13, v1 offset:{4*SY_PR+4}")
    a("s_mov_b64 exec, -1")
    a("s_waitcnt vmcnt(0)")
    a("s_cmp_lg_u32 s15, 0")
    a("s_cbranch_scc1 A_DONE")
    a(f"s_mov_b32 s97, {SPIN_MAX}")
    a.label("A_VW")
    a(f"ds_read_b32 v2, v13 offset:{4*SY_PR+8}")
    a("s_waitcnt lgkmcnt(0)")
    a("v_readfirstlane_b32 s96, v2")
    a("s_cmp_eq_u32 s96, 1")
    a("s_cbranch_scc1 A_DONE")
    a("s_cmp_eq_u32 s96, 2")
    a("s_cbranch_scc1 A_REDO")
    a("s_sleep 2")
    a("s_sub_u32 s97, s97, 1")
    a("s_cbranch_scc0 A_VW")
    a("s_branch A_DONE")
    a.label("A_SECOND")
    a(f"s_mov_b32 s97, {SPIN_MAX}")
    a.label("A_RW")
    a(f"ds_read_b32 v2, v13 offset:{4*SY_PR+4}")
    for k, S in enumerate((SA, SB)):
        a(f"ds_read_b128 {vr(S,4)}, v10 offset:{2816*k}")
        a(f"ds_read_b128 {vr(S+4,4)}, v10 offset:{2816*k+1024}")
        for r in range(3):
            a(f"ds_read_b32 v{S+8+r}, v12 offset:{2816*k+2048+256*r}")
    a("s_mul_i32 s27, s30, 36")
    a("s_add_u32 s27, s27, s4")
    a("s_lshl_b32 s27, s27, 10")
    a(f"s_add_u32 s27, s27, {OF_OFF}")
    a("s_add_u32 s25, s27, 36864")
    a("s_lshl_b32 s28, s30, 5")
    a("s_add_u32 s28, s28, s4")
    a("s_lshl_b32 s28, s28, 7")
    a(f"s_add_u32 s28, s28, {OX_OFF}")
    a("v_lshl_add_u32 v15, v5, 5, v14")
    a("v_lshlrev_b32 v15, 4, v15")
    a("v_lshlrev_b32 v11, 12, v5")
    a("v_lshl_add_u32 v11, v14, 2, v11")
    a("s_waitcnt lgkmcnt(0)")
    a("v_readfirstlane_b32 s96, v2")
    a("s_cmp_ge_u32 s96, s26")
    a("s_cbranch_scc1 A_RWOK")
    a("s_sub_u32 s97, s97, 1")
    a("s_cbranch_scc0 A_RW")
    a.label("A_RWOK")
    for (S, O) in ((SA, OA), (SB, OB)):
        a(f"v_add_f32 v{S+10}, v{S+10}, v{O+10}")
    for (S, O) in ((SA, OA), (SB, OB)):
        a(f"v_rcp_f32 v{S+11}, v{S+10}")
    for (S, O, so) in ((SA, OA, 27), (SB, OB, 25)):
        for r in range(10): a(f"v_add_f32 v{S+r}, v{S+r}, v{O+r}")
        for r in range(10): a(f"v_mul_f32 v{O+r}, v{S+r}, v{S+11}")
        for r in range(5): a(f"v_cvt_pk_bf16_f32 v{O+r}, v{O+2*r}, v{O+2*r+1}")
        a(f"buffer_store_dwordx4 {vr(O,4)}, v15, s[16:19], s{so} offen sc1")
    a("s_nop 0")
    a(f"v_permlane32_swap_b32 v{OA+4}, v{OB+4}")
    a(f"buffer_store_dword v{OA+4}, v11, s[16:19], s28 offen sc1")
    for r in range(10):
        a(f"v_fma_f32 v{SA+10}, v{SA+r}, 0, v{SA+10}")
        a(f"v_fma_f32 v{SB+10}, v{SB+r}, 0, v{SB+10}")
    lo, hi = (2.0**-60, 2.0**60) if os.environ.get("FORCEFB","0") != "1" else (2.0**40, 2.0**60)
    a(f"s_mov_b32 s28, {fhex(lo)}")
    a(f"s_mov_b32 s29, {fhex(hi)}")
    a(f"v_cmp_le_f32 vcc, s28, v{SA+10}")
    a(f"v_cmp_ge_f32 s[24:25], s29, v{SA+10}")
    a(f"v_cmp_le_f32 s[26:27], s28, v{SB+10}")
    a(f"v_cmp_ge_f32 s[28:29], s29, v{SB+10}")
    a("s_and_b64 vcc, vcc, s[24:25]")
    a("s_and_b64 vcc, vcc, s[26:27]")
    a("s_and_b64 vcc, vcc, s[28:29]")
    a("s_lshl_b32 s24, s30, 4")
    a("s_add_u32 s24, s24, s4")
    a("s_lshl_b32 s24, s24, 7")
    a(f"s_add_u32 s24, s24, {FL_O}")
    a("s_cmp_eq_u64 vcc, -1")
    a("s_cselect_b32 s25, 1, 2")
    a("s_cmp_lg_u32 s15, 0")
    a("s_cselect_b32 s25, 1, s25")
    a("v_mov_b32 v11, s25")
    a(f"ds_write_b32 v13, v11 offset:{4*SY_PR+8}")
    a("s_cmp_eq_u32 s25, 1")
    a("s_cbranch_scc1 A_PUB")
    a.label("A_REDO")
    a("s_mov_b32 s15, 1")
    a("s_mov_b32 s20, 0")
    a("s_mov_b32 s21, 64")
    a("v_mov_b32 v165, 0xff800000")
    a("v_mov_b32 v166, 0xff800000")
    a("s_waitcnt vmcnt(0)")
    a.label("A_MAXLOOP")
    for ln in kv_loads(0)[:2]: a(ln)
    a(f"s_add_u32 s20, s20, {TILE}")
    a("s_waitcnt vmcnt(0)")
    qk(a, SA, 0, QA, QAX); qk(a, SB, 0, QB, QBX)
    a("s_nop 15")
    for r in range(8):
        a(f"v_max3_f32 v165, v165, v{SA+2*r}, v{SA+2*r+1}")
        a(f"v_max3_f32 v166, v166, v{SB+2*r}, v{SB+2*r+1}")
    a("s_sub_u32 s21, s21, 1")
    a("s_cmp_lg_u32 s21, 0")
    a("s_cbranch_scc1 A_MAXLOOP")
    for m in (165, 166):
        a(f"v_mov_b32 v12, v{m}")
        a("s_nop 1")
        a(f"v_permlane32_swap_b32 v12, v{m}")
        a("s_nop 1")
        a(f"v_max_f32 v{m}, v{m}, v12")
    for r in range(16):
        a(f"v_mov_b32 v{OA+r}, 0")
        a(f"v_mov_b32 v{OB+r}, 0")
    a("s_mov_b32 s20, s14")
    a("s_mov_b32 s21, 32")
    a.label("A_SLOWLOOP")
    for ln in kv_loads(0): a(ln)
    a("s_waitcnt vmcnt(0)")
    qk(a, SA, 0, QA, QAX); qk(a, SB, 0, QB, QBX)
    a("s_nop 15")
    for r in range(16):
        a(f"v_sub_f32 v{SA+r}, v{SA+r}, v165")
        a(f"v_sub_f32 v{SB+r}, v{SB+r}, v166")
    for r in range(32): ex(SA, r)
    a("s_nop 1")
    a(f"v_smfmac_f32_32x32x32_bf16 {vr(OA,16)}, {vr(v0r(0),4)}, {vr(SA,8)}, v6")
    a(f"v_smfmac_f32_32x32x32_bf16 {vr(OB,16)}, {vr(v0r(0),4)}, {vr(SB,8)}, v6")
    a(f"v_smfmac_f32_32x32x32_bf16 {vr(OA,16)}, {vr(v1r(0),4)}, {vr(SA+8,8)}, v6")
    a(f"v_smfmac_f32_32x32x32_bf16 {vr(OB,16)}, {vr(v1r(0),4)}, {vr(SB+8,8)}, v6")
    a("s_sub_u32 s21, s21, 1")
    a("s_cmp_lg_u32 s21, 0")
    a("s_cbranch_scc1 A_SLOWLOOP")
    a("s_branch A_FINAL")
    a.label("A_CHK")
    a("s_mov_b32 s27, 0")
    a("s_waitcnt vmcnt(4)")
    a("v_cmp_ne_u32 vcc, s74, v161")
    a("s_cmp_eq_u64 vcc, 0")
    a("s_cbranch_scc1 A_CHKD")
    flag_wait_multi(a, [160], 161, sleep=1)
    a("s_branch A_CHKD")
    a.label("A_PUB")
    a("s_waitcnt vmcnt(0)")
    flag_set(a, "s24", 10)
    a.label("A_DONE")

def gen_p3(a):
    MIMIC = int(os.environ.get("MIMIC", "1"))
    a("s_cmp_ge_u32 s2, 192")
    a("s_cbranch_scc1 F_FIN")
    if PROFB: stamp(a, 1)
    a("s_and_b32 s4, s2, 7")
    a("s_lshl_b32 s4, s4, 2")
    a("s_bfe_u32 s5, s2, 0x20003")
    a("s_add_u32 s4, s4, s5")
    a("s_lshr_b32 s5, s2, 5")
    a("s_and_b32 s6, s3, 1")
    a("s_lshr_b32 s7, s3, 1")
    a("s_lshl_b32 s8, s4, 1")
    a("s_add_u32 s8, s8, s6")
    a("v_lshlrev_b32 v6, 4, v0")
    a("s_cmp_eq_u32 s7, 3")
    a("s_cselect_b32 s9, 0, s7")
    a("s_add_u32 s10, s9, 1")
    a("s_cmp_eq_u32 s10, 3")
    a("s_cselect_b32 s10, 0, s10")
    a("s_add_u32 s11, s10, 1")
    a("s_cmp_eq_u32 s11, 3")
    a("s_cselect_b32 s11, 0, s11")
    a("s_lshl_b32 s12, s7, 13")
    a("v_bfe_u32 v12, v0, 2, 2")
    a("v_lshl_add_u32 v13, v5, 2, v12")
    a("v_lshrrev_b32 v14, 1, v12")
    a("v_lshl_add_u32 v14, v5, 2, v14")
    a("v_mul_u32_u24 v14, 18, v14")
    a("v_and_b32 v12, 1, v12")
    a("v_add3_u32 v14, v14, v12, 16")
    a("v_sub_u32 v14, v14, v13")
    a("v_mul_u32_u24 v14, 192, v14")
    a("v_mul_u32_u24 v13, 192, v13")
    a("v_bfe_u32 v12, v0, 4, 1")
    a("v_lshl_add_u32 v13, v12, 5, v13")
    a("v_and_b32 v12, 3, v0")
    a("v_lshl_add_u32 v13, v12, 3, v13")
    a(f"s_mul_i32 s26, s7, {8*18*192}")
    for j in range(3):
        a(f"s_lshl_b32 s13, s{9+j}, 6")
        a("s_add_u32 s13, s13, s26")
        a(f"v_add_u32 v{8+j}, s13, v13")
    DA = 16; OFr = 64; WF = 100; DY = 148
    NW = 4
    lds_wait(a, SY_GO3, 1, sleep=1)
    a("s_mul_i32 s13, s6, 6144")
    a("s_lshl_b32 s14, s9, 11")
    a("s_add_u32 s13, s13, s14")
    a(f"s_add_u32 s13, s13, {L_A}")
    a("v_lshlrev_b32 v7, 6, v4")
    a("v_lshl_add_u32 v7, v5, 4, v7")
    a("v_add_u32 v7, s13, v7")
    a(f"ds_read_b128 {vr(DA,4)}, v7")
    a(f"ds_read_b128 {vr(DA+4,4)}, v7 offset:32")
    a("s_lshl_b32 s13, s6, 8")
    a(f"s_add_u32 s13, s13, {L_G}")
    a("v_lshl_add_u32 v7, v4, 3, s13")
    a("ds_read_b64 v[12:13], v7")
    ident_nat(a, DA+8, DA+12, DA+16)
    a("s_waitcnt lgkmcnt(0)")
    a(f"v_mfma_f32_32x32x16_bf16 {vr(DY,16)}, {vr(DA,4)}, {vr(DA+8,4)}, 0")
    a(f"v_mfma_f32_32x32x16_bf16 {vr(DY,16)}, {vr(DA+4,4)}, {vr(DA+12,4)}, {vr(DY,16)}")
    def wreads(i):
        for j in range(3):
            if i == 8: a(f"v_add_u32 v{8+j}, v14, v{8+j}")
            o, d = (3456*i, 1536) if i < 8 else (0, 6912)
            a(f"ds_read_b64_tr_b16 {vr(WF+12*(i%NW)+4*j,2)}, v{8+j} offset:{o}")
            a(f"ds_read_b64_tr_b16 {vr(WF+12*(i%NW)+4*j+2,2)}, v{8+j} offset:{o+d}")
    for i in range(NW): wreads(i)
    a("s_lshl_b32 s13, s4, 2")
    a("s_add_u32 s13, s13, s7")
    a("s_lshl_b32 s13, s13, 10")
    a(f"s_add_u32 s13, s13, {FL_O}")
    a("v_and_b32 v11, 7, v0")
    a("v_lshl_add_u32 v11, v11, 7, s13")
    a("s_mul_i32 s14, s8, 36864")
    a("s_add_u32 s14, s14, s12")
    a(f"s_add_u32 s14, s14, {OF_OFF}")
    a("s_add_u32 s24, s14, 4096")
    a("s_lshl_b32 s25, s8, 2")
    a("s_add_u32 s25, s25, s7")
    a("s_lshl_b32 s25, s25, 10")
    a(f"s_add_u32 s25, s25, {OX_OFF}")
    a("v_lshlrev_b32 v7, 9, v5")
    a("v_lshl_add_u32 v7, v4, 2, v7")
    a("s_mov_b32 s27, 0xffff0000")
    g = 12; og = 13
    for r in range(16): a(f"v_mul_f32 v{DY+r}, v{DY+r}, v{g}")
    if MIMIC:
        for k in range(8): a(f"v_cvt_pk_bf16_f32 v{DY+2*k}, v{DY+2*k}, v{DY+2*k+1}")
        for k in range(8):
            a(f"v_and_b32 v{DY+2*k+1}, s27, v{DY+2*k}")
            a(f"v_lshlrev_b32 v{DY+2*k}, 16, v{DY+2*k}")
    a("s_mul_i32 s20, s6, 36864")
    for j in range(3):
        a(f"s_sub_u32 s21, s7, s{9+j}")
        a("s_sub_u32 s21, s21, 1")
        a("s_and_b32 s21, s21, 3")
        a("s_lshl_b32 s21, s21, 12")
        a(f"s_mul_i32 s22, s{9+j}, 12288")
        a("s_add_u32 s21, s21, s22")
        a("s_add_u32 s21, s21, s20")
        a(f"v_add_u32 v{164+j}, s21, v6")
    a("s_mul_i32 s21, s9, 12288")
    a("s_add_u32 s21, s21, s20")
    a("v_add_u32 v167, s21, v6")
    srd(a, 20, S_OUT, X_BYTES)
    a("s_lshl_b32 s28, s8, 5")
    a("v_add_u32 v15, s28, v4")
    a("v_mul_u32_u24 v15, 1152, v15")
    a("v_lshl_add_u32 v15, v5, 4, v15")
    a("s_mul_i32 s28, s5, 3")
    a("s_add_u32 s28, s28, s9")
    a("s_lshl_b32 s28, s28, 6")
    flag_wait_multi(a, [11], 2, sleep=1)
    if PROFB: stamp(a, 2)
    for i in range(8):
        a(f"buffer_load_dwordx4 {vr(OFr+4*i,4)}, v6, s[16:19], s{14 if i < 4 else 24} offen offset:{(i%4)*1024} {SC}")
    for k in range(4):
        a(f"buffer_load_dword v{OFr+32+k}, v7, s[16:19], s25 offen offset:{128*k} {SC}")
    for i in range(9):
        nl = min(15, 6*min(NW-1, 8-i))
        a(f"s_waitcnt vmcnt({(7-i+4) if i < 8 else 0}) lgkmcnt({nl})")
        for j in (1, 2, 0):
            cin = "0" if i == 0 else vr(DA+16*j,16)
            a(f"v_mfma_f32_32x32x16_bf16 {vr(DA+16*j,16)}, {vr(WF+12*(i%NW)+4*j,4)}, {vr(OFr+4*i,4)}, {cin}")
        if i + NW < 9: wreads(i+NW)
    if PROFB: stamp(a, 3)
    a("s_barrier")
    a("s_nop 8")
    for j in (1, 2):
        for q in range(4):
            a(f"ds_write_b128 v{164+j}, {vr(DA+16*j+4*q,4)} offset:{1024*q}")
    a("s_cmp_lg_u32 s7, 3")
    a("s_cbranch_scc1 P_OWN")
    for q in range(4):
        a(f"ds_write_b128 v164, {vr(DA+4*q,4)} offset:{1024*q}")
    a("s_waitcnt lgkmcnt(0)")
    a("s_barrier")
    a("s_branch F_FIN")
    a.label("P_OWN")
    a("s_waitcnt lgkmcnt(0)")
    a("s_barrier")
    if PROFB: stamp(a, 4)
    PB = OFr; R = 32
    for q in range(12):
        a(f"ds_read_b128 {vr(PB+4*q,4)}, v167 offset:{1024*q}")
    for sl in range(3):
        a(f"s_waitcnt lgkmcnt({8-4*sl})")
        for k in range(8):
            a(f"v_pk_add_f32 {vr(DA+2*k,2)}, {vr(DA+2*k,2)}, {vr(PB+16*sl+2*k,2)}")
    def rnd():
        for k in range(8): a(f"v_cvt_pk_bf16_f32 v{DA+2*k}, v{DA+2*k}, v{DA+2*k+1}")
        for k in range(8):
            a(f"v_and_b32 v{DA+2*k+1}, s27, v{DA+2*k}")
            a(f"v_lshlrev_b32 v{DA+2*k}, 16, v{DA+2*k}")
    if MIMIC == 1:
        rnd()
        for k in range(8): a(f"v_pk_mul_f32 {vr(DA+2*k,2)}, {vr(DA+2*k,2)}, v[12:13] op_sel:[0,1] op_sel_hi:[1,1]")
        rnd()
        for k in range(8): a(f"v_pk_add_f32 {vr(DA+2*k,2)}, {vr(DA+2*k,2)}, {vr(DY+2*k,2)}")
    else:
        for k in range(8): a(f"v_pk_fma_f32 {vr(DA+2*k,2)}, {vr(DA+2*k,2)}, v[12:13], {vr(DY+2*k,2)} op_sel:[0,1,0] op_sel_hi:[1,1,1]")
    for k in range(8):
        a(f"v_cvt_pk_bf16_f32 v{R+k}, v{DA+2*k}, v{DA+2*k+1}")
    a("s_nop 1")
    for k in (0, 4):
        a(f"v_permlane32_swap_b32 v{R+k}, v{R+k+2}")
        a(f"v_permlane32_swap_b32 v{R+k+1}, v{R+k+3}")
    a(f"buffer_store_dwordx4 {vr(R,4)}, v15, s[20:23], s28 offen")
    a(f"buffer_store_dwordx4 {vr(R+4,4)}, v15, s[20:23], s28 offen offset:32")
    if PROF: a("s_waitcnt vmcnt(0)")
    finish(a)

SCAL = os.environ.get("SCAL","1") == "1"
def cmuls(a, lst):
    if SCAL:
        for (d, x, w) in lst:
            a(f"v_mul_f32 v{d}, v{x}, v{w}")
            a(f"v_mul_f32 v{d+1}, v{x}, v{w+1}")
        for (d, x, w) in lst:
            a(f"v_fma_f32 v{d}, -v{x+1}, v{w+1}, v{d}")
            a(f"v_fmac_f32 v{d+1}, v{x+1}, v{w}")
        return
    for (d, x, w) in lst:
        a(f"v_pk_mul_f32 {vr(d,2)}, {vr(x,2)}, {vr(w,2)} op_sel:[0,0] op_sel_hi:[0,1]")
    for (d, x, w) in lst:
        a(f"v_pk_fma_f32 {vr(d,2)}, {vr(x,2)}, {vr(w,2)}, {vr(d,2)} op_sel:[1,1,0] op_sel_hi:[1,0,1] neg_lo:[0,1,0]")

class Rec:
    def __init__(self): self.l = []
    def __call__(self, t): self.l.append(t)

def cmul_ip(a, lst, T):
    if SCAL:
        for k, (x, w) in enumerate(lst):
            a(f"v_mul_f32 v{T+2*k}, v{x}, v{w}")
            a(f"v_mul_f32 v{T+2*k+1}, v{x}, v{w+1}")
        for k, (x, w) in enumerate(lst):
            a(f"v_fma_f32 v{x}, -v{x+1}, v{w+1}, v{T+2*k}")
            a(f"v_fma_f32 v{x+1}, v{x+1}, v{w}, v{T+2*k+1}")
        return
    for k, (x, w) in enumerate(lst):
        a(f"v_pk_mul_f32 {vr(T+2*k,2)}, {vr(x,2)}, {vr(w,2)} op_sel:[0,0] op_sel_hi:[0,1]")
    for k, (x, w) in enumerate(lst):
        a(f"v_pk_fma_f32 {vr(x,2)}, {vr(x,2)}, {vr(w,2)}, {vr(T+2*k,2)} op_sel:[1,1,0] op_sel_hi:[1,0,1] neg_lo:[0,1,0]")

def param_issue(a, dst, dch, part=3):
    if part & 1:
        a("s_lshl_b32 s4, s31, 1")
        a("s_add_u32 s4, s4, s8")
        a("s_lshl_b32 s6, s4, 8")
        a("s_lshl_b32 s7, s9, 7")
        a("s_add_u32 s6, s6, s7")
        a("v_lshl_add_u32 v14, v0, 1, s6")
        a("s_lshl_b32 s6, s4, 1")
        a("v_mov_b32 v15, s6")
        a("s_lshl_b32 s6, s31, 2")
        a("s_lshl_b32 s7, s30, 1")
        a("s_sub_u32 s7, s7, 1")
        a("v_min_u32 v13, s7, v0")
        a("v_lshl_add_u32 v13, v13, 1, s6")
    if part & 2:
        a(f"global_load_ushort v{dst}, v15, s[{S_LOGDT}:{S_LOGDT+1}] offset:{2*dch}")
        for k, reg in enumerate((S_LOGA, S_AIM, S_CR, S_CI)):
            a(f"global_load_ushort v{dst+1+k}, v14, s[{reg}:{reg+1}] offset:{256*dch}")
        if dch == 0:
            a(f"global_load_ushort v157, v13, s[{S_DSKIP}:{S_DSKIP+1}]")

def kgen_head(a):
    a("s_bfe_u32 s8, s3, 0x10001")
    a("s_and_b32 s9, s3, 1")
    a("s_cmp_ge_u32 s2, 224")
    a("s_cselect_b32 s30, 2, 1")
    a(f"s_mov_b32 s29, {L_KC}")
    a(f"s_cselect_b32 s29, {L_KC4}, s29")
    param_issue(a, 8, 0, 1)
    a("s_cmp_lg_u32 s30, 1")
    a("s_cbranch_scc0 K_NF")
    a("s_setprio 3")
    param_issue(a, 8, 0, 2)
    a("s_and_b32 s4, s2, 7")
    a("s_mul_i32 s4, s4, 18432")
    a("s_bfe_u32 s5, s2, 0x20003")
    a("s_lshl_b32 s5, s5, 2")
    a("s_add_u32 s5, s5, s3")
    a("s_sub_u32 s5, s5, 8")
    a("s_mul_i32 s5, s5, 1152")
    a("s_add_u32 s4, s4, s5")
    a("v_min_u32 v14, 8, v0")
    a("v_lshl_add_u32 v14, v14, 7, s4")
    for k, reg in enumerate((S_LOGA, S_AIM, S_CR, S_CI)):
        if XPF: a(f"global_load_dword v{160+k}, v14, s[{reg}:{reg+1}]")
    a("s_barrier")
    a("s_branch K_NF")

def conv_setup(a):
    a("s_lshl_b32 s13, s30, 1")
    a("s_sub_u32 s14, s13, 1")
    a("s_sub_u32 s15, s3, 8")
    a("v_and_b32 v10, 15, v0")
    a("v_lshrrev_b32 v11, 4, v0")
    a("v_sub_u32 v6, 15, v10")
    a("v_lshl_add_u32 v6, v11, 3, v6")
    a("v_and_b32 v7, 1, v6")
    a(f"v_mul_u32_u24 v7, {KC_STRIDE-2}, v7")
    a("v_lshl_add_u32 v6, v6, 1, v7")
    a("s_lshl_b32 s66, s15, 7")
    a("s_add_u32 s66, s66, s29")
    a("v_add_u32 v6, s66, v6")
    a("v_add_u32 v7, 1024, v6")
    a("v_add_u32 v8, 2048, v6")
    a("v_add_u32 v9, 3072, v6")
    a("v_lshl_add_u32 v4, v10, 1, v11")
    a("s_lshl_b32 s66, s15, 3")
    a("s_add_u32 s66, s66, 2")
    a("v_add_u32 v4, s66, v4")
    a("s_lshl_b32 s66, s15, 14")
    a(f"s_add_u32 s67, s66, {L_P[2]-32768}")
    a("s_cmp_ge_u32 s15, 2")
    a("s_cselect_b32 s66, s67, s66")
    a("v_lshrrev_b32 v5, 2, v0")
    a("v_and_b32 v5, 8, v5")
    a("v_xor_b32 v5, v5, v0")
    a("v_lshl_add_u32 v5, v5, 4, s66")
    a("v_bfe_u32 v10, v4, 2, 2")
    a("v_lshlrev_b32 v10, 4, v10")
    a("v_lshl_add_u32 v10, v4, 6, v10")
    a(f"v_add_u32 v10, {L_U}, v10")
    a("v_add_u32 v4, 4, v4")
    a("v_bfe_u32 v11, v4, 2, 2")
    a("v_lshlrev_b32 v11, 4, v11")
    a("v_lshl_add_u32 v11, v4, 6, v11")
    a(f"v_add_u32 v11, {L_U}, v11")
    a(f"s_mul_i32 s66, s15, {16*36864}")
    a("s_lshl_b32 s24, s31, 7")
    a(f"s_add_u32 s25, s24, {FL_A}")
    a("s_add_u32 s24, s24, s66")
    a(f"s_add_u32 s24, s24, {AF_OFF}")
    a("s_mov_b32 s26, 0")
    a("s_mov_b32 s27, 0")
    a("v_lshlrev_b32 v12, 16, v157")
    a("s_nop 0")
    for c in range(4): a(f"v_readlane_b32 s{20+c}, v12, {c}")

def gen_kgen(a):
    a.label("K_NF")
    hi = struct.unpack("<f", struct.pack("<f", LOG2E))[0]
    a(f"s_mov_b32 s70, {fhex(hi)}")
    a(f"s_mov_b32 s71, {fhex(LOG2E-hi)}")
    a(f"s_mov_b32 s72, {fhex(math.log(2.0))}")
    a("s_mov_b32 s73, 0xffff0000")
    a("s_mov_b32 s60, 0x01000100")
    a("s_mov_b32 s61, 0x03020302")
    a("s_mov_b32 s62, 0x01000302")
    a("s_cmp_lt_u32 s3, 8")
    a("s_cselect_b32 s11, 2, 0")
    a("s_add_u32 s8, s8, s11")
    a(f"s_mul_i32 s5, s8, {2*KC_STRIDE}")
    a("s_add_u32 s5, s5, s29")
    UD = int(os.environ.get("UD", "96"))
    a(f"s_sub_u32 s63, s2, {UD}")
    a("s_cmp_lt_u32 s63, 128")
    a("s_cselect_b32 s63, s3, 0")
    assert ROT == "4"
    a("s_bfe_u32 s21, s2, 0x10002")
    a("v_lshrrev_b32 v6, 4, v0")
    a("v_bfe_u32 v7, v0, 2, 2")
    a("v_lshl_add_u32 v130, v6, 3, v7")
    a("v_bfe_u32 v131, v0, 1, 1")
    a("s_lshl_b32 s22, s21, 2")
    a("v_add_u32 v131, s22, v131")
    a("v_bfe_u32 v7, v130, 1, 3")
    a("v_xor_b32 v131, v131, v7")
    a("v_and_b32 v7, 1, v0")
    a("v_lshlrev_b32 v7, 3, v7")
    a("v_lshl_add_u32 v7, v130, 7, v7")
    a("s_and_b32 s22, s3, 3")
    a("s_lshl_b32 s23, s22, 12")
    a("s_add_u32 s23, s23, 16384")
    a("v_add_u32 v7, s23, v7")
    a(f"s_mul_i32 s66, s22, {4*9216}")
    a("v_lshl_add_u32 v130, v131, 4, v7")
    a("v_xor_b32 v131, 32, v130")
    a("v_mul_u32_u24 v129, 9216, v6")
    a("v_and_b32 v7, 15, v0")
    a("v_lshl_add_u32 v129, v7, 4, v129")
    a("s_and_b32 s23, s2, 3")
    a("s_lshl_b32 s23, s23, 2")
    a("s_bfe_u32 s22, s2, 0x20003")
    a("s_add_u32 s23, s23, s22")
    a("s_lshl_b32 s22, s20, 1")
    a("s_add_u32 s22, s22, s21")
    a(f"s_mul_i32 s64, s23, {16*9216}")
    a("s_lshl_b32 s21, s22, 9")
    a("s_add_u32 s64, s64, s21")
    a("s_add_u32 s64, s64, s66")
    a(f"s_add_u32 s64, s64, {UT_OFF}")
    a("s_lshl_b32 s65, s22, 4")
    a("s_add_u32 s65, s65, s23")
    a("s_lshl_b32 s65, s65, 7")
    a(f"s_add_u32 s65, s65, {FL_U1}")
    A = 16; T = 32; W1 = 40; W2 = 42; G1 = 44; G2 = 46; C0 = 14
    RY = 48; RX0 = 64; RX1 = 80; RX2 = 96
    E = 108
    r = Rec()
    r("s_cmp_lg_u32 s30, 1")
    r("s_cbranch_scc1 K_NI")
    param_issue(r, 8, 0, 2)
    r("K_NI:")
    n_issue = len(r.l)
    r(f"s_mul_i32 s6, s9, {KC_STRIDE}")
    r("s_add_u32 s6, s6, s5")
    r(f"v_lshl_add_u32 v{E}, v0, 2, s6")
    for k in range(1, 4): r(f"v_add_u32 v{E+k}, {1088*k}, v{E}")
    r("v_and_b32 v18, 15, v0")
    r("v_lshrrev_b32 v19, 4, v0")
    r(f"v_mul_u32_u24 v{E+4}, 272, v18")
    r(f"v_lshl_add_u32 v{E+4}, v19, 4, v{E+4}")
    r(f"v_add_u32 v{E+4}, s6, v{E+4}")
    r("v_lshrrev_b32 v20, 1, v19")
    r("v_lshlrev_b32 v20, 8, v20")
    r("v_and_b32 v21, 1, v19")
    r("v_lshl_add_u32 v20, v21, 3, v20")
    r("v_lshl_add_u32 v20, v18, 4, v20")
    r(f"v_add_u32 v{E+5}, s5, v20")
    r("v_cmp_gt_u32 vcc, 2, v19")
    r("v_lshlrev_b32 v21, 2, v18")
    r("v_lshlrev_b32 v22, 3, v18")
    r("v_cndmask_b32 v21, v21, v22, vcc")
    r("v_lshl_add_u32 v21, v19, 7, v21")
    r(f"v_add_u32 v{E+6}, s5, v21")
    r("v_mov_b32 v22, 64")
    r("v_mov_b32 v23, 4")
    r("v_cndmask_b32 v22, v22, v23, vcc")
    r(f"v_add_u32 v{E+7}, v22, v{E+6}")
    r("v_lshlrev_b32 v23, 7, v19")
    r("v_lshl_add_u32 v23, v18, 1, v23")
    r(f"v_add_u32 v{E+8}, s5, v23")
    r(f"v_lshl_add_u32 v{E+9}, v0, 1, s5")
    r("v_lshlrev_b32 v20, 4, v4")
    r("v_cmp_eq_u32 vcc, 1, v5")
    r("v_lshlrev_b32 v21, 3, v4")
    r("v_add_u32 v21, 508, v21")
    r("v_cndmask_b32 v20, v20, v21, vcc")
    r(f"v_add_u32 v{E+10}, s5, v20")
    def sel(dst, f, t):
        r(f"v_mov_b32 v{dst}, {f}")
        r(f"v_mov_b32 v20, {t}")
        r(f"v_cndmask_b32 v{dst}, v{dst}, v20, vcc")
    sel(E+11, "0x05040706", "0x03020504")
    sel(E+12, "0x01000302", "0x01000100")
    sel(E+13, "0x01000302", "0x03020504")
    sel(E+14, "0x01000302", "0x05040504")
    r("v_and_b32 v20, 1, v0")
    r("v_cmp_eq_u32 vcc, 1, v20")
    r("v_lshlrev_b32 v22, 4, v0")
    r("v_sub_u32 v21, 1008, v22")
    sel(E+15, "0x01000302", "0x03020302")
    r(f"v_add_u32 v{E+16}, s5, v21")
    r(f"v_add_u32 v{E+17}, s5, v22")
    r(f"v_mov_b32 v{E+18}, 0")
    r("s_lshl_b32 s6, s8, 2")
    r(f"v_add_u32 v{E+19}, s6, v3")
    n_const = len(r.l)
    r("s_waitcnt vmcnt(0) lgkmcnt(0)")
    def pack(base, row, src): r(f"v_cvt_pk_bf16_f32 v{base+row}, v{src}, v{src+1}")
    r("v_lshlrev_b32 v8, 16, v8")
    r("v_lshlrev_b32 v6, 16, v9")
    exp_precise(r, 8, 8, T+2, T+3)
    exp_precise(r, 6, 6, T, T+1)
    r("v_lshlrev_b32 v7, 16, v10")
    r("v_cvt_pk_bf16_f32 v8, v8, v8")
    r("v_cvt_pk_bf16_f32 v6, v6, v6")
    r(f"v_lshlrev_b32 v{C0}, 16, v11")
    r("v_and_b32 v8, s73, v8")
    r("v_and_b32 v6, s73, v6")
    r(f"v_lshlrev_b32 v{C0+1}, 16, v12")
    r("v_mul_f32 v7, v7, v8")
    r("v_mul_f32 v6, v6, v8")
    r(f"v_mul_f32 v{C0}, v{C0}, v8")
    r(f"v_mul_f32 v{C0+1}, v{C0+1}, v8")
    r("v_mul_f32 v7, 0.15915494, v7")
    r("v_mul_f32 v6, s70, v6")
    r(f"v_add_f32 v{C0}, v{C0}, v{C0}")
    r(f"v_add_f32 v{C0+1}, v{C0+1}, v{C0+1}")
    r(f"v_mov_b32 v{RY}, 0x3f80")
    Q = A+2
    anc = ((W1, 1, False), (A, 8, True), (G1, 128, False))
    for k, (dst, p, conj) in enumerate(anc):
        r(f"v_mul_f32 v{Q+4*k+1}, {fhex(float(-p if conj else p))}, v7")
    for k, (dst, p, conj) in enumerate(anc):
        r(f"v_mul_f32 v{Q+4*k}, {fhex(-float(p))}, v6")
    for k in range(3): r(f"v_fract_f32 v{Q+4*k+1}, v{Q+4*k+1}")
    for k in range(3): r(f"v_exp_f32 v{Q+4*k}, v{Q+4*k}")
    for k in range(3):
        r(f"v_cos_f32 v{Q+4*k+2}, v{Q+4*k+1}")
        r(f"v_sin_f32 v{Q+4*k+3}, v{Q+4*k+1}")
    r("s_nop 0")
    for k, (dst, p, conj) in enumerate(anc):
        r(f"v_mul_f32 v{dst}, v{Q+4*k}, v{Q+4*k+2}")
        r(f"v_mul_f32 v{dst+1}, v{Q+4*k}, v{Q+4*k+3}")
    Y = lambda j: A + 2*(j-1)
    cmuls(r, [(Y(2), Y(1), Y(1)), (W2, W1, W1), (G2, G1, G1)])
    cmuls(r, [(Y(4), Y(2), Y(2)), (Y(3), Y(2), Y(1))])
    pack(RY, 1, Y(1)); pack(RY, 2, Y(2))
    cmuls(r, [(Y(8), Y(4), Y(4)), (Y(5), Y(4), Y(1)), (Y(6), Y(4), Y(2)), (Y(7), Y(4), Y(3))])
    for j in range(3, 9): pack(RY, j, Y(j))
    cmul_ip(r, [(Y(j), Y(8)) for j in (1,2,3,4)], T)
    cmul_ip(r, [(Y(j), Y(8)) for j in (5,6,7)], T)
    for j in range(1, 8): pack(RY, 8+j, Y(j))
    Z = lambda i: A + 2*i
    r(f"v_mov_b32 v{Z(0)}, v{C0}")
    r(f"v_mov_b32 v{Z(0)+1}, v{C0+1}")
    cmuls(r, [(Z(1), C0, W1), (Z(2), C0, W2), (T, W2, W2)])
    cmuls(r, [(Z(3), Z(1), W2), (Z(4), C0, T), (Z(5), Z(1), T), (Z(6), Z(2), T)])
    cmuls(r, [(Z(7), Z(3), T)])
    for i in range(8): pack(RX0, i, Z(i))
    cmul_ip(r, [(Z(i), G1) for i in (0,2,4,6)], T)
    cmul_ip(r, [(Z(i), G1) for i in (1,3,5,7)], T)
    for i in range(8): pack(RX0, 8+i, Z(i))
    cmul_ip(r, [(Z(i), G1) for i in (0,2,4,6)], T)
    cmuls(r, [(Z(i+1), Z(i), G1) for i in (0,2,4,6)])
    for ii in range(4): pack(RX1, ii, Z(2*ii))
    for ii in range(4): pack(RX1, 4+ii, Z(2*ii+1))
    for q in range(2):
        cmul_ip(r, [(Z(i), G2) for i in (0,4,1,5)], T)
        for k, i in enumerate((0,4,1,5)): pack(RX1, 8+4*q+k, Z(i))
    for q in range(4):
        cmul_ip(r, [(Z(0), G2), (Z(1), G2)], T)
        pack(RX2, 2*q, Z(0)); pack(RX2, 2*q+1, Z(1))
    cmul_ip(r, [(Z(0), G2)], T)
    pack(RX2, 8, Z(0))
    conv_setup(r)
    UFB = int(os.environ.get("UFB", "5"))
    KI = int(os.environ.get("KI", "1")); KM = int(os.environ.get("KM", "4"))
    consts = r.l[n_issue:n_const]; issue = r.l[:n_issue]; maths = r.l[n_const:]
    KT = int(os.environ.get("KT", "60"))
    KB = int(os.environ.get("KB", "4"))
    sizes = {k: KT for k in range(KM, 9)}
    sizes[KB] = len(maths) - KT*(9 - KM - 1)
    print("kgen", len(consts), len(maths), sizes)
    def bar():
        lab = a.newlabel("K_B")
        a("s_cmp_lg_u32 s30, 1")
        a(f"s_cbranch_scc1 {lab}")
        a("s_barrier")
        a.label(lab)
    if KI == 0:
        for ln in issue: a(ln)
    for ln in consts: a(ln)
    if os.environ.get("AP"): a(f"s_setprio {os.environ['AP']}")
    for k in range(1, 10):
        bar()
        if k == 1:
            a("s_cmp_eq_u32 s63, 0")
            a("s_cbranch_scc1 K_UB1")
            for q in range(2):
                a(f"ds_read_b64_tr_b16 {vr(48+4*q,2)}, v{130+q}")
                a(f"ds_read_b64_tr_b16 {vr(50+4*q,2)}, v{131-q} offset:512")
            a("s_waitcnt lgkmcnt(0)")
            for q in range(2):
                a(f"buffer_store_dwordx4 {vr(48+4*q,4)}, v129, s[16:19], s64 offen offset:{256*q} sc1")
            a(f"s_load_dword s74, s[{S_DBG}:{S_DBG+1}], 0")
            a.label("K_UB1")
        if k == UFB:
            assert UFB == KM + 1
            a("s_cmp_eq_u32 s63, 11")
            a(f"s_cbranch_scc1 K_U{k}")
            a.label(f"K_UB{k}")
        if k == KI:
            for ln in issue: a(ln)
        if KM <= k < 9:
            for ln in maths[:sizes[k]]: a(ln)
            maths = maths[sizes[k]:]
    stamp(a, 2)
    XF2 = 16; AC = 132
    for (base, rows, dst) in ((RY, 16, RY), (RX0, 16, RX0), (RX1, 16, RX1), (RX2, 10, XF2)):
        for row in range(0, rows, 2):
            o = 68*(row % 4)
            a(f"ds_write2_b32 v{E+row//4}, v{base+row}, v{base+row+1} offset0:{o} offset1:{o+68}")
        for ks in range(4):
            a(f"ds_read_b128 {vr(dst+4*ks,4)}, v{E+4} offset:{ks*64}")
    for t, xf in enumerate((RX0, RX1, XF2)):
        a(f"s_waitcnt lgkmcnt({(15, 9, 0)[t]})")
        for ks in range(4):
            cin = "0" if ks == 0 else vr(AC+4*t,4)
            a(f"v_mfma_f32_16x16x32_bf16 {vr(AC+4*t,4)}, {vr(xf+4*ks,4)}, {vr(RY+4*ks,4)}, {cin}")
    a("s_cmp_eq_u32 s9, 0")
    a("s_cbranch_scc1 K_LEAD")
    a("s_nop 5")
    for t in range(3):
        a(f"ds_write_b128 v{E+17}, {vr(AC+4*t,4)} offset:{KC_STRIDE+1024*t}")
    a("s_waitcnt lgkmcnt(0)")
    a("s_mov_b64 exec, 1")
    a(f"ds_add_u32 v{E+19}, v1 offset:{4*SY_KP}")
    a("s_mov_b64 exec, -1")
    a("s_branch K_NEXT")
    a.label("K_LEAD")
    a(f"s_mov_b32 s97, {SPIN_MAX}")
    a.label("K_PW")
    a(f"ds_read_b32 v2, v{E+19} offset:{4*SY_KP}")
    a("s_waitcnt lgkmcnt(0)")
    a("v_readfirstlane_b32 s96, v2")
    a("s_cmp_ge_u32 s96, 1")
    a("s_cbranch_scc1 K_PWOK")
    a("s_sub_u32 s97, s97, 1")
    a("s_cbranch_scc0 K_PW")
    a.label("K_PWOK")
    for t in range(3):
        a(f"ds_read_b128 {vr(72+4*t,4)}, v{E+17} offset:{KC_STRIDE+1024*t}")
    a("s_waitcnt lgkmcnt(0)")
    for i in range(6):
        a(f"v_pk_add_f32 {vr(AC+2*i,2)}, {vr(AC+2*i,2)}, {vr(72+2*i,2)}")
    for i in range(6):
        a(f"v_cvt_pk_bf16_f32 v{24+i}, v{AC+2*i}, v{AC+2*i+1}")
    a(f"ds_write_b64 v{E+5}, v[24:25]")
    a(f"ds_write_b32 v{E+6}, v26 offset:512")
    a(f"ds_write_b32 v{E+7}, v27 offset:512")
    a(f"ds_write_b16 v{E+8}, v28 offset:1024")
    a(f"ds_write_b16_d16_hi v{E+8}, v28 offset:1056")
    a(f"ds_write_b16 v{E+8}, v29 offset:1088")
    a(f"ds_write_b16_d16_hi v{E+8}, v29 offset:1120")
    a(f"ds_read_u16 v30, v{E+9} offset:1024")
    a(f"ds_read_u16 v31, v{E+9} offset:1152")
    a(f"ds_read_u16 v34, v{E+9} offset:1026")
    a(f"ds_read_u16 v35, v{E+9} offset:1154")
    a(f"ds_read2_b32 v[32:33], v{E} offset0:192 offset1:193")
    a(f"ds_read2_b32 v[36:37], v{E+10} offset0:0 offset1:1")
    a(f"ds_read2_b32 v[38:39], v{E+10} offset0:2 offset1:3")
    a("s_waitcnt lgkmcnt(0)")
    a("v_lshl_or_b32 v30, v34, 16, v30")
    a("v_lshl_or_b32 v31, v35, 16, v31")
    a("v_perm_b32 v64, v33, v33, s60")
    a("v_perm_b32 v65, v32, v32, s61")
    a("v_perm_b32 v66, v32, v32, s62")
    a("v_perm_b32 v67, v32, v32, s60")
    a(f"v_perm_b32 v68, v39, v38, v{E+11}")
    a(f"v_perm_b32 v69, v38, v38, v{E+12}")
    a(f"v_perm_b32 v70, v38, v37, v{E+13}")
    a(f"v_perm_b32 v71, v37, v36, v{E+14}")
    a(f"ds_write_b128 v{E+16}, v[64:67] offset:2048")
    a(f"ds_write_b128 v{E+16}, v[68:71] offset:3072")
    for (src, dst) in ((30, 56), (31, 60)):
        a(f"v_perm_b32 v{dst}, v{src}, v{src}, s61")
        a(f"v_perm_b32 v{dst+1}, v{src}, v{src}, v{E+15}")
        a(f"v_perm_b32 v{dst+2}, v{src}, v{src}, s60")
        a(f"v_perm_b32 v{dst+3}, v{src}, v{src}, s60")
    a(f"ds_write_b128 v{E+16}, v[56:59] offset:1024")
    a(f"ds_write_b128 v{E+16}, v[60:63]")
    a("s_mov_b64 exec, 0xffff")
    a(f"ds_write_b32 v{E}, v{E+18} offset:4096")
    a(f"ds_write_b32 v{E}, v{E+18} offset:{KC_STRIDE+4096}")
    a("s_mov_b64 exec, -1")
    for i in range(4):
        a(f"ds_read_b128 {vr(72+8*i,4)}, v{E+17} offset:{1024*i}")
        a(f"ds_read_b32 v{76+8*i}, v{E+17} offset:{1024*i+16}")
    for i in range(4):
        a(f"s_waitcnt lgkmcnt({6-2*i+i})")
        for k in range(4):
            a(f"v_alignbit_b32 v{72+8*i+k}, v{73+8*i+k}, v{72+8*i+k}, 16")
        a(f"ds_write_b128 v{E+17}, {vr(72+8*i,4)} offset:{KC_STRIDE+1024*i}")
    a("s_lshl_b32 s11, s11, 4")
    a("v_add_u32 v72, s11, v3")
    a("s_waitcnt lgkmcnt(0)")
    a("s_mov_b64 exec, 1")
    a(f"ds_add_u32 v72, v1 offset:{4*SY_KR}")
    a("s_mov_b64 exec, -1")
    a.label("K_NEXT")
    a("s_cmp_ge_u32 s3, 8")
    a("s_cbranch_scc1 K_DONE")
    a("v_and_b32 v4, 31, v0")
    a("v_lshrrev_b32 v5, 5, v0")
    a("s_setprio 0")
    stamp(a, 3)
    a("s_branch F_ATTN")
    a.label("K_DONE")
    stamp(a, 3)

    def ring_piece():
        a.label(f"K_U{UFB}")
        fetch_nonce(a, "K", True, 158)
        a("s_waitcnt vmcnt(0)")
        flag_set(a, "s65", 158)
        stamp(a, 1)
        a(f"s_branch K_UB{UFB}")
    global RING_PIECE
    RING_PIECE = ring_piece

def gen_conv(a):
    a("s_setprio 0")
    AC = 12
    def F(b, mu): return (44 if b == 0 else 104) + 4*mu
    def X(b, tau):
        if tau == 7: return 164
        return (76 if b == 0 else 136) + 4*tau
    def loads(b):
        out = []
        for k in range(8):
            mp = 7-k
            base = 6 + (mp >> 1); o = (mp & 1)*128 + 16*b
            out.append(f"ds_read2_b32 {vr(F(b,k),2)}, v{base} offset0:{o} offset1:{o+1}")
            out.append(f"ds_read2_b32 {vr(F(b,k)+2,2)}, v{base} offset0:{o+2} offset1:{o+3}")
            out.append(f"ds_read_b128 {vr(X(b,k),4)}, v{10+b} offset:{2048*k}")
        return out
    def unit(b, inter):
        order = [(0, 7)] + [(mu, t) for mu in range(8) for t in range(mu, 8) if (mu, t) != (0, 7)]
        inter = list(inter)
        for k, (mu, t) in enumerate(order):
            cin = "0" if (b == 0 and mu == 0) else vr(AC+4*t,4)
            a(f"v_mfma_f32_16x16x32_bf16 {vr(AC+4*t,4)}, {vr(F(b,mu),4)}, {vr(X(b,t-mu),4)}, {cin}")
            if k >= 1 and inter: a(inter.pop(0))
        assert not inter
    a("s_mov_b32 s8, s15")
    a(f"s_mov_b32 s97, {SPIN_MAX}")
    a.label("C_W")
    a(f"ds_read_b128 v[12:15], v3")
    a("s_waitcnt lgkmcnt(0)")
    a("v_cmp_le_u32 vcc, 1, v12")
    a("v_cmp_le_u32 s[4:5], 4, v13")
    a("v_cmp_le_u32 s[6:7], 2, v14")
    a("s_and_b64 vcc, vcc, s[4:5]")
    a("s_and_b64 vcc, vcc, s[6:7]")
    a("s_cbranch_scc1 C_WOK")
    a("s_sleep 1")
    a("s_sub_u32 s97, s97, 1")
    a("s_cbranch_scc0 C_W")
    a.label("C_WOK")
    a("s_setprio 3")
    stamp(a, 4)
    a.label("C_JOB")
    for ln in loads(0): a(ln)
    a("s_mov_b32 s10, 16")
    a.label("C_LOOP")
    a("s_waitcnt lgkmcnt(0)")
    unit(0, loads(1))
    a("s_waitcnt lgkmcnt(0)")
    adv = [f"v_add_u32 v{6+k}, {2*KC_STRIDE}, v{6+k}" for k in range(4)] + ["v_xor_b32 v10, s10, v10", "v_xor_b32 v11, s10, v11"]
    unit(1, adv + loads(0))
    a("s_add_u32 s10, s10, 32")
    a("s_nop 4")
    for t in range(8):
        a(f"ds_write_b128 v5, {vr(AC+4*t,4)} offset:{1024*t}")
    a("v_xor_b32 v5, 8192, v5")
    a("s_cmp_eq_u32 s10, 48")
    a("s_cbranch_scc1 C_LOOP")
    a("s_waitcnt lgkmcnt(0)")
    lds_add(a, SY_PD)
    stamp(a, 5)
    Ub = 12; Tb = 20; Pb = 44; Ad = 36
    a("s_lshl_b32 s5, s8, 11")
    a(f"v_bfe_u32 v{Ad}, v0, 1, 4")
    a(f"v_and_b32 v{Ad+1}, 1, v0")
    a(f"v_mul_u32_u24 v{Ad+1}, 40, v{Ad+1}")
    a(f"v_xor_b32 v{Ad}, v{Ad}, v{Ad+1}")
    a(f"v_and_b32 v{Ad+1}, 32, v0")
    a(f"v_lshl_add_u32 v{Ad}, v{Ad+1}, 1, v{Ad}")
    a(f"v_lshl_add_u32 v{Ad}, v{Ad}, 4, s5")
    a(f"v_add_u32 v{Ad+1}, {L_P[2]}, v{Ad}")
    a(f"v_bfe_u32 v{Ad+2}, v0, 2, 2")
    a(f"v_lshlrev_b32 v{Ad+2}, 4, v{Ad+2}")
    a(f"v_xor_b32 v{Ad+2}, s27, v{Ad+2}")
    a(f"v_lshl_add_u32 v{Ad+2}, v0, 6, v{Ad+2}")
    a("s_lshl_b32 s5, s8, 12")
    a(f"s_add_u32 s5, s5, {L_U+2048}")
    a(f"v_add_u32 v{Ad+2}, s5, v{Ad+2}")
    a(f"v_xor_b32 v{Ad+3}, 16, v{Ad+2}")
    for c in range(2):
        a(f"ds_read_b128 {vr(Ub+4*c,4)}, v{Ad+2+c}")
    a("v_lshrrev_b32 v4, 2, v0")
    a("v_mul_u32_u24 v4, 36864, v4")
    a(f"v_and_b32 v{Ad+4}, 3, v0")
    a(f"v_lshl_add_u32 v4, v{Ad+4}, 4, v4")
    a("s_add_u32 s26, s26, 4")
    a("s_waitcnt lgkmcnt(0)")
    for c in range(2):
        for k in range(4):
            a(f"v_lshlrev_b32 v{Tb+8*c+2*k}, 16, v{Ub+4*c+k}")
            a(f"v_and_b32 v{Tb+8*c+2*k+1}, s73, v{Ub+4*c+k}")
        for k in range(8):
            a(f"v_mul_f32 v{Tb+8*c+k}, s{20+c}, v{Tb+8*c+k}")
    for k in range(8):
        a(f"v_cvt_pk_bf16_f32 v{Ub+k}, v{Tb+2*k}, v{Tb+2*k+1}")
    for k in range(8):
        a(f"v_lshlrev_b32 v{Tb+2*k}, 16, v{Ub+k}")
        a(f"v_and_b32 v{Tb+2*k+1}, s73, v{Ub+k}")
    lds_wait(a, SY_PD, "s26")
    for c in range(2):
        for w in range(4):
            for hh in range(2):
                a(f"ds_read_b128 {vr(Pb+32*c+8*w+4*hh,4)}, v{Ad+w//2} offset:{16384*(w%2)+8192*c+256*hh}")
    for c in range(2):
        P = Pb + 32*c
        a(f"s_waitcnt lgkmcnt({8-8*c})")
        for k in range(8):
            a(f"v_add_f32 v{P+k}, v{P+k}, v{P+8+k}")
            a(f"v_add_f32 v{P+16+k}, v{P+16+k}, v{P+24+k}")
        for k in range(8):
            a(f"v_add_f32 v{P+k}, v{P+k}, v{P+16+k}")
        for k in range(4):
            a(f"v_cvt_pk_bf16_f32 v{P+8+k}, v{P+2*k}, v{P+2*k+1}")
        for k in range(4):
            a(f"v_lshlrev_b32 v{P+2*k}, 16, v{P+8+k}")
            a(f"v_and_b32 v{P+2*k+1}, s73, v{P+8+k}")
        for k in range(8):
            a(f"v_add_f32 v{P+k}, v{P+k}, v{Tb+8*c+k}")
        for k in range(4):
            a(f"v_cvt_pk_bf16_f32 v{Ub+4*c+k}, v{P+2*k}, v{P+2*k+1}")
        a(f"buffer_store_dwordx4 {vr(Ub+4*c,4)}, v4, s[16:19], s24 offen offset:{64*c} sc1")
    a("s_lshr_b32 s5, s26, 2")
    a("s_cmp_ge_u32 s5, s30")
    a("s_cbranch_scc1 C_PUB")
    lds_add(a, SY_WP)
    a("s_add_u32 s24, s24, 128")
    a("s_mov_b32 s27, 32")
    a("s_mov_b32 s20, s22")
    a("s_mov_b32 s21, s23")
    lds_wait(a, SY_WP, 4)
    lds_wait(a, SY_KR + 8, 2, sleep=1)
    a("s_branch C_JOB")
    a.label("C_PUB")
    get_nonce(a)
    a("s_waitcnt vmcnt(0)")
    a("s_mov_b64 exec, 1")
    a(f"ds_add_rtn_u32 v2, v3, v1 offset:{4*SY_CA}")
    a("s_mov_b64 exec, -1")
    a("s_waitcnt lgkmcnt(0)")
    a("v_readfirstlane_b32 s96, v2")
    a("s_cmp_lg_u32 s96, 3")
    a("s_cbranch_scc1 C_END")
    a(f"v_lshlrev_b32 v{Ad}, 7, v0")
    a(f"v_mov_b32 v{Ad+1}, s74")
    a("s_mov_b32 exec_lo, s14")
    a("s_mov_b32 exec_hi, 0")
    a(f"buffer_store_dword v{Ad+1}, v{Ad}, s[16:19], s25 offen sc1")
    a("s_mov_b64 exec, -1")
    a.label("C_END")
    a("s_cmp_lg_u32 s3, 11")
    a("s_cbranch_scc1 F_FIN")
    a("s_cmp_lt_u32 s2, 192")
    a("s_cbranch_scc1 M_GATE")
    finish(a)

def fetch_nonce(a, tag, first_issued=False, t=20):
    ok = tag + "_NOK"
    for k in range(4):
        if not (first_issued and k == 0):
            a(f"s_load_dword s74, s[{S_DBG}:{S_DBG+1}], {64*k}")
        a("s_waitcnt lgkmcnt(0)")
        a("s_cmp_lg_u32 s74, 0")
        a(f"s_cbranch_scc1 {ok}")
        a("s_sleep 8")
    a(f"s_mov_b32 s97, {SPIN_MAX>>4}")
    a(f"v_mov_b32 v{t}, 0")
    a.label(tag + "_NL")
    a(f"global_load_dword v{t+1}, v{t}, s[{S_DBG}:{S_DBG+1}] sc1")
    a("s_waitcnt vmcnt(0)")
    a(f"v_readfirstlane_b32 s74, v{t+1}")
    a("s_cmp_lg_u32 s74, 0")
    a(f"s_cbranch_scc1 {ok}")
    a("s_sub_u32 s97, s97, 1")
    a(f"s_cbranch_scc0 {tag}_NL")
    a("s_mov_b32 s74, 1")
    a.label(ok)
    a(f"v_mov_b32 v{t+1}, s74")

def gen_free(a):
    a("s_sub_u32 s30, s2, 224")
    a("s_and_b32 s4, s2, 3")
    a("s_lshl_b32 s4, s4, 3")
    a("s_lshr_b32 s5, s30, 2")
    a("s_add_u32 s4, s4, s5")
    a("s_lshl_b32 s4, s4, 3")
    a("s_add_u32 s4, s4, s3")
    a(f"s_mov_b32 s10, {X_BYTES}")
    a("s_mov_b32 s11, 0x20000")
    a("s_mul_i32 s5, s4, 9216")
    a("s_mul_i32 s20, s3, 5120")
    a("v_lshlrev_b32 v6, 4, v0")
    a("s_add_u32 s6, s5, 512")
    for i in range(5):
        a(f"v_add_u32 v7, {64*i}, v0")
        a("v_mul_u32_u24 v8, 205, v7")
        a("v_lshrrev_b32 v8, 13, v8")
        a("v_lshlrev_b32 v8, 9, v8")
        a("v_lshl_add_u32 v8, v7, 4, v8")
        a(f"s_add_u32 m0, s20, {1024*i}")
        a("s_nop 0")
        a("buffer_load_dwordx4 v8, s[8:11], s6 offen lds")
    UX = 32
    a("s_mov_b32 s21, s30")
    a("s_mov_b32 s22, s5")
    a("s_bfe_u32 s8, s3, 0x10001")
    a("s_and_b32 s9, s3, 1")
    a("s_mov_b32 s30, 2")
    a(f"s_mov_b32 s29, {L_KC4}")
    param_issue(a, 150, 2, 1)
    a("s_cmp_lt_u32 s3, 4")
    a("s_cbranch_scc1 R_NP")
    param_issue(a, 150, 2, 2)
    a.label("R_NP")
    a("s_mov_b32 s5, s22")
    a("s_barrier")
    a("v_bfe_u32 v9, v0, 2, 2")
    a("v_mul_u32_u24 v9, 640, v9")
    a("v_lshrrev_b32 v10, 4, v0")
    a("v_lshl_add_u32 v9, v10, 5, v9")
    a("v_and_b32 v10, 3, v0")
    a("v_lshl_add_u32 v9, v10, 3, v9")
    a("v_add_u32 v9, s20, v9")
    a(f"s_add_u32 s5, s5, {UT_OFF+4096}")
    a("s_waitcnt vmcnt(0)")
    stamp(a, 1)
    for i in range(5):
        a(f"ds_read_b64_tr_b16 {vr(UX+4*i,2)}, v9 offset:{128*i}")
        a(f"ds_read_b64_tr_b16 {vr(UX+4*i+2,2)}, v9 offset:{128*i+2560}")
    a("s_waitcnt lgkmcnt(0)")
    for i in range(5):
        a(f"buffer_store_dwordx4 {vr(UX+4*i,4)}, v6, s[16:19], s5 offen offset:{1024*(i%4)} sc1")
        if i % 4 == 3: a("s_add_u32 s5, s5, 4096")
    fetch_nonce(a, "R")
    a(f"ds_write_b32 v3, v21 offset:{4*SY_NONCE}")
    a("s_lshl_b32 s7, s21, 7")
    a(f"s_add_u32 s7, s7, {FL_UT}")
    a("s_waitcnt vmcnt(0)")
    publish(a, SY_UP, 8, "s7", 12)
    lds_add(a, SY_GDONE)
    stamp(a, 2)
    for k in range(5): a(f"v_mov_b32 v{8+k}, v{150+k}")
    a("s_cmp_ge_u32 s3, 4")
    a("s_setprio 2")
    a("s_cbranch_scc1 K_NF")
    a("s_setprio 0")
    a("s_cmp_eq_u32 s3, 2")
    a("s_cbranch_scc1 F_GATE")
    a("s_cmp_lg_u32 s3, 3")
    a("s_cbranch_scc1 F_ATTN")
    gather_setup(a, 3)
    lds_wait(a, SY_UP, 8, sleep=2)
    flag_wait_multi(a, [16], 12, sleep=2)
    gather_issue(a)
    a("s_waitcnt vmcnt(0)")
    lds_add(a, SY_UREADY)
    stamp(a, 4)
    a(f"s_sleep {os.environ.get('FS','8')}")
    lds_add(a, SY_CQ)
    a("s_branch F_ATTN")

def gen_gate(a):
    GX = 72; GW = 108
    a("s_and_b32 s4, s2, 3")
    a("s_lshl_b32 s4, s4, 6")
    a("s_lshr_b32 s5, s2, 2")
    a("s_add_u32 s4, s4, s5")
    a("s_mul_i32 s5, s4, 9216")
    a("v_and_b32 v8, 7, v0")
    a("v_lshlrev_b32 v8, 4, v8")
    a("v_lshrrev_b32 v11, 3, v0")
    a("v_mul_u32_u24 v10, 1152, v11")
    a("v_add3_u32 v10, v10, v8, s5")
    if GM == "late": lds_wait(a, SY_CQ, 1, sleep=4)
    for i in range(9):
        a(f"global_load_dwordx4 {vr(GX+4*i,4)}, v10, s[{S_X}:{S_X+1}] offset:{128*i}")
    for i in range(9):
        a(f"global_load_dwordx4 {vr(GW+4*i,4)}, v8, s[{S_GW}:{S_GW+1}] offset:{128*i}")
    if GM == "early":
        a("s_cmp_ge_u32 s2, 224")
        a("s_cbranch_scc1 T_NB")
        a("s_waitcnt vmcnt(18)")
        a("s_barrier")
        a.label("T_NB")
    get_nonce(a)
    a("s_waitcnt vmcnt(0)")
    a("s_mov_b32 s73, 0xffff0000")
    for k in range(8): a(f"v_mov_b32 v{16+k}, 0")
    a("s_waitcnt lgkmcnt(0)")
    for i in range(9):
        for k in range(4):
            a(f"v_lshlrev_b32 v{32+2*k}, 16, v{GX+4*i+k}")
            a(f"v_and_b32 v{33+2*k}, s73, v{GX+4*i+k}")
            a(f"v_lshlrev_b32 v{40+2*k}, 16, v{GW+4*i+k}")
            a(f"v_and_b32 v{41+2*k}, s73, v{GW+4*i+k}")
        for k in range(4):
            a(f"v_pk_mul_f32 {vr(32+2*k,2)}, {vr(32+2*k,2)}, {vr(40+2*k,2)}")
        for k in range(4):
            a(f"v_cvt_pk_bf16_f32 v{40+k}, v{32+2*k}, v{33+2*k}")
        for k in range(4):
            a(f"v_lshlrev_b32 v{32+2*k}, 16, v{40+k}")
            a(f"v_and_b32 v{33+2*k}, s73, v{40+k}")
        for k in range(4):
            a(f"v_pk_add_f32 {vr(16+2*k,2)}, {vr(16+2*k,2)}, {vr(32+2*k,2)}")
    a("v_pk_add_f32 v[16:17], v[16:17], v[18:19]")
    a("v_pk_add_f32 v[20:21], v[20:21], v[22:23]")
    a("v_pk_add_f32 v[16:17], v[16:17], v[20:21]")
    a("v_add_f32 v24, v16, v17")
    a("s_nop 1")
    a("v_add_f32_dpp v24, v24, v24 quad_perm:[1,0,3,2] row_mask:0xf bank_mask:0xf")
    a("s_nop 1")
    a("v_add_f32_dpp v24, v24, v24 quad_perm:[2,3,0,1] row_mask:0xf bank_mask:0xf")
    a("s_nop 1")
    a("v_add_f32_dpp v24, v24, v24 row_half_mirror row_mask:0xf bank_mask:0xf")
    a("v_cvt_pk_bf16_f32 v24, v24, v24")
    a("v_and_b32 v24, s73, v24")
    a(f"v_mul_f32 v24, {fhex(-LOG2E)}, v24")
    a("v_exp_f32 v24, v24")
    a("s_nop 0")
    a("v_add_f32 v24, 1.0, v24")
    a("v_rcp_f32 v24, v24")
    a("s_nop 0")
    a("v_cvt_pk_bf16_f32 v24, v24, v24")
    a("v_and_b32 v24, s73, v24")
    a("v_sub_f32 v25, 1.0, v24")
    a("v_cvt_pk_bf16_f32 v25, v25, v25")
    a("v_and_b32 v25, s73, v25")
    a("v_lshlrev_b32 v11, 3, v11")
    a("s_lshl_b32 s7, s4, 6")
    a(f"s_add_u32 s7, s7, {G_OFF}")
    a("s_mov_b32 exec_lo, 0x01010101")
    a("s_mov_b32 exec_hi, 0x01010101")
    a("buffer_store_dwordx2 v[24:25], v11, s[16:19], s7 offen sc1")
    a("s_mov_b64 exec, -1")
    a("s_lshl_b32 s7, s4, 7")
    a(f"s_add_u32 s7, s7, {FL_G}")
    a("s_waitcnt vmcnt(0)")
    flag_set(a, "s7", 12)
    stamp(a, 3)
    a("s_branch F_ATTN")

def gen_misc(a):
    a.label("M_GATE")
    a("v_lshlrev_b32 v6, 4, v0")
    for k in range(3):
        a(f"v_add_u32 v7, {64*k}, v0")
        a("v_mul_u32_u24 v8, 171, v7")
        a("v_lshrrev_b32 v8, 11, v8")
        a("v_mul_u32_u24 v8, 960, v8")
        a(f"v_add_u32 v{20+k}, v8, v6")
    a("s_lshr_b32 s7, s2, 5")
    a("s_mul_i32 s5, s7, 192")
    a(f"s_add_u32 s22, s{S_WO}, s5")
    a(f"s_addc_u32 s23, s{S_WO+1}, 0")
    a("s_bfe_u32 s6, s2, 0x20003")
    a(f"s_mul_i32 s6, s6, {9 if os.environ.get('WOR','0') == '1' else 0}")
    a("s_mov_b32 s24, 36")
    lds_wait(a, SY_CA, 4, sleep=8)
    a.label("M_WL")
    a("s_mul_i32 s5, s6, 3072")
    a("s_mov_b32 m0, s5")
    a("s_mul_i32 s5, s5, 6")
    a("s_add_u32 s20, s22, s5")
    a("s_addc_u32 s21, s23, 0")
    for i in range(3):
        a(f"global_load_lds_dwordx4 v{20+i}, s[20:21] offset:{1024*i}")
    a("s_add_u32 s6, s6, 1")
    a("s_cmp_eq_u32 s6, 36")
    a("s_cselect_b32 s6, 0, s6")
    a(f"s_waitcnt vmcnt({os.environ.get('WOD','6')})")
    if os.environ.get("WOS"): a(f"s_sleep {os.environ['WOS']}")
    a("s_sub_u32 s24, s24, 1")
    a("s_cmp_lg_u32 s24, 0")
    a("s_cbranch_scc1 M_WL")
    a("v_min_u32 v9, 47, v0")
    a("s_mul_i32 s5, s7, 6144")
    a(f"s_add_u32 s5, s5, {FL_A}")
    a("v_lshl_add_u32 v9, v9, 7, s5")
    a("s_and_b32 s4, s2, 7")
    a("s_lshl_b32 s4, s4, 2")
    a("s_bfe_u32 s5, s2, 0x20003")
    a("s_add_u32 s4, s4, s5")
    a("s_lshl_b32 s5, s4, 10")
    a(f"s_add_u32 s5, s5, {FL_G}")
    a("v_and_b32 v10, 7, v0")
    a("v_lshl_add_u32 v10, v10, 7, s5")
    flag_wait_multi(a, [9, 10], 12, sleep=32)
    a(f"s_mul_i32 s5, s4, {2*36864}")
    a("s_mul_i32 s6, s7, 6144")
    a("s_add_u32 s5, s5, s6")
    a(f"s_add_u32 s5, s5, {AF_OFF}")
    for tt in range(2):
        for hf in range(2):
            a(f"s_mov_b32 m0, {L_A + 6144*tt + 3072*hf}")
            a(f"s_add_u32 s6, s5, {36864*tt + 3072*hf}")
            for i in range(3):
                a(f"buffer_load_dwordx4 v6, s[16:19], s6 offen offset:{1024*i} {SC} lds")
    a(f"s_mov_b32 m0, {L_G}")
    a("s_lshl_b32 s5, s4, 9")
    a(f"s_add_u32 s5, s5, {G_OFF}")
    a("s_mov_b32 exec_hi, 0")
    a(f"buffer_load_dwordx4 v6, s[16:19], s5 offen {SC} lds")
    a("s_mov_b64 exec, -1")
    a("s_waitcnt vmcnt(0)")
    lds_add(a, SY_GO3)
```

```python
import math
TILE=110592
VOFF=73728
QKV_OFF=0
QKV_SZ=64*TILE
OF_OFF=QKV_OFF+QKV_SZ
OF_SZ=64*36*1024
WOF_OFF=OF_OFF+OF_SZ
WOF_SZ=18*36*1024
UT_OFF=WOF_OFF+WOF_SZ
UT_SZ=256*9216
AF_OFF=UT_OFF+UT_SZ
AF_SZ=64*576*64
G_OFF=AF_OFF+AF_SZ
G_SZ=2048*8
FL_OFF=G_OFF+G_SZ
FL_UT=FL_OFF
FL_U1=FL_UT+32*128
FL_QKV=FL_U1+128*128
FL_G=FL_QKV+224*128
FL_A=FL_G+256*128
FL_O=FL_A+288*128
OX_OFF=FL_O+1024*128
OX_SZ=64*32*128
WS_USED=OX_OFF+OX_SZ
X_BYTES=2048*576*2
W_BYTES=576*1728*2
WO_BYTES=576*576*2
QSCALE = (18**-0.5)*math.log2(math.e)
S_X=32; S_LOGA=34; S_AIM=36; S_CR=38; S_CI=40; S_LOGDT=42; S_DSKIP=44; S_W=48; S_WO=50; S_GW=52; S_OUT=54; S_DBG=56; S_WS=58
L_RING=0
KC_STRIDE=4416
L_KC=131072
L_KC4=L_KC-4*KC_STRIDE
L_U=32768
L_P=[0, 16384, 51200, 67584]
L_UEND=L_KC+4*KC_STRIDE
L_XCH=131072
L_A=110592
L_G=L_A+12288
L_SYNC=163840-256
LDS_TOTAL=163840
SY_FULL=0
SY_FREE=12
SY_NONCE=24
SY_GO=4
SY_UREADY=0
SY_GDONE=1
SY_KP=12
SY_UP=8
SY_WP=9
SY_KR=2
SY_PD=3
SY_PR=32
SY_GO3=27
SY_ISS=28
SY_CQ=29
SY_CA=30
SY_CO=31
SY_STG=11
assert L_UEND <= L_SYNC
if __name__=="__main__":
    for k,v in list(globals().items()):
        if k.isupper(): print(k,v)
```

```python
import os, math, struct
from asmlib import *
from layout2 import *

LOG2E = math.log2(math.e)
SC = os.environ.get("SC", "sc1")
SCKV = os.environ.get("SCKV", "")
SPIN_MAX = 1 << 22
XP = os.environ.get("XP","")
GM = os.environ.get("GM","early")
GPE = os.environ.get("GPE","b7")
XPF = os.environ.get("XPF","0") == "1"
CPF = os.environ.get("CPF", "1" if PROF else "0") == "1"
PROG = os.environ.get("PROG","1") == "1"
FINE = os.environ.get("FINE","0") == "1"
MINSLEEP = int(os.environ.get("MINSLEEP","0"))
ULATE = os.environ.get("ULATE","0") == "1"
STG = 32768
ROT = os.environ.get("ROT","4")
PROFB = os.environ.get("PROF","0") == "2"
PROFC = os.environ.get("PROF","0") == "3"
PROFE = os.environ.get("PROF","0") == "5"
PROFD = os.environ.get("PROF","0") == "4"
_stamp = stamp
def stamp(a, i, force=False):
    if PROFD: return
    if PROFC and not force and i not in (0,7): return
    _stamp(a, i)

def emit_tau(a, dst, src, t):
    a(f"v_lshrrev_b32 v{t}, 1, v{src}")
    a(f"v_xor_b32 v{t}, v{t}, v{src}")
    a(f"v_and_b32 v{t}, 4, v{t}")
    a(f"v_mul_u32_u24 v{t}, 3, v{t}")
    a(f"v_xor_b32 v{dst}, v{src}, v{t}")

def emit_ident(a, dst, e, t0, t1, n=4):
    a(f"v_and_b32 v{t0}, 1, v{e}")
    a(f"v_lshlrev_b32 v{t0}, 4, v{t0}")
    a(f"v_mov_b32 v{t1}, 0x3f80")
    a(f"v_lshlrev_b32 v{t0}, v{t0}, v{t1}")
    a(f"v_ashrrev_i32 v{t1}, 1, v{e}")
    for q in range(n):
        a(f"v_cmp_eq_u32 s[{60+2*q}:{61+2*q}], {q}, v{t1}")
    a("s_nop 1")
    for q in range(n):
        a(f"v_cndmask_b32 v{dst+q}, 0, v{t0}, s[{60+2*q}:{61+2*q}]")

def ident_nat(a, lo, hi, t):
    a(f"v_lshlrev_b32 v{t}, 3, v5")
    a(f"v_sub_u32 v{t}, v4, v{t}")
    emit_ident(a, lo, t, t+1, t+2)
    a(f"v_subrev_u32 v{t}, 16, v{t}")
    emit_ident(a, hi, t, t+1, t+2)

def exp_precise(a, dst, x, t0, t1):
    a(f"v_mul_f32 v{t0}, s70, v{x}")
    a(f"v_fma_f32 v{t1}, v{x}, s70, -v{t0}")
    a(f"v_fma_f32 v{t1}, v{x}, s71, v{t1}")
    a(f"v_exp_f32 v{t0}, v{t0}")
    a(f"v_mul_f32 v{t1}, s72, v{t1}")
    a(f"v_fma_f32 v{dst}, v{t0}, v{t1}, v{t0}")

def lds_add(a, word):
    a("s_mov_b64 exec, 1")
    a(f"ds_add_u32 v3, v1 offset:{4*word}")
    a("s_mov_b64 exec, -1")

def lds_wait(a, word, val, sleep=0, pre_read=False, ge=True):
    lab = a.newlabel("LW"); ok = a.newlabel("LWOK")
    if pre_read:
        a("v_readfirstlane_b32 s96, v2")
        a(f"s_cmp_ge_u32 s96, {val}")
        a(f"s_cbranch_scc1 {ok}")
    a(f"s_mov_b32 s97, {SPIN_MAX}")
    a.label(lab)
    a(f"ds_read_b32 v2, v3 offset:{4*word}")
    a("s_waitcnt lgkmcnt(0)")
    a("v_readfirstlane_b32 s96, v2")
    a(f"s_cmp_ge_u32 s96, {val}")
    a(f"s_cbranch_scc1 {ok}")
    sleep = max(sleep, MINSLEEP)
    if sleep: a(f"s_sleep {sleep}")
    a("s_sub_u32 s97, s97, 1")
    a(f"s_cbranch_scc0 {lab}")
    a.label(ok)

def full_wait(a, n, sleep=0):
    lab = a.newlabel("FL"); ok = a.newlabel("FLOK")
    a(f"s_mov_b32 s97, {SPIN_MAX}")
    a.label(lab)
    a(f"ds_read_b128 v[164:167], v3 offset:{4*SY_FULL}")
    a("s_waitcnt lgkmcnt(0)")
    a("v_min3_u32 v164, v164, v165, v166")
    a("v_min_u32 v164, v164, v167")
    a("s_nop 0")
    a("v_readfirstlane_b32 s96, v164")
    a(f"s_cmp_ge_u32 s96, {n}")
    a(f"s_cbranch_scc1 {ok}")
    if sleep: a(f"s_sleep {sleep}")
    a("s_sub_u32 s97, s97, 1")
    a(f"s_cbranch_scc0 {lab}")
    a.label(ok)

def get_nonce(a):
    lds_wait(a, SY_NONCE, 1)
    a("s_mov_b32 s74, s96")

def flag_set(a, soff, t):
    a(f"v_mov_b32 v{t}, 0")
    a(f"v_mov_b32 v{t+1}, s74")
    a("s_mov_b64 exec, 1")
    a(f"buffer_store_dword v{t+1}, v{t}, s[16:19], {soff} offen sc1")
    a("s_mov_b64 exec, -1")

def publish(a, word, nwaves, soff, t):
    skip = a.newlabel("PB")
    a("s_mov_b64 exec, 1")
    a(f"ds_add_rtn_u32 v2, v3, v1 offset:{4*word}")
    a("s_mov_b64 exec, -1")
    a("s_waitcnt lgkmcnt(0)")
    a("v_readfirstlane_b32 s96, v2")
    a(f"s_cmp_lg_u32 s96, {nwaves-1 if isinstance(nwaves, int) else nwaves}")
    a(f"s_cbranch_scc1 {skip}")
    flag_set(a, soff, t)
    a.label(skip)

def flag_wait_multi(a, voffs, t, sleep=2):
    lab = a.newlabel("FW"); ok = a.newlabel("FWOK")
    a(f"s_mov_b32 s97, {SPIN_MAX>>4}")
    a.label(lab)
    for k, v in enumerate(voffs):
        a(f"buffer_load_dword v{t+k}, v{v}, s[16:19], 0 offen sc1")
    a("s_waitcnt vmcnt(0)")
    for k in range(len(voffs)):
        a(f"v_xor_b32 v{t+k}, s74, v{t+k}")
    for k in range(1, len(voffs)):
        a(f"v_or_b32 v{t}, v{t}, v{t+k}")
    a(f"v_cmp_ne_u32 vcc, 0, v{t}")
    a("s_cmp_eq_u64 vcc, 0")
    a(f"s_cbranch_scc1 {ok}")
    if sleep: a(f"s_sleep {sleep}")
    a("s_sub_u32 s97, s97, 1")
    a(f"s_cbranch_scc0 {lab}")
    a.label(ok)

def flag_wait(a, voff, n, t, sleep=2):
    lab = a.newlabel("FW"); ok = a.newlabel("FWOK")
    op = {1: "dword", 2: "dwordx2", 4: "dwordx4"}[n]
    a(f"s_mov_b32 s97, {SPIN_MAX>>4}")
    a.label(lab)
    a(f"buffer_load_{op} {vr(t,n)}, v{voff}, s[16:19], 0 offen sc1")
    a("s_waitcnt vmcnt(0)")
    for k in range(n):
        a(f"v_xor_b32 v{t+k}, s74, v{t+k}")
    for k in range(1, n):
        a(f"v_or_b32 v{t}, v{t}, v{t+k}")
    a(f"v_cmp_ne_u32 vcc, 0, v{t}")
    a("s_cmp_eq_u64 vcc, 0")
    a(f"s_cbranch_scc1 {ok}")
    if sleep: a(f"s_sleep {sleep}")
    a("s_sub_u32 s97, s97, 1")
    a(f"s_cbranch_scc0 {lab}")
    a.label(ok)

def finish(a):
    stamp_flush(a, 0)
    a("s_endpgm")

def start_sync(a):
    a("s_waitcnt lgkmcnt(0)")
    a("s_barrier")

def gen(a, name):
    kernel_begin(a, name)
    a("s_cmp_ge_u32 s2, 256")
    a("s_cbranch_scc1 F_END")
    a("s_load_dwordx2 s[8:9], s[0:1], 0")
    a("s_load_dwordx2 s[12:13], s[0:1], 64")
    a("s_load_dwordx2 s[16:17], s[0:1], 104")
    a("s_load_dwordx16 s[32:47], s[0:1], 0")
    a("s_load_dwordx8 s[48:55], s[0:1], 64")
    a("s_load_dwordx4 s[56:59], s[0:1], 96")
    stamp_init(a)
    if CPF:
        a("s_getpc_b64 s[60:61]")
        a("s_lshr_b32 s62, s2, 3")
        a("s_lshl_b32 s62, s62, 10")
        a("s_add_u32 s60, s60, s62")
        a("s_addc_u32 s61, s61, 0")
        a("v_lshlrev_b32 v20, 7, v0")
        a("v_mov_b32 v21, s61")
        a("v_add_co_u32 v20, vcc, s60, v20")
        a("s_nop 1")
        a("v_addc_co_u32 v21, vcc, 0, v21, vcc")
        a("v_cmp_gt_u32 vcc, 8, v0")
        a("s_and_saveexec_b64 s[64:65], vcc")
        a("s_cbranch_execz CPF_SKIP")
        a("global_load_dword v167, v[20:21], off")
        a.label("CPF_SKIP")
        a("s_mov_b64 exec, s[64:65]")
    a("v_lshrrev_b32 v1, 6, v0")
    a("v_and_b32 v0, 63, v0")
    a("v_readfirstlane_b32 s3, v1")
    a("v_mov_b32 v2, 0")
    a("s_cmp_lt_u32 s3, 4")
    a("s_cselect_b32 s27, 8, -4")
    a("s_cmp_ge_u32 s2, 224")
    a("s_cselect_b32 s27, s27, 0")
    a("s_add_u32 s3, s3, s27")
    a(f"v_mov_b32 v3, {L_SYNC}")
    a("v_lshl_add_u32 v4, v0, 2, v3")
    a("ds_write_b32 v4, v2")
    a("v_mov_b32 v1, 1")
    a("v_and_b32 v4, 31, v0")
    a("v_lshrrev_b32 v5, 5, v0")
    a("s_bfe_u32 s6, s2, 0x20003")
    a("s_lshr_b32 s7, s2, 5")
    a("s_and_b32 s4, s2, 3")
    a("s_lshl_b32 s4, s4, 2")
    a("s_add_u32 s4, s4, s6")
    a("s_bfe_u32 s5, s2, 0x10002")
    a("s_mul_i32 s5, s5, 7")
    a("s_add_u32 s5, s5, s7")
    a(f"s_mov_b32 s18, {WS_USED}")
    a("s_mov_b32 s19, 0x20000")
    a("s_cmp_eq_u32 s5, 13")
    a("s_cselect_b32 s27, 7, 15")
    a("v_lshrrev_b32 v7, 4, v0")
    a("v_lshlrev_b32 v8, 2, v7")
    a("v_sub_u32 v8, v0, v8")
    a("v_and_b32 v8, s27, v8")
    a("v_mul_u32_u24 v7, 3456, v7")
    a("v_lshl_add_u32 v6, v8, 4, v7")
    a("v_lshrrev_b32 v9, 3, v0")
    a("v_and_b32 v10, 7, v0")
    a("v_lshrrev_b32 v11, 1, v9")
    a("v_xor_b32 v10, v10, v11")
    a("v_mul_u32_u24 v9, 1152, v9")
    a("v_lshl_add_u32 v7, v10, 4, v9")
    a("v_xor_b32 v10, 4, v10")
    a("v_lshl_add_u32 v8, v10, 4, v9")
    a("v_add_u32 v8, 8192, v8")
    a("v_add_u32 v9, 12800, v6")
    a("s_lshl_b32 s22, s5, 8")
    a(f"s_mul_i32 s27, s3, {4*13824}")
    a("s_add_u32 s22, s22, s27")
    a("s_lshl_b32 s23, s4, 2")
    a("s_add_u32 s23, s23, s3")
    a(f"s_mul_i32 s23, s23, {32*1152}")
    a("s_lshl_b32 s24, s3, 12")
    a("s_lshl_b32 s20, s6, 1")
    a("s_add_u32 s20, s20, s7")
    a("s_sub_u32 s27, s20, 9")
    a("s_cmp_ge_u32 s20, 9")
    a("s_cselect_b32 s20, s27, s20")
    if ROT != "9":
        n1 = int(ROT); n2 = 9 - n1
        a("s_add_u32 s20, s6, s7")
        a("s_mov_b32 s21, s20")
        for reg, n in (("s20", n1), ("s21", n2)):
            for _ in range(9 // n):
                a(f"s_sub_u32 s27, {reg}, {n}")
                a(f"s_cmp_ge_u32 {reg}, {n}")
                a(f"s_cselect_b32 {reg}, s27, {reg}")
        a(f"s_add_u32 s21, s21, {n1}")
    a("s_and_b32 s31, s2, 7")
    a("s_mul_i32 s31, s31, 36")
    a("s_lshr_b32 s27, s2, 3")
    a("s_add_u32 s31, s31, s27")
    a("s_max_u32 s27, s27, 28")
    a("s_add_u32 s31, s31, s27")
    a("s_sub_u32 s31, s31, 28")
    a("s_cmp_ge_u32 s2, 224")
    a("s_cselect_b32 s27, 4, s3")
    a("s_cmp_ge_u32 s27, 4")
    a("s_waitcnt lgkmcnt(0)")
    a("s_cbranch_scc1 F_OTHER")
    a("s_or_b32 s27, s2, s3")
    a("s_cbranch_scc0 F_NONCE")
    a.label("F_NN")
    gen_loader(a)
    a.label("F_NONCE")
    a("s_memrealtime s[60:61]")
    a("v_lshlrev_b32 v15, 6, v0")
    a("s_waitcnt lgkmcnt(0)")
    a("s_or_b32 s60, s60, 1")
    a("v_mov_b32 v14, s60")
    a("s_mov_b64 exec, 15")
    a(f"global_store_dword v15, v14, s[{S_DBG}:{S_DBG+1}] sc1")
    a("s_mov_b64 exec, -1")
    a("s_branch F_NN")
    a.label("F_OTHER")
    a("s_cmp_ge_u32 s2, 224")
    a("s_cselect_b32 s27, 4, 8")
    a("s_cmp_lt_u32 s3, s27")
    a("s_cbranch_scc1 F_MAIN")
    kgen_head(a)
    a.label("F_MAIN")
    a("s_cmp_lt_u32 s2, 224")
    a("s_cbranch_scc1 F_GEMM")
    gen_free(a)
    a.label("F_GEMM")
    gen_gemm(a)
    a.label("F_ATTN")
    gen_attn(a)
    a.label("F_P3")
    gen_p3(a)
    a.label("F_KGEN")
    gen_kgen(a)
    gen_conv(a)
    RING_PIECE()
    a.label("F_GATE")
    gen_gate(a)
    gen_misc(a)
    a.label("F_FIN")
    stamp_flush(a, 0)
    a.label("F_END")
    a("s_endpgm")

def gen_loader(a):
    a("s_add_u32 s12, s12, s22")
    a("s_addc_u32 s13, s13, 0")
    a("s_add_u32 s8, s8, s23")
    a("s_addc_u32 s9, s9, 0")
    def chunk(i):
        n1 = int(ROT)
        reg, lo, hi = ("s20", 0, n1) if i < n1 else ("s21", n1, 9)
        a(f"s_mul_i32 s25, {reg}, {16*13824}")
        a(f"s_lshl_b32 s26, {reg}, 7")
        a("s_add_u32 s14, s12, s25")
        a("s_addc_u32 s15, s13, 0")
        a("s_add_u32 s10, s8, s26")
        a("s_addc_u32 s11, s9, 0")
        for hf in range(2):
            a(f"s_add_u32 m0, s24, {(i % 4) * 32768 + hf*2048}")
            if hf:
                a(f"s_add_u32 s14, s14, {2*13824}")
                a("s_addc_u32 s15, s15, 0")
            else: a(f"s_add_u32 {reg}, {reg}, 1")
            a("global_load_lds_dwordx4 v6, s[14:15]")
            a("global_load_lds_dwordx4 v9, s[14:15] offset:1024")
            a("s_add_u32 m0, m0, 16384")
            if hf:
                a(f"s_add_u32 s10, s10, {2*9216}")
                a("s_addc_u32 s11, s11, 0")
            else:
                a(f"s_cmp_eq_u32 {reg}, {hi}")
                a(f"s_cselect_b32 {reg}, {lo}, {reg}")
            a("global_load_lds_dwordx4 v7, s[10:11]")
            a("global_load_lds_dwordx4 v8, s[10:11] offset:1024")
    stamp(a, 1)
    PF = int(os.environ.get("PF", "-1"))
    def prefetch():
        a("s_mul_i32 s25, s6, 80")
        a("s_mul_i32 s26, s3, 4")
        a("s_add_u32 s25, s25, s26")
        a("s_add_u32 s25, s25, 256")
        a("v_min_u32 v26, 39, v0")
        a("v_lshrrev_b32 v27, 1, v26")
        a("v_add_u32 v27, s25, v27")
        a("v_mul_u32_u24 v27, 3456, v27")
        a("s_cmp_eq_u32 s5, 13")
        a("s_cselect_b32 s26, 0, 1")
        a("v_and_b32 v26, s26, v26")
        a("v_lshl_add_u32 v27, v26, 7, v27")
        a("global_load_dword v28, v27, s[12:13]")
        a("s_mul_i32 s25, s7, 23")
        a("v_min_u32 v26, 22, v0")
        a("v_add_u32 v26, s25, v26")
        a("v_min_u32 v26, 159, v26")
        a("v_mul_u32_u24 v27, 205, v26")
        a("v_lshrrev_b32 v27, 10, v27")
        a("v_lshlrev_b32 v27, 9, v27")
        a("v_lshl_add_u32 v27, v26, 7, v27")
        a("global_load_dword v29, v27, s[8:9] offset:512")
    chunk(0)
    if PF == 0: prefetch()
    chunk(1)
    if PF == 1: prefetch()
    gather_setup(a, 1)
    for i in range(-1, 6):
        extra = 2 if (PF >= 0 and i + 1 <= PF <= i + 2) else 0
        a(f"s_waitcnt vmcnt({8 + extra})")
        if i == -1: stamp(a, 2)
        if i == 3: stamp(a, 3)
        a("s_barrier")
        chunk(i + 3)
        if PF == i + 3: prefetch()
        if i == 2: a(f"s_load_dword s74, s[{S_DBG}:{S_DBG+1}], 0")
    a("s_waitcnt vmcnt(8) lgkmcnt(0)")
    a("s_barrier")
    a("s_cmp_eq_u32 s3, 3")
    a("s_cbranch_scc1 L_W3")
    if GM == "early":
        a("s_cmp_eq_u32 s3, 2")
        a("s_cbranch_scc1 F_GATE")
    a("s_waitcnt vmcnt(0)")
    stamp(a, 4)
    a("s_barrier")
    if GM != "early":
        a("s_cmp_eq_u32 s3, 2")
        a("s_cbranch_scc1 F_GATE")
    a("s_branch F_ATTN")
    a.label("L_W3")
    a("buffer_load_dword v12, v16, s[16:19], 0 offen sc1")
    a("s_waitcnt vmcnt(1)")
    a("s_barrier")
    fetch_nonce(a, "L", True)
    a(f"ds_write_b32 v3, v21 offset:{4*SY_NONCE}")
    a("s_waitcnt vmcnt(0)")
    a("v_cmp_ne_u32 vcc, s74, v12")
    a("s_cmp_eq_u64 vcc, 0")
    a("s_cbranch_scc1 L_GI")
    flag_wait_multi(a, [16], 12, sleep=2)
    a.label("L_GI")
    gather_issue(a)
    a.label("L_GD")
    a("s_waitcnt vmcnt(0)")
    lds_add(a, SY_UREADY)
    stamp(a, 4)
    a("s_branch F_ATTN")

def gather_setup(a, cmax):
    a("s_lshr_b32 s28, s31, 4")
    a("s_lshl_b32 s29, s28, 11")
    a(f"s_add_u32 s29, s29, {FL_U1}")
    a("s_cmp_lt_u32 s28, 8")
    a(f"s_cselect_b32 s29, s29, {FL_UT}")
    a("s_cselect_b32 s28, 15, 31")
    a("v_and_b32 v16, s28, v0")
    a("v_lshl_add_u32 v16, v16, 7, s29")
    a("v_lshrrev_b32 v17, 4, v0")
    a("v_and_b32 v18, 3, v0")
    a("v_xor_b32 v17, v17, v18")
    a(f"v_min_u32 v17, {cmax}, v17")
    a("v_lshrrev_b32 v18, 2, v0")
    a("v_mul_u32_u24 v18, 9216, v18")
    a("v_lshl_add_u32 v17, v17, 4, v18")
    a("s_lshl_b32 s29, s31, 5")
    a(f"s_add_u32 s29, s29, {UT_OFF}")

def gather_issue(a):
    if os.environ.get("GREG","0") == "1":
        for j in range(16):
            a(f"buffer_load_dwordx4 {vr(32+4*j,4)}, v17, s[16:19], s29 offen {SC}")
            if j < 15: a(f"s_add_u32 s29, s29, {16*9216}")
        a("v_lshlrev_b32 v18, 4, v0")
        a(f"v_add_u32 v18, {L_U}, v18")
        for k in range(4): a(f"v_mov_b32 v{28+k}, 0")
        a("ds_write_b128 v18, v[28:31]")
        a("ds_write_b128 v18, v[28:31] offset:1024")
        for j in range(16):
            a(f"s_waitcnt vmcnt({15-j})")
            a(f"ds_write_b128 v18, {vr(32+4*j,4)} offset:{2048+1024*j}")
        a("s_waitcnt lgkmcnt(0)")
        return
    a("v_mov_b32 v18, 0x7ff00000")
    a(f"s_mov_b32 m0, {L_U}")
    a("s_nop 0")
    a("buffer_load_dwordx4 v18, s[16:19], 0 offen lds")
    a("buffer_load_dwordx4 v18, s[16:19], 0 offen offset:1024 lds")
    for j in range(16):
        a(f"s_mov_b32 m0, {L_U+2048+1024*j}")
        a(f"s_add_u32 s27, s29, {16*9216*j}")
        a(f"buffer_load_dwordx4 v17, s[16:19], s27 offen {SC} lds")

ACC = 16; FB = 80
def gen_gemm(a):
    a("s_sub_u32 s8, s3, 4")
    a("s_lshl_b32 s6, s4, 2")
    a("s_add_u32 s6, s6, s8")
    a("v_bfe_u32 v10, v0, 2, 2")
    a("v_bfe_u32 v11, v0, 4, 1")
    a("v_and_b32 v12, 3, v0")
    a("v_lshlrev_b32 v6, 11, v5")
    a("v_lshl_add_u32 v6, v10, 8, v6")
    a("v_lshl_add_u32 v6, v11, 5, v6")
    a("v_lshl_add_u32 v6, v12, 3, v6")
    for p in range(4):
        a(f"v_add_u32 v12, {p}, v10")
        a("v_and_b32 v12, 3, v12")
        a(f"v_lshl_add_u32 v{148+p}, v12, 6, v6")
        a(f"v_add_u32 v{152+p}, 0x10000, v{148+p}")
    a("s_lshl_b32 s7, s8, 12")
    a("s_add_u32 s7, s7, 16384")
    a("v_lshl_add_u32 v14, v4, 7, s7")
    a("v_bfe_u32 v15, v4, 1, 3")
    a("v_xor_b32 v15, v15, v5")
    for sp in range(4):
        a(f"v_xor_b32 v12, {2*sp}, v15")
        a(f"v_lshl_add_u32 v{140+sp}, v12, 4, v14")
        a(f"v_add_u32 v{144+sp}, 0x10000, v{140+sp}")
    emit_tau(a, 13, 4, 14)
    a("v_lshlrev_b32 v156, 4, v13")
    a("v_lshl_add_u32 v156, v5, 3, v156")
    a("v_mul_u32_u24 v157, 9216, v5")
    a("v_lshl_add_u32 v157, v4, 4, v157")
    a(f"s_mul_i32 s26, s6, {TILE}")
    a("s_lshl_b32 s27, s5, 13")
    a("s_add_u32 s20, s26, s27")
    a("s_add_u32 s21, s20, 4096")
    a("s_lshl_b32 s27, s5, 11")
    a("s_add_u32 s22, s26, s27")
    a(f"s_add_u32 s22, s22, {VOFF - 9*2048}")
    a("s_add_u32 s23, s22, 18432")
    a(f"s_mov_b32 s28, {fhex(QSCALE)}")
    a("s_mov_b32 s29, s28")
    a("s_lshl_b32 s24, s5, 4")
    a("s_add_u32 s24, s24, s4")
    a("s_lshl_b32 s24, s24, 7")
    a(f"s_add_u32 s24, s24, {FL_QKV}")
    for k in range(5): a(f"s_mov_b32 s{34+k}, s{20+k}")
    a("s_mov_b64 s[40:41], s[28:29]")
    a("s_mov_b32 s42, s5")
    attn_setup(a)
    NB = 3
    def reads(s):
        i, sp = divmod(s, 4)
        slot = i % 4
        buf = FB + 20*(s % NB)
        m, x = (152, 144+sp) if slot >= 2 else (148, 140+sp)
        so = (slot % 2) * 32768
        out = [f"ds_read_b128 {vr(buf+16,4)}, v{x} offset:{so}"]
        for p in range(4):
            for j in range(2):
                out.append(f"ds_read_b64_tr_b16 {vr(buf+4*p+2*j,2)}, v{m+p} offset:{so+sp*4096+j*1024}")
        return out
    def mf(s, p, swap):
        buf = FB + 20*(s % NB)
        cin = "0" if s == 0 else vr(ACC+16*p,16)
        w, x = vr(buf+4*p,4), vr(buf+16,4)
        if swap: w, x = x, w
        a(f"v_mfma_f32_32x32x16_bf16 {vr(ACC+16*p,16)}, {w}, {x}, {cin}")
    def mfmas(s, swap, inter=(), cuts=(3, 5, 7, 30)):
        inter = list(inter)
        for p in range(4):
            mf(s, p, swap)
            for ln in inter[(cuts[p-1] if p else 0):cuts[p]]: a(ln)
    def scale(p):
        A0 = ACC+16*p
        lab = a.newlabel("G_NS")
        a(f"s_cmp_gt_u32 s42, {4 if p < 2 else 3}")
        a(f"s_cbranch_scc1 {lab}")
        if p < 2:
            for k in range(16): a(f"v_mul_f32 v{A0+k}, s40, v{A0+k}")
        else:
            for k in range(8): a(f"v_pk_mul_f32 {vr(A0+2*k,2)}, {vr(A0+2*k,2)}, s[40:41]")
        a.label(lab)
    def cvt(p):
        A0 = ACC+16*p
        for r in range(8): a(f"v_cvt_pk_bf16_f32 v{A0+r}, v{A0+2*r}, v{A0+2*r+1}")
    def stores(p, swap):
        A0 = ACC+16*p
        if swap:
            for t in range(2):
                a(f"buffer_store_dwordx4 {vr(A0+4*t,4)}, v157, s[16:19], s{36+t} offen offset:{p*512} sc1")
        else:
            for q in range(4):
                a(f"buffer_store_dwordx2 {vr(A0+2*q,2)}, v156, s[16:19], s{34 + p//2} offen offset:{(p%2)*2048 + q*512} sc1")
    def loop(swap):
        for s in range(33):
            i, sp = divmod(s, 4)
            a("s_waitcnt lgkmcnt(9)")
            if PROFD and not swap and s % 2 == 0 and s >= 2:
                if s >= 4: a(f"s_mov_b32 s{80 + s//2 - 2}, s98")
                a("s_memtime s[98:99]")
            if s == 30:
                mfmas(s, swap, ["s_barrier", "s_setprio 2"] + reads(s+2), cuts=(5, 7, 9, 30))
            elif sp == 2:
                mfmas(s, swap, ["s_barrier"] + reads(s+2), cuts=(4, 6, 8, 30))
            else:
                mfmas(s, swap, reads(s+2))
        rd = reads(35)
        a("s_waitcnt lgkmcnt(9)")
        mf(33, 0, swap)
        for ln in rd[:5]: a(ln)
        mf(33, 1, swap)
        for ln in rd[5:]: a(ln)
        a("s_waitcnt lgkmcnt(9)")
        mf(34, 0, swap); mf(34, 1, swap); mf(33, 2, swap)
        a("s_waitcnt lgkmcnt(0)")
        mf(35, 0, swap)
        lds_add(a, SY_GDONE)
        mf(35, 1, swap); mf(34, 2, swap)
        a("s_nop 6")
        if not swap: scale(0)
        mf(35, 2, swap)
        cvt(0)
        mf(33, 3, swap)
        stores(0, swap)
        if not swap: scale(1)
        mf(34, 3, swap)
        cvt(1)
        mf(35, 3, swap)
        stamp(a, 3)
        stores(1, swap)
        if swap:
            a("s_cmp_eq_u32 s42, 13")
            a("s_cbranch_scc1 G_PUB")
        for p in (2, 3):
            if not swap: scale(p)
            cvt(p)
            stores(p, swap)
    a("s_barrier")
    stamp(a, 2)
    for ln in reads(0): a(ln)
    for ln in reads(1): a(ln)
    a("s_cmp_ge_u32 s42, 9")
    a("s_cbranch_scc1 G_V")
    loop(False)
    a("s_branch G_PUB")
    a.label("G_V")
    loop(True)
    a.label("G_PUB")
    a("s_nop 7")
    stamp(a, 1)
    attn_init(a)
    get_nonce(a)
    a("s_setprio 0")
    a("s_waitcnt vmcnt(0)")
    publish(a, SY_CQ, 4, "s38", 14)
    stamp(a, 4)
    a("s_branch A_WAITGO")

QA=16; QAX=20; QB=24; QBX=28; SA=32; SB=48; OA=64; OB=80; KVB=96
ONES=0x3f803f80
def kb(b): return KVB+14*b
def kx(b): return KVB+14*b+4
def v0r(b): return KVB+14*b+6
def v1r(b): return KVB+14*b+10
GLD = os.environ.get("GLD","0") == "1"
def kv_loads(b, wrap=True):
    if GLD:
        return ["s_add_u32 s10, s16, s20", "s_addc_u32 s11, s17, 0",
            f"global_load_dwordx4 {vr(kb(b),4)}, v7, s[10:11]",
            f"global_load_dwordx2 {vr(kx(b),2)}, v8, s[10:11]",
            "s_mov_b64 exec, s[22:23]",
            f"global_load_dwordx4 {vr(v0r(b),4)}, v9, s[10:11]",
            f"global_load_dwordx4 {vr(v1r(b),4)}, v162, s[10:11]",
            "s_mov_b64 exec, -1",
            f"s_add_u32 s20, s20, {TILE}"] + (["s_cmp_eq_u32 s20, s29", "s_cselect_b32 s20, s28, s20"] if (b == 3 and wrap) else [])
    return [f"buffer_load_dwordx4 {vr(kb(b),4)}, v7, s[16:19], s20 offen {SCKV}",
            f"buffer_load_dwordx2 {vr(kx(b),2)}, v8, s[16:19], s20 offen {SCKV}",
            "s_mov_b64 exec, s[22:23]",
            f"buffer_load_dwordx4 {vr(v0r(b),4)}, v9, s[16:19], s20 offen {SCKV}",
            f"buffer_load_dwordx4 {vr(v1r(b),4)}, v162, s[16:19], s20 offen {SCKV}",
            "s_mov_b64 exec, -1",
            f"s_add_u32 s20, s20, {TILE}"] + (["s_cmp_eq_u32 s20, s29", "s_cselect_b32 s20, s28, s20"] if (b == 3 and wrap) else [])

def qk(a, S, buf, Q, QX):
    a(f"v_mfma_f32_32x32x8_bf16 {vr(S,16)}, {vr(kx(buf),2)}, {vr(QX,2)}, 0")
    a(f"v_mfma_f32_32x32x16_bf16 {vr(S,16)}, {vr(kb(buf),4)}, {vr(Q,4)}, {vr(S,16)}")

def attn_setup(a):
    a("s_and_b32 s4, s2, 7")
    a("s_lshl_b32 s4, s4, 2")
    a("s_bfe_u32 s5, s2, 0x20003")
    a("s_add_u32 s4, s4, s5")
    a("s_lshr_b32 s5, s2, 5")
    a("s_lshr_b32 s6, s3, 2")
    a("s_and_b32 s7, s3, 3")
    a("s_lshl_b32 s7, s7, 1")
    a("s_lshl_b32 s5, s5, 3")
    a("s_add_u32 s7, s5, s7")
    a("s_mov_b32 s30, s7")
    a("s_add_u32 s31, s30, 1")
    a("s_mul_i32 s12, s4, 18")
    a("s_lshr_b32 s13, s12, 3")
    a("s_lshl_b32 s8, s13, 9")
    a(f"s_add_u32 s9, s8, {72*512}")
    a("v_lshl_add_u32 v7, v0, 4, s9")
    a("v_lshlrev_b32 v8, 4, v4")
    a("v_lshl_add_u32 v8, v5, 3, v8")
    a("s_add_u32 s9, s9, 1024")
    a("v_add_u32 v8, s9, v8")
    a(f"v_subrev_u32 v163, {72*512}, v7")
    a(f"v_subrev_u32 v164, {72*512}, v8")
    a(f"s_mul_i32 s24, s30, {TILE}")
    a(f"s_mul_i32 s25, s31, {TILE}")
    a("v_mul_u32_u24 v9, 9216, v5")
    a("v_lshl_add_u32 v9, v4, 4, v9")
    a("s_lshl_b32 s9, s12, 4")
    a(f"s_add_u32 s9, s9, {VOFF}")
    a("v_add_u32 v9, s9, v9")
    a("v_add_u32 v162, 18432, v9")
    a("s_mov_b32 s22, 0x3ffff")
    a("s_mov_b32 s23, 0x3ffff")
    a(f"s_mul_i32 s14, s6, {32*TILE}")
    a(f"s_add_u32 s29, s14, {32*TILE}")
    a("s_mov_b32 s28, s14")
    a("v_mov_b32 v6, 0xdddddddd")
    a("s_mov_b32 s15, 0")
    a(f"v_mov_b32 v10, {ONES}")
    a("v_and_b32 v11, 27, v4")
    a("v_cmp_eq_u32 vcc, 18, v11")
    a("s_and_b32 s9, s4, 3")
    a("v_lshlrev_b32 v12, 2, v5")
    a("v_cndmask_b32 v10, 0, v10, vcc")
    a("v_subrev_u32 v12, s9, v12")
    for k in range(4):
        a(f"v_cmp_le_i32 s[{60+2*k}:{61+2*k}], {-k}, v12")
    a("v_lshlrev_b32 v12, 1, v5")
    a("v_subrev_u32 v12, s9, v12")
    for k in range(2):
        a(f"v_cmp_ge_i32 s[{68+2*k}:{69+2*k}], {-k}, v12")
    a("v_bfe_u32 v11, v0, 3, 2")
    a("v_and_b32 v12, 1, v11")
    a("s_add_u32 s9, s13, 72")
    a("v_lshl_add_u32 v13, v12, 1, s9")
    a("v_lshrrev_b32 v13, 4, v13")
    a("s_add_u32 s9, s12, 1152")
    a("v_mad_u32_u24 v14, v12, 17, s9")
    a("v_lshrrev_b32 v14, 7, v14")
    a("v_cmp_gt_u32 vcc, 2, v11")
    a("v_lshl_add_u32 v15, v12, 1, s13")
    a("v_lshrrev_b32 v15, 4, v15")
    a("v_cndmask_b32 v13, v14, v13, vcc")
    a("v_and_b32 v11, 7, v0")
    a("s_lshl_b32 s9, s6, 3")
    a("v_add_u32 v14, s9, v11")
    a("v_lshl_add_u32 v13, v13, 4, v14")
    a("v_and_b32 v11, 1, v0")
    a("s_lshr_b32 s9, s5, 2")
    a("v_add_u32 v11, s9, v11")
    a("v_cmp_eq_u32 vcc, 0, v5")
    a("v_lshl_add_u32 v15, v15, 4, v11")
    a("s_lshl_b32 s26, s6, 2")
    a("v_cndmask_b32 v11, v15, v13, vcc")
    a("v_lshlrev_b32 v11, 7, v11")
    a(f"v_add_u32 v160, {FL_QKV}, v11")
    a("v_add_u32 v13, s26, v3")

def attn_init(a):
    for b in range(4):
        for r in range(8): a(f"v_mov_b32 v{v0r(b)+r}, v10")
    for r in range(16):
        a(f"v_mov_b32 v{OA+r}, 0")
        a(f"v_mov_b32 v{OB+r}, 0")
    for r in range(8):
        a(f"v_mov_b32 v{SB+8+r}, 0")

def gen_attn(a):
    attn_setup(a)
    attn_init(a)
    get_nonce(a)
    a.label("A_READY")
    a("s_cmp_ge_u32 s3, 2")
    a("s_cbranch_scc1 A_WAITGO")
    a("s_lshl_b32 s26, s3, 10")
    a("v_mov_b32 v12, s26")
    a("s_lshl_b32 s26, s3, 2")
    a("v_cndmask_b32 v12, 0, v12, vcc")
    a("v_add_u32 v14, v160, v12")
    a("v_add_u32 v15, s26, v3")
    a(f"s_setprio {os.environ.get('PP','3')}")
    lds_wait(a, SY_CQ, int(os.environ.get("PW","1")), sleep=2)
    a(f"s_mov_b32 s97, {SPIN_MAX>>4}")
    a("s_lshr_b32 s27, s5, 3")
    if os.environ.get("STM"): a(f"s_and_b32 s27, s27, {os.environ['STM']}")
    if os.environ.get("NARROW","1") == "1":
        a("s_lshl_b32 s8, 0x01010101, s27")
        a("s_mov_b32 s9, 0x303")
        a("s_mov_b64 exec, s[8:9]")
        a.label("A_POLL")
        a("buffer_load_dword v12, v14, s[16:19], 0 offen sc1")
        a("s_waitcnt vmcnt(0)")
        a("v_cmp_ne_u32 vcc, s74, v12")
        a("s_cmp_eq_u64 vcc, 0")
        a("s_cbranch_scc1 A_POK")
        if int(os.environ.get('PS','1')): a(f"s_sleep {os.environ.get('PS','1')}")
        a("s_sub_u32 s97, s97, 1")
        a("s_cbranch_scc0 A_POLL")
        a.label("A_POK")
        a("s_mov_b64 exec, -1")
        a("s_add_u32 s96, s27, 24")
    else:
        a.label("A_POLL")
        a("buffer_load_dword v12, v14, s[16:19], 0 offen sc1")
        a("s_waitcnt vmcnt(0)")
        a("v_cmp_eq_u32 vcc, s74, v12")
        a("s_lshr_b32 s26, vcc_lo, 16")
        a("s_and_b32 s26, s26, vcc_lo")
        a("s_lshr_b32 s9, s26, 8")
        a("s_and_b32 s26, s26, s9")
        a("s_cmp_eq_u32 vcc_hi, -1")
        a("s_cselect_b32 s26, s26, 0")
        a("s_bitcmp1_b32 s26, s27" if PROG else "s_cmp_eq_u32 s26, 0xff")
        a("s_cbranch_scc1 A_POK")
        a(f"s_sleep {os.environ.get('PS','1')}")
        a("s_sub_u32 s97, s97, 1")
        a("s_cbranch_scc0 A_POLL")
        a("s_mov_b32 s26, 0xff")
        a.label("A_POK")
        a("s_mov_b32 s96, s27")
        a("s_cmp_eq_u32 s26, 0xff")
        a("s_cselect_b32 s26, 8, 24")
        a("s_add_u32 s96, s96, s26")
    a("v_mov_b32 v12, s96")
    a(f"ds_write_b32 v15, v12 offset:{4*SY_GO}")
    a.label("A_WAITGO")
    a(f"s_setprio {os.environ.get('WP','3')}")
    a(f"s_mov_b32 s97, {SPIN_MAX}")
    a.label("A_WG")
    a(f"ds_read_b32 v2, v13 offset:{4*SY_GO}")
    a("s_waitcnt lgkmcnt(0)")
    a("v_readfirstlane_b32 s96, v2")
    a("s_cmp_lg_u32 s96, 0")
    a("s_cbranch_scc1 A_GO")
    a("s_sleep 1")
    a("s_sub_u32 s97, s97, 1")
    a("s_cbranch_scc0 A_WG")
    a.label("A_GO")
    a(f"buffer_load_dwordx4 {vr(QA,4)}, v163, s[16:19], s24 offen {SC}")
    a(f"buffer_load_dwordx2 {vr(QAX,2)}, v164, s[16:19], s24 offen {SC}")
    a("s_and_b32 s26, s96, 7")
    a(f"s_mul_i32 s26, s26, {4*TILE}")
    a("s_add_u32 s20, s14, s26")
    a("s_lshr_b32 s27, s96, 4")
    stamp(a, 5)
    for ln in kv_loads(0): a(ln)
    a(f"buffer_load_dwordx4 {vr(QB,4)}, v163, s[16:19], s25 offen {SC}")
    a(f"buffer_load_dwordx2 {vr(QBX,2)}, v164, s[16:19], s25 offen {SC}")
    LATE2 = os.environ.get("LATE2","0") == "1"
    for b in ((1,) if LATE2 else (1, 2)):
        for ln in kv_loads(b): a(ln)
    a("s_mov_b32 s21, 8")
    a(f"s_waitcnt vmcnt({4 if LATE2 else 8})")
    if LATE2:
        for ln in kv_loads(2): a(ln)
    a("s_setprio 2")
    a("buffer_load_dword v161, v160, s[16:19], 0 offen sc1")
    for Q in (QA, QB):
        for k in range(6):
            a(f"v_cndmask_b32 v{Q+k}, 0, v{Q+k}, s[{60+2*k}:{61+2*k}]")
    if PROFE: _stamp(a, 1)
    qk(a, SA, 0, QA, QAX)
    a("s_nop 15")
    def ex(S, r): a(f"v_exp_f32 v{S+r}, v{S+r}")
    n1,n2,n3,n4 = eval(os.environ.get('SCHED','(2,3,4,3)'))
    def phase(X, Y, OX, OY, vY_hi, vX_lo, kbuf, QY, QYX, pre=(), post=(), late=()):
        r = 0
        for _ in range(n1): ex(X,r); r += 1
        a(f"v_smfmac_f32_32x32x32_bf16 {vr(OY,16)}, {vr(vY_hi,4)}, {vr(Y+8,8)}, v6")
        for ln in pre: a(ln)
        for _ in range(n2): ex(X,r); r += 1
        a(f"v_mfma_f32_32x32x8_bf16 {vr(Y,16)}, {vr(kx(kbuf),2)}, {vr(QYX,2)}, 0")
        for _ in range(n3): ex(X,r); r += 1
        a(f"v_mfma_f32_32x32x16_bf16 {vr(Y,16)}, {vr(kb(kbuf),4)}, {vr(QY,4)}, {vr(Y,16)}")
        for ln in post: a(ln)
        for _ in range(n4): ex(X,r); r += 1
        a(f"v_smfmac_f32_32x32x32_bf16 {vr(OX,16)}, {vr(vX_lo,4)}, {vr(X,8)}, v6")
        for ln in late: a(ln)
        while r < 16: ex(X,r); r += 1
    a(".p2align 3")
    a.label("A_LOOP")
    PRS = eval(os.environ.get('PRS','((4,1),(1,0))'))
    for u in range(4):
        pb = (u+3) % 4
        chk = ["s_cmp_lg_u32 s27, 0", "s_cbranch_scc1 A_CHK", "A_CHKD:"] if u == 1 else []
        if u == 0: chk = [f"s_bitcmp1_b32 {sum(1 << c for c, _ in PRS)}, s21", "s_cbranch_scc1 A_PRIO", "A_PRIOD:"]
        ld = kv_loads(pb)
        if os.environ.get("SPLIT","2") == "2":
            phase(SA, SB, OA, OB, v1r(pb), v0r(u), u, QB, QBX, post=chk + ld[:1] + ([] if chk else ["s_nop 1"]), late=ld[1:2])
            late = [ld[2], ld[4], ld[5]] + ld[6:]
            if u == 3: late = late + ["s_sub_u32 s21, s21, 1", "s_cmp_lg_u32 s21, 0"]
            phase(SB, SA, OB, OA, v1r(u), v0r(u), (u+1) % 4, QA, QAX, pre=["s_waitcnt vmcnt(6)"], post=[ld[2], ld[3], ld[5]], late=late)
        elif os.environ.get("SPLIT","2") == "3":
            phase(SA, SB, OA, OB, v1r(pb), v0r(u), u, QB, QBX, post=chk + ([] if chk else ["s_nop 1"]), late=ld[:2])
            late = ld[2:]
            if u == 3: late = late + ["s_sub_u32 s21, s21, 1", "s_cmp_lg_u32 s21, 0"]
            phase(SB, SA, OB, OA, v1r(u), v0r(u), (u+1) % 4, QA, QAX, pre=["s_waitcnt vmcnt(6)"], late=late)
        elif os.environ.get("SPLIT","2") == "1":
            nk = 4 if GLD else 2
            phase(SA, SB, OA, OB, v1r(pb), v0r(u), u, QB, QBX, post=chk + ld[:nk] + ([] if (GLD or chk) else ["s_nop 1"]))
            post = ld[nk:]
            if u == 3: post = post + ["s_sub_u32 s21, s21, 1", "s_cmp_lg_u32 s21, 0"]
            phase(SB, SA, OB, OA, v1r(u), v0r(u), (u+1) % 4, QA, QAX, pre=["s_waitcnt vmcnt(6)"], post=post)
        else:
            phase(SA, SB, OA, OB, v1r(pb), v0r(u), u, QB, QBX, post=chk + ld)
            post = ["s_nop 3"]
            if u == 3: post = ["s_sub_u32 s21, s21, 1", "s_nop 1", "s_cmp_lg_u32 s21, 0"]
            phase(SB, SA, OB, OA, v1r(u), v0r(u), (u+1) % 4, QA, QAX, pre=["s_waitcnt vmcnt(8)"], post=post)
    a("s_cbranch_scc1 A_LOOP")
    a("s_nop 1")
    a(f"v_smfmac_f32_32x32x32_bf16 {vr(OB,16)}, {vr(v1r(3),4)}, {vr(SB+8,8)}, v6")
    stamp(a, 6)
    a.label("A_FINAL")
    a("s_and_b32 s24, s3, 3")
    a("s_lshl_b32 s25, s24, 4")
    a("v_add_u32 v13, s25, v3")
    a("s_mov_b64 exec, 1")
    a(f"ds_add_rtn_u32 v2, v13, v1 offset:{4*SY_PR}")
    a("s_mov_b64 exec, -1")
    a("s_mul_i32 s24, s24, 5632")
    a(f"s_add_u32 s24, s24, {L_XCH}")
    a("v_lshl_add_u32 v10, v0, 4, s24")
    a("v_lshl_add_u32 v12, v0, 2, s24")
    emit_tau(a, 14, 4, 15)
    a("s_add_u32 s26, s15, 1")
    a("s_waitcnt lgkmcnt(0)")
    a("v_readfirstlane_b32 s96, v2")
    a("s_bitcmp1_b32 s96, 0")
    a("s_cbranch_scc1 A_SECOND")
    lds_wait(a, SY_WP, 1)
    for k, O in enumerate((OA, OB)):
        a(f"ds_write_b128 v10, {vr(O,4)} offset:{2816*k}")
        a(f"ds_write_b128 v10, {vr(O+4,4)} offset:{2816*k+1024}")
        for r in range(3):
            a(f"ds_write_b32 v12, v{O+8+r} offset:{2816*k+2048+256*r}")
    a("s_waitcnt lgkmcnt(0)")
    a("s_mov_b64 exec, 1")
    a(f"ds_add_u32 v13, v1 offset:{4*SY_PR+4}")
    a("s_mov_b64 exec, -1")
    a("s_waitcnt vmcnt(0)")
    a("s_cmp_lg_u32 s15, 0")
    a("s_cbranch_scc1 A_DONE")
    a(f"s_mov_b32 s97, {SPIN_MAX}")
    a.label("A_VW")
    a(f"ds_read_b32 v2, v13 offset:{4*SY_PR+8}")
    a("s_waitcnt lgkmcnt(0)")
    a("v_readfirstlane_b32 s96, v2")
    a("s_cmp_eq_u32 s96, 1")
    a("s_cbranch_scc1 A_DONE")
    a("s_cmp_eq_u32 s96, 2")
    a("s_cbranch_scc1 A_REDO")
    a("s_sleep 2")
    a("s_sub_u32 s97, s97, 1")
    a("s_cbranch_scc0 A_VW")
    a("s_branch A_DONE")
    a.label("A_SECOND")
    a(f"s_mov_b32 s97, {SPIN_MAX}")
    a.label("A_RW")
    a(f"ds_read_b32 v2, v13 offset:{4*SY_PR+4}")
    for k, S in enumerate((SA, SB)):
        a(f"ds_read_b128 {vr(S,4)}, v10 offset:{2816*k}")
        a(f"ds_read_b128 {vr(S+4,4)}, v10 offset:{2816*k+1024}")
        for r in range(3):
            a(f"ds_read_b32 v{S+8+r}, v12 offset:{2816*k+2048+256*r}")
    a("s_mul_i32 s27, s30, 36")
    a("s_add_u32 s27, s27, s4")
    a("s_lshl_b32 s27, s27, 10")
    a(f"s_add_u32 s27, s27, {OF_OFF}")
    a("s_add_u32 s25, s27, 36864")
    a("s_lshl_b32 s28, s30, 5")
    a("s_add_u32 s28, s28, s4")
    a("s_lshl_b32 s28, s28, 7")
    a(f"s_add_u32 s28, s28, {OX_OFF}")
    a("v_lshl_add_u32 v15, v5, 5, v14")
    a("v_lshlrev_b32 v15, 4, v15")
    a("v_lshlrev_b32 v11, 12, v5")
    a("v_lshl_add_u32 v11, v14, 2, v11")
    a("s_waitcnt lgkmcnt(0)")
    a("v_readfirstlane_b32 s96, v2")
    a("s_cmp_ge_u32 s96, s26")
    a("s_cbranch_scc1 A_RWOK")
    a("s_sub_u32 s97, s97, 1")
    a("s_cbranch_scc0 A_RW")
    a.label("A_RWOK")
    for (S, O) in ((SA, OA), (SB, OB)):
        a(f"v_add_f32 v{S+10}, v{S+10}, v{O+10}")
    for (S, O) in ((SA, OA), (SB, OB)):
        a(f"v_rcp_f32 v{S+11}, v{S+10}")
    for (S, O, so) in ((SA, OA, 27), (SB, OB, 25)):
        for r in range(10): a(f"v_add_f32 v{S+r}, v{S+r}, v{O+r}")
        for r in range(10): a(f"v_mul_f32 v{O+r}, v{S+r}, v{S+11}")
        for r in range(5): a(f"v_cvt_pk_bf16_f32 v{O+r}, v{O+2*r}, v{O+2*r+1}")
        a(f"buffer_store_dwordx4 {vr(O,4)}, v15, s[16:19], s{so} offen sc1")
    a("s_nop 0")
    a(f"v_permlane32_swap_b32 v{OA+4}, v{OB+4}")
    a(f"buffer_store_dword v{OA+4}, v11, s[16:19], s28 offen sc1")
    for r in range(10):
        a(f"v_fma_f32 v{SA+10}, v{SA+r}, 0, v{SA+10}")
        a(f"v_fma_f32 v{SB+10}, v{SB+r}, 0, v{SB+10}")
    lo, hi = (2.0**-60, 2.0**60) if os.environ.get("FORCEFB","0") != "1" else (2.0**40, 2.0**60)
    a(f"s_mov_b32 s28, {fhex(lo)}")
    a(f"s_mov_b32 s29, {fhex(hi)}")
    a(f"v_cmp_le_f32 vcc, s28, v{SA+10}")
    a(f"v_cmp_ge_f32 s[24:25], s29, v{SA+10}")
    a(f"v_cmp_le_f32 s[26:27], s28, v{SB+10}")
    a(f"v_cmp_ge_f32 s[28:29], s29, v{SB+10}")
    a("s_and_b64 vcc, vcc, s[24:25]")
    a("s_and_b64 vcc, vcc, s[26:27]")
    a("s_and_b64 vcc, vcc, s[28:29]")
    a("s_lshl_b32 s24, s30, 4")
    a("s_add_u32 s24, s24, s4")
    a("s_lshl_b32 s24, s24, 7")
    a(f"s_add_u32 s24, s24, {FL_O}")
    a("s_cmp_eq_u64 vcc, -1")
    a("s_cselect_b32 s25, 1, 2")
    a("s_cmp_lg_u32 s15, 0")
    a("s_cselect_b32 s25, 1, s25")
    a("v_mov_b32 v11, s25")
    a(f"ds_write_b32 v13, v11 offset:{4*SY_PR+8}")
    a("s_cmp_eq_u32 s25, 1")
    a("s_cbranch_scc1 A_PUB")
    a.label("A_REDO")
    a("s_mov_b32 s15, 1")
    a("s_mov_b32 s20, 0")
    a("s_mov_b32 s21, 64")
    a("v_mov_b32 v165, 0xff800000")
    a("v_mov_b32 v166, 0xff800000")
    a("s_waitcnt vmcnt(0)")
    a.label("A_MAXLOOP")
    for ln in kv_loads(0)[:(4 if GLD else 2)]: a(ln)
    a(f"s_add_u32 s20, s20, {TILE}")
    a("s_waitcnt vmcnt(0)")
    qk(a, SA, 0, QA, QAX); qk(a, SB, 0, QB, QBX)
    a("s_nop 15")
    for r in range(8):
        a(f"v_max3_f32 v165, v165, v{SA+2*r}, v{SA+2*r+1}")
        a(f"v_max3_f32 v166, v166, v{SB+2*r}, v{SB+2*r+1}")
    a("s_sub_u32 s21, s21, 1")
    a("s_cmp_lg_u32 s21, 0")
    a("s_cbranch_scc1 A_MAXLOOP")
    for m in (165, 166):
        a(f"v_mov_b32 v12, v{m}")
        a("s_nop 1")
        a(f"v_permlane32_swap_b32 v12, v{m}")
        a("s_nop 1")
        a(f"v_max_f32 v{m}, v{m}, v12")
    for r in range(16):
        a(f"v_mov_b32 v{OA+r}, 0")
        a(f"v_mov_b32 v{OB+r}, 0")
    a("s_mov_b32 s20, s14")
    a("s_mov_b32 s21, 32")
    a.label("A_SLOWLOOP")
    for ln in kv_loads(0): a(ln)
    a("s_waitcnt vmcnt(0)")
    qk(a, SA, 0, QA, QAX); qk(a, SB, 0, QB, QBX)
    a("s_nop 15")
    for r in range(16):
        a(f"v_sub_f32 v{SA+r}, v{SA+r}, v165")
        a(f"v_sub_f32 v{SB+r}, v{SB+r}, v166")
    for r in range(32): ex(SA, r)
    a("s_nop 1")
    a(f"v_smfmac_f32_32x32x32_bf16 {vr(OA,16)}, {vr(v0r(0),4)}, {vr(SA,8)}, v6")
    a(f"v_smfmac_f32_32x32x32_bf16 {vr(OB,16)}, {vr(v0r(0),4)}, {vr(SB,8)}, v6")
    a(f"v_smfmac_f32_32x32x32_bf16 {vr(OA,16)}, {vr(v1r(0),4)}, {vr(SA+8,8)}, v6")
    a(f"v_smfmac_f32_32x32x32_bf16 {vr(OB,16)}, {vr(v1r(0),4)}, {vr(SB+8,8)}, v6")
    a("s_sub_u32 s21, s21, 1")
    a("s_cmp_lg_u32 s21, 0")
    a("s_cbranch_scc1 A_SLOWLOOP")
    a("s_branch A_FINAL")
    a.label("A_PRIO")
    for (cnt, pr) in PRS:
        a(f"s_setprio {pr}")
        a(f"s_cmp_eq_u32 s21, {cnt}")
        a("s_cbranch_scc1 A_PRIOD")
    a("s_branch A_PRIOD")
    a.label("A_CHK")
    if PROFE: _stamp(a, 2)
    if PROFE: _stamp(a, 3)
    a("s_mov_b32 s27, 0")
    a("s_waitcnt vmcnt(4)")
    a("v_cmp_ne_u32 vcc, s74, v161")
    a("s_cmp_eq_u64 vcc, 0")
    a("s_cbranch_scc1 A_CHKD")
    flag_wait_multi(a, [160], 161, sleep=1)
    if PROFE: _stamp(a, 3)
    a("s_branch A_CHKD")
    a.label("A_PUB")
    a("s_waitcnt vmcnt(0)")
    flag_set(a, "s24", 10)
    a.label("A_DONE")

def gen_p3(a):
    MIMIC = int(os.environ.get("MIMIC", "1"))
    a("s_cmp_ge_u32 s2, 192")
    a("s_cbranch_scc1 F_FIN")
    if PROFB: stamp(a, 1)
    a("s_and_b32 s4, s2, 7")
    a("s_lshl_b32 s4, s4, 2")
    a("s_bfe_u32 s5, s2, 0x20003")
    a("s_add_u32 s4, s4, s5")
    a("s_lshr_b32 s5, s2, 5")
    a("s_and_b32 s6, s3, 1")
    a("s_lshr_b32 s7, s3, 1")
    a("s_lshl_b32 s8, s4, 1")
    a("s_add_u32 s8, s8, s6")
    a("v_lshlrev_b32 v6, 4, v0")
    a("s_cmp_eq_u32 s7, 3")
    a("s_cselect_b32 s9, 0, s7")
    a("s_add_u32 s10, s9, 1")
    a("s_cmp_eq_u32 s10, 3")
    a("s_cselect_b32 s10, 0, s10")
    a("s_add_u32 s11, s10, 1")
    a("s_cmp_eq_u32 s11, 3")
    a("s_cselect_b32 s11, 0, s11")
    a("s_lshl_b32 s12, s7, 13")
    a("v_bfe_u32 v12, v0, 2, 2")
    a("v_lshl_add_u32 v13, v5, 2, v12")
    a("v_lshrrev_b32 v14, 1, v12")
    a("v_lshl_add_u32 v14, v5, 2, v14")
    a("v_mul_u32_u24 v14, 18, v14")
    a("v_and_b32 v12, 1, v12")
    a("v_add3_u32 v14, v14, v12, 16")
    a("v_sub_u32 v14, v14, v13")
    a("v_mul_u32_u24 v14, 192, v14")
    a("v_mul_u32_u24 v13, 192, v13")
    a("v_bfe_u32 v12, v0, 4, 1")
    a("v_lshl_add_u32 v13, v12, 5, v13")
    a("v_and_b32 v12, 3, v0")
    a("v_lshl_add_u32 v13, v12, 3, v13")
    a(f"s_mul_i32 s26, s7, {8*18*192}")
    for j in range(3):
        a(f"s_lshl_b32 s13, s{9+j}, 6")
        a("s_add_u32 s13, s13, s26")
        a(f"v_add_u32 v{8+j}, s13, v13")
    DA = 16; OFr = 64; WF = 100; DY = 148
    NW = 4
    lds_wait(a, SY_GO3, 1, sleep=1)
    a("s_mul_i32 s13, s6, 6144")
    a("s_lshl_b32 s14, s9, 11")
    a("s_add_u32 s13, s13, s14")
    a(f"s_add_u32 s13, s13, {L_A}")
    a("v_lshlrev_b32 v7, 6, v4")
    a("v_lshl_add_u32 v7, v5, 4, v7")
    a("v_add_u32 v7, s13, v7")
    a(f"ds_read_b128 {vr(DA,4)}, v7")
    a(f"ds_read_b128 {vr(DA+4,4)}, v7 offset:32")
    a("s_lshl_b32 s13, s6, 8")
    a(f"s_add_u32 s13, s13, {L_G}")
    a("v_lshl_add_u32 v7, v4, 3, s13")
    a("ds_read_b64 v[12:13], v7")
    ident_nat(a, DA+8, DA+12, DA+16)
    a("s_waitcnt lgkmcnt(0)")
    a(f"v_mfma_f32_32x32x16_bf16 {vr(DY,16)}, {vr(DA,4)}, {vr(DA+8,4)}, 0")
    a(f"v_mfma_f32_32x32x16_bf16 {vr(DY,16)}, {vr(DA+4,4)}, {vr(DA+12,4)}, {vr(DY,16)}")
    def wreads(i):
        for j in range(3):
            if i == 8: a(f"v_add_u32 v{8+j}, v14, v{8+j}")
            o, d = (3456*i, 1536) if i < 8 else (0, 6912)
            a(f"ds_read_b64_tr_b16 {vr(WF+12*(i%NW)+4*j,2)}, v{8+j} offset:{o}")
            a(f"ds_read_b64_tr_b16 {vr(WF+12*(i%NW)+4*j+2,2)}, v{8+j} offset:{o+d}")
    for i in range(NW): wreads(i)
    a("s_lshl_b32 s13, s4, 2")
    a("s_add_u32 s13, s13, s7")
    a("s_lshl_b32 s13, s13, 10")
    a(f"s_add_u32 s13, s13, {FL_O}")
    a("v_and_b32 v11, 7, v0")
    a("v_lshl_add_u32 v11, v11, 7, s13")
    a("s_mul_i32 s14, s8, 36864")
    a("s_add_u32 s14, s14, s12")
    a(f"s_add_u32 s14, s14, {OF_OFF}")
    a("s_add_u32 s24, s14, 4096")
    a("s_lshl_b32 s25, s8, 2")
    a("s_add_u32 s25, s25, s7")
    a("s_lshl_b32 s25, s25, 10")
    a(f"s_add_u32 s25, s25, {OX_OFF}")
    a("v_lshlrev_b32 v7, 9, v5")
    a("v_lshl_add_u32 v7, v4, 2, v7")
    a("s_mov_b32 s27, 0xffff0000")
    g = 12; og = 13
    for r in range(16): a(f"v_mul_f32 v{DY+r}, v{DY+r}, v{g}")
    if MIMIC:
        for k in range(8): a(f"v_cvt_pk_bf16_f32 v{DY+2*k}, v{DY+2*k}, v{DY+2*k+1}")
        for k in range(8):
            a(f"v_and_b32 v{DY+2*k+1}, s27, v{DY+2*k}")
            a(f"v_lshlrev_b32 v{DY+2*k}, 16, v{DY+2*k}")
    a("s_mul_i32 s20, s6, 36864")
    for j in range(3):
        a(f"s_sub_u32 s21, s7, s{9+j}")
        a("s_sub_u32 s21, s21, 1")
        a("s_and_b32 s21, s21, 3")
        a("s_lshl_b32 s21, s21, 12")
        a(f"s_mul_i32 s22, s{9+j}, 12288")
        a("s_add_u32 s21, s21, s22")
        a("s_add_u32 s21, s21, s20")
        a(f"v_add_u32 v{164+j}, s21, v6")
    a("s_mul_i32 s21, s9, 12288")
    a("s_add_u32 s21, s21, s20")
    a("v_add_u32 v167, s21, v6")
    srd(a, 20, S_OUT, X_BYTES)
    a("s_lshl_b32 s28, s8, 5")
    a("v_add_u32 v15, s28, v4")
    a("v_mul_u32_u24 v15, 1152, v15")
    a("v_lshl_add_u32 v15, v5, 4, v15")
    a("s_mul_i32 s28, s5, 3")
    a("s_add_u32 s28, s28, s9")
    a("s_lshl_b32 s28, s28, 6")
    flag_wait_multi(a, [11], 2, sleep=1)
    if PROFB: stamp(a, 2)
    for i in range(8):
        a(f"buffer_load_dwordx4 {vr(OFr+4*i,4)}, v6, s[16:19], s{14 if i < 4 else 24} offen offset:{(i%4)*1024} {SC}")
    for k in range(4):
        a(f"buffer_load_dword v{OFr+32+k}, v7, s[16:19], s25 offen offset:{128*k} {SC}")
    for i in range(9):
        nl = min(15, 6*min(NW-1, 8-i))
        a(f"s_waitcnt vmcnt({(7-i+4) if i < 8 else 0}) lgkmcnt({nl})")
        for j in (1, 2, 0):
            cin = "0" if i == 0 else vr(DA+16*j,16)
            a(f"v_mfma_f32_32x32x16_bf16 {vr(DA+16*j,16)}, {vr(WF+12*(i%NW)+4*j,4)}, {vr(OFr+4*i,4)}, {cin}")
        if i + NW < 9: wreads(i+NW)
    if PROFB: stamp(a, 3)
    a("s_barrier")
    a("s_nop 8")
    for j in (1, 2):
        for q in range(4):
            a(f"ds_write_b128 v{164+j}, {vr(DA+16*j+4*q,4)} offset:{1024*q}")
    a("s_cmp_lg_u32 s7, 3")
    a("s_cbranch_scc1 P_OWN")
    for q in range(4):
        a(f"ds_write_b128 v164, {vr(DA+4*q,4)} offset:{1024*q}")
    a("s_waitcnt lgkmcnt(0)")
    a("s_barrier")
    a("s_branch F_FIN")
    a.label("P_OWN")
    a("s_waitcnt lgkmcnt(0)")
    a("s_barrier")
    if PROFB: stamp(a, 4)
    PB = OFr; R = 32
    for q in range(12):
        a(f"ds_read_b128 {vr(PB+4*q,4)}, v167 offset:{1024*q}")
    for sl in range(3):
        a(f"s_waitcnt lgkmcnt({8-4*sl})")
        for k in range(8):
            a(f"v_pk_add_f32 {vr(DA+2*k,2)}, {vr(DA+2*k,2)}, {vr(PB+16*sl+2*k,2)}")
    def rnd():
        for k in range(8): a(f"v_cvt_pk_bf16_f32 v{DA+2*k}, v{DA+2*k}, v{DA+2*k+1}")
        for k in range(8):
            a(f"v_and_b32 v{DA+2*k+1}, s27, v{DA+2*k}")
            a(f"v_lshlrev_b32 v{DA+2*k}, 16, v{DA+2*k}")
    if MIMIC == 1:
        rnd()
        for k in range(8): a(f"v_pk_mul_f32 {vr(DA+2*k,2)}, {vr(DA+2*k,2)}, v[12:13] op_sel:[0,1] op_sel_hi:[1,1]")
        rnd()
        for k in range(8): a(f"v_pk_add_f32 {vr(DA+2*k,2)}, {vr(DA+2*k,2)}, {vr(DY+2*k,2)}")
    else:
        for k in range(8): a(f"v_pk_fma_f32 {vr(DA+2*k,2)}, {vr(DA+2*k,2)}, v[12:13], {vr(DY+2*k,2)} op_sel:[0,1,0] op_sel_hi:[1,1,1]")
    for k in range(8):
        a(f"v_cvt_pk_bf16_f32 v{R+k}, v{DA+2*k}, v{DA+2*k+1}")
    a("s_nop 1")
    for k in (0, 4):
        a(f"v_permlane32_swap_b32 v{R+k}, v{R+k+2}")
        a(f"v_permlane32_swap_b32 v{R+k+1}, v{R+k+3}")
    a(f"buffer_store_dwordx4 {vr(R,4)}, v15, s[20:23], s28 offen {os.environ.get('OUTF','')}")
    a(f"buffer_store_dwordx4 {vr(R+4,4)}, v15, s[20:23], s28 offen offset:32 {os.environ.get('OUTF','')}")
    if PROF: a("s_waitcnt vmcnt(0)")
    finish(a)

SCAL = os.environ.get("SCAL","1") == "1"
def cmuls(a, lst):
    if SCAL:
        for (d, x, w) in lst:
            a(f"v_mul_f32 v{d}, v{x}, v{w}")
            a(f"v_mul_f32 v{d+1}, v{x}, v{w+1}")
        for (d, x, w) in lst:
            a(f"v_fma_f32 v{d}, -v{x+1}, v{w+1}, v{d}")
            a(f"v_fmac_f32 v{d+1}, v{x+1}, v{w}")
        return
    for (d, x, w) in lst:
        a(f"v_pk_mul_f32 {vr(d,2)}, {vr(x,2)}, {vr(w,2)} op_sel:[0,0] op_sel_hi:[0,1]")
    for (d, x, w) in lst:
        a(f"v_pk_fma_f32 {vr(d,2)}, {vr(x,2)}, {vr(w,2)}, {vr(d,2)} op_sel:[1,1,0] op_sel_hi:[1,0,1] neg_lo:[0,1,0]")

class Rec:
    def __init__(self): self.l = []
    def __call__(self, t): self.l.append(t)

def cmul_ip(a, lst, T):
    if SCAL:
        for k, (x, w) in enumerate(lst):
            a(f"v_mul_f32 v{T+2*k}, v{x}, v{w}")
            a(f"v_mul_f32 v{T+2*k+1}, v{x}, v{w+1}")
        for k, (x, w) in enumerate(lst):
            a(f"v_fma_f32 v{x}, -v{x+1}, v{w+1}, v{T+2*k}")
            a(f"v_fma_f32 v{x+1}, v{x+1}, v{w}, v{T+2*k+1}")
        return
    for k, (x, w) in enumerate(lst):
        a(f"v_pk_mul_f32 {vr(T+2*k,2)}, {vr(x,2)}, {vr(w,2)} op_sel:[0,0] op_sel_hi:[0,1]")
    for k, (x, w) in enumerate(lst):
        a(f"v_pk_fma_f32 {vr(x,2)}, {vr(x,2)}, {vr(w,2)}, {vr(T+2*k,2)} op_sel:[1,1,0] op_sel_hi:[1,0,1] neg_lo:[0,1,0]")

def param_issue(a, dst, dch, part=3):
    if part & 1:
        a("s_lshl_b32 s4, s31, 1")
        a("s_add_u32 s4, s4, s8")
        a("s_lshl_b32 s6, s4, 8")
        a("s_lshl_b32 s7, s9, 7")
        a("s_add_u32 s6, s6, s7")
        a("v_lshl_add_u32 v14, v0, 1, s6")
        a("s_lshl_b32 s6, s4, 1")
        a("v_mov_b32 v15, s6")
    if part & 2:
        a(f"global_load_ushort v{dst}, v15, s[{S_LOGDT}:{S_LOGDT+1}] offset:{2*dch}")
        for k, reg in enumerate((S_LOGA, S_AIM, S_CR, S_CI)):
            a(f"global_load_ushort v{dst+1+k}, v14, s[{reg}:{reg+1}] offset:{256*dch}")
        a(f"global_load_ushort v157, v15, s[{S_DSKIP}:{S_DSKIP+1}] offset:{2*dch}")

def kgen_head(a):
    a("s_bfe_u32 s8, s3, 0x20001")
    a("s_and_b32 s9, s3, 1")
    a("s_cmp_ge_u32 s2, 224")
    a("s_cselect_b32 s30, 2, 1")
    a(f"s_mov_b32 s29, {L_KC}")
    a(f"s_cselect_b32 s29, {L_KC4}, s29")
    param_issue(a, 8, 0, 1)
    a("s_cmp_lg_u32 s30, 1")
    a("s_cbranch_scc0 K_NF")
    a("s_setprio 1")
    if os.environ.get("FO","0") == "0": param_issue(a, 8, 0, 2)
    a("s_barrier")
    if os.environ.get("FO","0") == "1": param_issue(a, 8, 0, 2)
    a("s_branch K_NF")

def conv_setup(a):
    a("v_and_b32 v10, 15, v0")
    a("v_lshrrev_b32 v11, 4, v0")
    a("v_sub_u32 v6, 15, v10")
    a("v_lshl_add_u32 v6, v11, 3, v6")
    a("v_and_b32 v7, 1, v6")
    a(f"v_mul_u32_u24 v7, {KC_STRIDE-2}, v7")
    a("v_lshl_add_u32 v6, v6, 1, v7")
    a("s_lshl_b32 s66, s9, 8")
    a("s_add_u32 s66, s66, s5")
    a("v_add_u32 v6, s66, v6")
    a("v_add_u32 v7, 1024, v6")
    a("v_add_u32 v8, 2048, v6")
    a("v_add_u32 v9, 3072, v6")
    a("v_lshl_add_u32 v4, v10, 1, v11")
    a("s_lshl_b32 s66, s9, 4")
    a("s_add_u32 s66, s66, 2")
    a("v_add_u32 v4, s66, v4")
    a("s_lshr_b32 s66, s8, 1")
    a(f"s_mul_i32 s66, s66, {L_P[2]-32768}")
    a("s_lshl_b32 s15, s8, 14")
    a("s_add_u32 s15, s15, s66")
    a("s_lshl_b32 s66, s9, 13")
    a("s_add_u32 s66, s66, s15")
    a("v_lshrrev_b32 v5, 2, v0")
    a("v_and_b32 v5, 8, v5")
    a("v_xor_b32 v5, v5, v0")
    a("v_lshl_add_u32 v5, v5, 4, s66")
    for k in range(2):
        a(f"v_bfe_u32 v{10+k}, v4, 2, 2")
        a(f"v_xor_b32 v{10+k}, s8, v{10+k}")
        a(f"v_lshlrev_b32 v{10+k}, 4, v{10+k}")
        a(f"v_lshl_add_u32 v{10+k}, v4, 6, v{10+k}")
        a(f"v_add_u32 v{10+k}, {L_U}, v{10+k}")
        if k == 0: a("v_add_u32 v4, 4, v4")
    a(f"s_mul_i32 s66, s9, {32*36864}")
    a("s_lshl_b32 s24, s31, 7")
    a(f"s_add_u32 s25, s24, {FL_A}")
    a("s_add_u32 s24, s24, s66")
    a("s_lshl_b32 s66, s8, 6")
    a("s_add_u32 s24, s24, s66")
    a(f"s_add_u32 s24, s24, {AF_OFF}")
    a("v_lshlrev_b32 v12, 16, v157")
    a("s_nop 0")
    a("v_readfirstlane_b32 s20, v12")

def gen_kgen(a):
    a.label("K_NF")
    hi = struct.unpack("<f", struct.pack("<f", LOG2E))[0]
    a(f"s_mov_b32 s70, {fhex(hi)}")
    a(f"s_mov_b32 s71, {fhex(LOG2E-hi)}")
    a(f"s_mov_b32 s72, {fhex(math.log(2.0))}")
    a("s_mov_b32 s73, 0xffff0000")
    a("s_mov_b32 s60, 0x01000100")
    a("s_mov_b32 s61, 0x03020302")
    a("s_mov_b32 s62, 0x01000302")
    a(f"s_mul_i32 s5, s8, {2*KC_STRIDE}")
    a("s_add_u32 s5, s5, s29")
    UD = int(os.environ.get("UD", "96"))
    a(f"s_sub_u32 s63, s2, {UD}")
    a("s_cmp_lt_u32 s63, 128")
    a("s_cselect_b32 s63, s3, 0")
    assert ROT == "4"
    a("s_bfe_u32 s21, s2, 0x10002")
    a("v_lshrrev_b32 v6, 4, v0")
    a("v_bfe_u32 v7, v0, 2, 2")
    a("v_lshl_add_u32 v130, v6, 3, v7")
    a("v_bfe_u32 v131, v0, 1, 1")
    a("s_lshl_b32 s22, s21, 2")
    a("v_add_u32 v131, s22, v131")
    a("v_bfe_u32 v7, v130, 1, 3")
    a("v_xor_b32 v131, v131, v7")
    a("v_and_b32 v7, 1, v0")
    a("v_lshlrev_b32 v7, 3, v7")
    a("v_lshl_add_u32 v7, v130, 7, v7")
    a("s_and_b32 s22, s3, 3")
    a("s_lshl_b32 s23, s22, 12")
    a("s_add_u32 s23, s23, 16384")
    a("v_add_u32 v7, s23, v7")
    a(f"s_mul_i32 s66, s22, {4*9216}")
    a("v_lshl_add_u32 v130, v131, 4, v7")
    a("v_xor_b32 v131, 32, v130")
    a("v_mul_u32_u24 v129, 9216, v6")
    a("v_and_b32 v7, 15, v0")
    a("v_lshl_add_u32 v129, v7, 4, v129")
    a("s_and_b32 s23, s2, 3")
    a("s_lshl_b32 s23, s23, 2")
    a("s_bfe_u32 s22, s2, 0x20003")
    a("s_add_u32 s23, s23, s22")
    a("s_lshl_b32 s22, s20, 1")
    a("s_add_u32 s22, s22, s21")
    a(f"s_mul_i32 s64, s23, {16*9216}")
    a("s_lshl_b32 s21, s22, 9")
    a("s_add_u32 s64, s64, s21")
    a("s_add_u32 s64, s64, s66")
    a(f"s_add_u32 s64, s64, {UT_OFF}")
    a("s_lshl_b32 s65, s22, 4")
    a("s_add_u32 s65, s65, s23")
    a("s_lshl_b32 s65, s65, 7")
    a(f"s_add_u32 s65, s65, {FL_U1}")
    A = 16; T = 32; W1 = 40; W2 = 42; G1 = 44; G2 = 46; C0 = 14
    RY = 48; RX0 = 64; RX1 = 80; RX2 = 96
    E = 108
    r = Rec()
    r("s_cmp_lg_u32 s30, 1")
    r("s_cbranch_scc1 K_NI")
    param_issue(r, 8, 0, 2)
    r("K_NI:")
    n_issue = len(r.l)
    r(f"s_mul_i32 s6, s9, {KC_STRIDE}")
    r("s_add_u32 s6, s6, s5")
    r(f"v_lshl_add_u32 v{E}, v0, 2, s6")
    for k in range(1, 4): r(f"v_add_u32 v{E+k}, {1088*k}, v{E}")
    r("v_and_b32 v18, 15, v0")
    r("v_lshrrev_b32 v19, 4, v0")
    r(f"v_mul_u32_u24 v{E+4}, 272, v18")
    r(f"v_lshl_add_u32 v{E+4}, v19, 4, v{E+4}")
    r(f"v_add_u32 v{E+4}, s6, v{E+4}")
    r("v_lshrrev_b32 v20, 1, v19")
    r("v_lshlrev_b32 v20, 8, v20")
    r("v_and_b32 v21, 1, v19")
    r("v_lshl_add_u32 v20, v21, 3, v20")
    r("v_lshl_add_u32 v20, v18, 4, v20")
    r(f"v_add_u32 v{E+5}, s5, v20")
    r("v_cmp_gt_u32 vcc, 2, v19")
    r("v_lshlrev_b32 v21, 2, v18")
    r("v_lshlrev_b32 v22, 3, v18")
    r("v_cndmask_b32 v21, v21, v22, vcc")
    r("v_lshl_add_u32 v21, v19, 7, v21")
    r(f"v_add_u32 v{E+6}, s5, v21")
    r("v_mov_b32 v22, 64")
    r("v_mov_b32 v23, 4")
    r("v_cndmask_b32 v22, v22, v23, vcc")
    r(f"v_add_u32 v{E+7}, v22, v{E+6}")
    r("v_lshlrev_b32 v23, 7, v19")
    r("v_lshl_add_u32 v23, v18, 1, v23")
    r(f"v_add_u32 v{E+8}, s5, v23")
    r(f"v_lshl_add_u32 v{E+9}, v0, 1, s5")
    r("v_lshlrev_b32 v20, 4, v4")
    r("v_cmp_eq_u32 vcc, 1, v5")
    r("v_lshlrev_b32 v21, 3, v4")
    r("v_add_u32 v21, 508, v21")
    r("v_cndmask_b32 v20, v20, v21, vcc")
    r(f"v_add_u32 v{E+10}, s5, v20")
    def sel(dst, f, t):
        r(f"v_mov_b32 v{dst}, {f}")
        r(f"v_mov_b32 v20, {t}")
        r(f"v_cndmask_b32 v{dst}, v{dst}, v20, vcc")
    sel(E+11, "0x05040706", "0x03020504")
    sel(E+12, "0x01000302", "0x01000100")
    sel(E+13, "0x01000302", "0x03020504")
    sel(E+14, "0x01000302", "0x05040504")
    r("v_and_b32 v20, 1, v0")
    r("v_cmp_eq_u32 vcc, 1, v20")
    r("v_lshlrev_b32 v22, 4, v0")
    r("v_sub_u32 v21, 1008, v22")
    sel(E+15, "0x01000302", "0x03020302")
    r(f"v_add_u32 v{E+16}, s5, v21")
    r(f"v_add_u32 v{E+17}, s5, v22")
    r(f"v_mov_b32 v{E+18}, 0")
    r("s_lshl_b32 s6, s8, 2")
    r(f"v_add_u32 v{E+19}, s6, v3")
    n_const = len(r.l)
    r("s_waitcnt vmcnt(0) lgkmcnt(0)")
    def pack(base, row, src): r(f"v_cvt_pk_bf16_f32 v{base+row}, v{src}, v{src+1}")
    r("v_lshlrev_b32 v8, 16, v8")
    r("v_lshlrev_b32 v6, 16, v9")
    exp_precise(r, 8, 8, T+2, T+3)
    exp_precise(r, 6, 6, T, T+1)
    r("v_lshlrev_b32 v7, 16, v10")
    r("v_cvt_pk_bf16_f32 v8, v8, v8")
    r("v_cvt_pk_bf16_f32 v6, v6, v6")
    r(f"v_lshlrev_b32 v{C0}, 16, v11")
    r("v_and_b32 v8, s73, v8")
    r("v_and_b32 v6, s73, v6")
    r(f"v_lshlrev_b32 v{C0+1}, 16, v12")
    r("v_mul_f32 v7, v7, v8")
    r("v_mul_f32 v6, v6, v8")
    r(f"v_mul_f32 v{C0}, v{C0}, v8")
    r(f"v_mul_f32 v{C0+1}, v{C0+1}, v8")
    r("v_mul_f32 v7, 0.15915494, v7")
    r("v_mul_f32 v6, s70, v6")
    r(f"v_add_f32 v{C0}, v{C0}, v{C0}")
    r(f"v_add_f32 v{C0+1}, v{C0+1}, v{C0+1}")
    r(f"v_mov_b32 v{RY}, 0x3f80")
    Q = A+2
    anc = ((W1, 1, False), (A, 8, True), (G1, 128, False))
    for k, (dst, p, conj) in enumerate(anc):
        r(f"v_mul_f32 v{Q+4*k+1}, {fhex(float(-p if conj else p))}, v7")
    for k, (dst, p, conj) in enumerate(anc):
        r(f"v_mul_f32 v{Q+4*k}, {fhex(-float(p))}, v6")
    for k in range(3): r(f"v_fract_f32 v{Q+4*k+1}, v{Q+4*k+1}")
    for k in range(3): r(f"v_exp_f32 v{Q+4*k}, v{Q+4*k}")
    for k in range(3):
        r(f"v_cos_f32 v{Q+4*k+2}, v{Q+4*k+1}")
        r(f"v_sin_f32 v{Q+4*k+3}, v{Q+4*k+1}")
    r("s_nop 0")
    for k, (dst, p, conj) in enumerate(anc):
        r(f"v_mul_f32 v{dst}, v{Q+4*k}, v{Q+4*k+2}")
        r(f"v_mul_f32 v{dst+1}, v{Q+4*k}, v{Q+4*k+3}")
    Y = lambda j: A + 2*(j-1)
    cmuls(r, [(Y(2), Y(1), Y(1)), (W2, W1, W1), (G2, G1, G1)])
    cmuls(r, [(Y(4), Y(2), Y(2)), (Y(3), Y(2), Y(1))])
    pack(RY, 1, Y(1)); pack(RY, 2, Y(2))
    cmuls(r, [(Y(8), Y(4), Y(4)), (Y(5), Y(4), Y(1)), (Y(6), Y(4), Y(2)), (Y(7), Y(4), Y(3))])
    for j in range(3, 9): pack(RY, j, Y(j))
    cmul_ip(r, [(Y(j), Y(8)) for j in (1,2,3,4)], T)
    cmul_ip(r, [(Y(j), Y(8)) for j in (5,6,7)], T)
    for j in range(1, 8): pack(RY, 8+j, Y(j))
    Z = lambda i: A + 2*i
    r(f"v_mov_b32 v{Z(0)}, v{C0}")
    r(f"v_mov_b32 v{Z(0)+1}, v{C0+1}")
    cmuls(r, [(Z(1), C0, W1), (Z(2), C0, W2), (T, W2, W2)])
    cmuls(r, [(Z(3), Z(1), W2), (Z(4), C0, T), (Z(5), Z(1), T), (Z(6), Z(2), T)])
    cmuls(r, [(Z(7), Z(3), T)])
    for i in range(8): pack(RX0, i, Z(i))
    cmul_ip(r, [(Z(i), G1) for i in (0,2,4,6)], T)
    cmul_ip(r, [(Z(i), G1) for i in (1,3,5,7)], T)
    for i in range(8): pack(RX0, 8+i, Z(i))
    cmul_ip(r, [(Z(i), G1) for i in (0,2,4,6)], T)
    cmuls(r, [(Z(i+1), Z(i), G1) for i in (0,2,4,6)])
    for ii in range(4): pack(RX1, ii, Z(2*ii))
    for ii in range(4): pack(RX1, 4+ii, Z(2*ii+1))
    for q in range(2):
        cmul_ip(r, [(Z(i), G2) for i in (0,4,1,5)], T)
        for k, i in enumerate((0,4,1,5)): pack(RX1, 8+4*q+k, Z(i))
    for q in range(4):
        cmul_ip(r, [(Z(0), G2), (Z(1), G2)], T)
        pack(RX2, 2*q, Z(0)); pack(RX2, 2*q+1, Z(1))
    cmul_ip(r, [(Z(0), G2)], T)
    pack(RX2, 8, Z(0))
    conv_setup(r)
    UFB = int(os.environ.get("UFB", "5"))
    KI = int(os.environ.get("KI", "1")); KM = int(os.environ.get("KM", "4"))
    consts = r.l[n_issue:n_const]; issue = r.l[:n_issue]; maths = r.l[n_const:]
    KT = int(os.environ.get("KT", "60"))
    KB = int(os.environ.get("KB", "4"))
    sizes = {k: KT for k in range(KM, 9)}
    sizes[KB] = len(maths) - KT*(9 - KM - 1)
    print("kgen", len(consts), len(maths), sizes)
    def bar():
        lab = a.newlabel("K_B")
        a("s_cmp_lg_u32 s30, 1")
        a(f"s_cbranch_scc1 {lab}")
        a("s_barrier")
        a.label(lab)
    if KI == 0:
        for ln in issue: a(ln)
    for ln in consts: a(ln)
    if os.environ.get("AP"): a(f"s_setprio {os.environ['AP']}")
    for k in range(1, 10):
        bar()
        if k == 1:
            a("s_cmp_eq_u32 s63, 0")
            a("s_cbranch_scc1 K_UB1")
            for q in range(2):
                a(f"ds_read_b64_tr_b16 {vr(48+4*q,2)}, v{130+q}")
                a(f"ds_read_b64_tr_b16 {vr(50+4*q,2)}, v{131-q} offset:512")
            a("s_waitcnt lgkmcnt(0)")
            for q in range(2):
                a(f"buffer_store_dwordx4 {vr(48+4*q,4)}, v129, s[16:19], s64 offen offset:{256*q} sc1")
            a(f"s_load_dword s74, s[{S_DBG}:{S_DBG+1}], 0")
            a.label("K_UB1")
        if k == UFB:
            assert UFB == KM + 1
            a("s_cmp_eq_u32 s63, 11")
            a(f"s_cbranch_scc1 K_U{k}")
            a.label(f"K_UB{k}")
        if k == KI:
            for ln in issue: a(ln)
        if KM <= k < 9:
            for ln in maths[:sizes[k]]: a(ln)
            maths = maths[sizes[k]:]
    stamp(a, 2)
    if os.environ.get("KPR"): a(f"s_setprio {os.environ['KPR']}")
    XF2 = 16; AC = 132
    for (base, rows, dst) in ((RY, 16, RY), (RX0, 16, RX0), (RX1, 16, RX1), (RX2, 10, XF2)):
        for row in range(0, rows, 2):
            o = 68*(row % 4)
            a(f"ds_write2_b32 v{E+row//4}, v{base+row}, v{base+row+1} offset0:{o} offset1:{o+68}")
        for ks in range(4):
            a(f"ds_read_b128 {vr(dst+4*ks,4)}, v{E+4} offset:{ks*64}")
    for t, xf in enumerate((RX0, RX1, XF2)):
        a(f"s_waitcnt lgkmcnt({(15, 9, 0)[t]})")
        for ks in range(4):
            cin = "0" if ks == 0 else vr(AC+4*t,4)
            a(f"v_mfma_f32_16x16x32_bf16 {vr(AC+4*t,4)}, {vr(xf+4*ks,4)}, {vr(RY+4*ks,4)}, {cin}")
    a("s_cmp_eq_u32 s9, 0")
    a("s_cbranch_scc1 K_LEAD")
    a("s_nop 5")
    for t in range(3):
        a(f"ds_write_b128 v{E+17}, {vr(AC+4*t,4)} offset:{KC_STRIDE+1024*t}")
    a("s_waitcnt lgkmcnt(0)")
    a("s_mov_b64 exec, 1")
    a(f"ds_add_u32 v{E+19}, v1 offset:{4*SY_KP}")
    a("s_mov_b64 exec, -1")
    a("s_branch K_NEXT")
    a.label("K_LEAD")
    a(f"s_mov_b32 s97, {SPIN_MAX}")
    a.label("K_PW")
    a(f"ds_read_b32 v2, v{E+19} offset:{4*SY_KP}")
    a("s_waitcnt lgkmcnt(0)")
    a("v_readfirstlane_b32 s96, v2")
    a("s_cmp_ge_u32 s96, 1")
    a("s_cbranch_scc1 K_PWOK")
    a("s_sub_u32 s97, s97, 1")
    a("s_cbranch_scc0 K_PW")
    a.label("K_PWOK")
    for t in range(3):
        a(f"ds_read_b128 {vr(72+4*t,4)}, v{E+17} offset:{KC_STRIDE+1024*t}")
    a("s_waitcnt lgkmcnt(0)")
    for i in range(6):
        a(f"v_pk_add_f32 {vr(AC+2*i,2)}, {vr(AC+2*i,2)}, {vr(72+2*i,2)}")
    for i in range(6):
        a(f"v_cvt_pk_bf16_f32 v{24+i}, v{AC+2*i}, v{AC+2*i+1}")
    a(f"ds_write_b64 v{E+5}, v[24:25]")
    a(f"ds_write_b32 v{E+6}, v26 offset:512")
    a(f"ds_write_b32 v{E+7}, v27 offset:512")
    a(f"ds_write_b16 v{E+8}, v28 offset:1024")
    a(f"ds_write_b16_d16_hi v{E+8}, v28 offset:1056")
    a(f"ds_write_b16 v{E+8}, v29 offset:1088")
    a(f"ds_write_b16_d16_hi v{E+8}, v29 offset:1120")
    a(f"ds_read_u16 v30, v{E+9} offset:1024")
    a(f"ds_read_u16 v31, v{E+9} offset:1152")
    a(f"ds_read_u16 v34, v{E+9} offset:1026")
    a(f"ds_read_u16 v35, v{E+9} offset:1154")
    a(f"ds_read2_b32 v[32:33], v{E} offset0:192 offset1:193")
    a(f"ds_read2_b32 v[36:37], v{E+10} offset0:0 offset1:1")
    a(f"ds_read2_b32 v[38:39], v{E+10} offset0:2 offset1:3")
    a("s_waitcnt lgkmcnt(0)")
    a("v_lshl_or_b32 v30, v34, 16, v30")
    a("v_lshl_or_b32 v31, v35, 16, v31")
    a("v_perm_b32 v64, v33, v33, s60")
    a("v_perm_b32 v65, v32, v32, s61")
    a("v_perm_b32 v66, v32, v32, s62")
    a("v_perm_b32 v67, v32, v32, s60")
    a(f"v_perm_b32 v68, v39, v38, v{E+11}")
    a(f"v_perm_b32 v69, v38, v38, v{E+12}")
    a(f"v_perm_b32 v70, v38, v37, v{E+13}")
    a(f"v_perm_b32 v71, v37, v36, v{E+14}")
    a(f"ds_write_b128 v{E+16}, v[64:67] offset:2048")
    a(f"ds_write_b128 v{E+16}, v[68:71] offset:3072")
    for (src, dst) in ((30, 56), (31, 60)):
        a(f"v_perm_b32 v{dst}, v{src}, v{src}, s61")
        a(f"v_perm_b32 v{dst+1}, v{src}, v{src}, v{E+15}")
        a(f"v_perm_b32 v{dst+2}, v{src}, v{src}, s60")
        a(f"v_perm_b32 v{dst+3}, v{src}, v{src}, s60")
    a(f"ds_write_b128 v{E+16}, v[56:59] offset:1024")
    a(f"ds_write_b128 v{E+16}, v[60:63]")
    a("s_mov_b64 exec, 0xffff")
    a(f"ds_write_b32 v{E}, v{E+18} offset:4096")
    a(f"ds_write_b32 v{E}, v{E+18} offset:{KC_STRIDE+4096}")
    a("s_mov_b64 exec, -1")
    for i in range(4):
        a(f"ds_read_b128 {vr(72+8*i,4)}, v{E+17} offset:{1024*i}")
        a(f"ds_read_b32 v{76+8*i}, v{E+17} offset:{1024*i+16}")
    for i in range(4):
        a(f"s_waitcnt lgkmcnt({6-2*i+i})")
        for k in range(4):
            a(f"v_alignbit_b32 v{72+8*i+k}, v{73+8*i+k}, v{72+8*i+k}, 16")
        a(f"ds_write_b128 v{E+17}, {vr(72+8*i,4)} offset:{KC_STRIDE+1024*i}")
    a("s_waitcnt lgkmcnt(0)")
    a("s_mov_b64 exec, 1")
    a(f"ds_add_u32 v{E+19}, v1 offset:{4*SY_KC}")
    a("s_mov_b64 exec, -1")
    a.label("K_NEXT")
    a(f"v_mov_b32 v4, v{E+19}")
    stamp(a, 3)

    def ring_piece():
        a.label(f"K_U{UFB}")
        fetch_nonce(a, "K", True, 158)
        a("s_waitcnt vmcnt(0)")
        flag_set(a, "s65", 158)
        stamp(a, 1)
        a(f"s_branch K_UB{UFB}")
    global RING_PIECE
    RING_PIECE = ring_piece

def gen_conv(a):
    a("s_setprio 0")
    AC = 12
    def F(b, mu): return (44 if b == 0 else 104) + 4*mu
    def X(b, tau):
        if tau == 7: return 164
        return (76 if b == 0 else 136) + 4*tau
    def loads(u):
        b = u % 2
        out = []
        for k in range(8):
            mp = 7-k
            base = 6 + (mp >> 1); o = (mp & 1)*128 + 16*u
            out.append(f"ds_read2_b32 {vr(F(b,k),2)}, v{base} offset0:{o} offset1:{o+1}")
            out.append(f"ds_read2_b32 {vr(F(b,k)+2,2)}, v{base} offset0:{o+2} offset1:{o+3}")
            out.append(f"ds_read_b128 {vr(X(b,k),4)}, v{10+b} offset:{2048*k + 512*(u//2)}")
        return out
    def unit(u, inter):
        b = u % 2
        order = [(0, 7)] + [(mu, t) for mu in range(8) for t in range(mu, 8) if (mu, t) != (0, 7)]
        inter = list(inter)
        for k, (mu, t) in enumerate(order):
            cin = "0" if (u == 0 and mu == 0) else vr(AC+4*t,4)
            a(f"v_mfma_f32_16x16x32_bf16 {vr(AC+4*t,4)}, {vr(F(b,mu),4)}, {vr(X(b,t-mu),4)}, {cin}")
            if k >= 1 and inter: a(inter.pop(0))
        assert not inter
    a(f"s_mov_b32 s97, {SPIN_MAX}")
    a.label("C_W")
    a("ds_read_b64 v[12:13], v3")
    a(f"ds_read_b32 v14, v4 offset:{4*SY_KC}")
    a("s_waitcnt lgkmcnt(0)")
    a("v_lshrrev_b32 v13, 2, v13")
    a("v_min3_u32 v12, v12, v13, v14")
    a("s_nop 0")
    a("v_readfirstlane_b32 s96, v12")
    a("s_cmp_ge_u32 s96, 1")
    a("s_cbranch_scc1 C_WOK")
    a("s_sleep 1")
    a("s_sub_u32 s97, s97, 1")
    a("s_cbranch_scc0 C_W")
    a.label("C_WOK")
    a("s_setprio 3")
    stamp(a, 4)
    for ln in loads(0): a(ln)
    Ub = 44; Tb = 52; Pb = 68; Ad = 100
    fin = ["v_bfe_u32 v6, v0, 1, 4", "v_and_b32 v7, 1, v0", "v_mul_u32_u24 v7, 40, v7", "v_xor_b32 v6, v6, v7",
           "v_and_b32 v7, 32, v0", "v_lshl_add_u32 v6, v7, 1, v6", "s_lshl_b32 s5, s9, 12", "s_add_u32 s5, s5, s15",
           "v_lshl_add_u32 v6, v6, 4, s5",
           "v_bfe_u32 v7, v0, 2, 2", "v_xor_b32 v7, s8, v7", "v_lshlrev_b32 v7, 4, v7", "v_lshl_add_u32 v7, v0, 6, v7",
           "s_lshl_b32 s5, s9, 13", f"s_add_u32 s5, s5, {L_U+2048}", "v_add_u32 v7, s5, v7",
           f"ds_read_b128 {vr(Ub,4)}, v7", f"ds_read_b128 {vr(Ub+4,4)}, v7 offset:4096",
           "v_lshrrev_b32 v8, 2, v0", "v_mul_u32_u24 v8, 36864, v8", "v_and_b32 v9, 3, v0", "v_lshl_add_u32 v8, v9, 4, v8",
           f"s_add_u32 s26, s24, {16*36864}"]
    for u in range(4):
        a("s_waitcnt lgkmcnt(0)")
        if u == 0: unit(u, loads(1))
        elif u < 3: unit(u, [f"v_xor_b32 v{10+(u+1)%2}, 32, v{10+(u+1)%2}"] + loads(u+1))
        else: unit(u, fin)
    a("s_waitcnt lgkmcnt(0)")
    for k in range(4):
        a(f"v_lshlrev_b32 v{Tb+2*k}, 16, v{Ub+k}")
        a(f"v_and_b32 v{Tb+2*k+1}, s73, v{Ub+k}")
    for t in range(8):
        a(f"ds_write_b128 v5, {vr(AC+4*t,4)} offset:{1024*t}")
    for k in range(4, 8):
        a(f"v_lshlrev_b32 v{Tb+2*k}, 16, v{Ub+k}")
        a(f"v_and_b32 v{Tb+2*k+1}, s73, v{Ub+k}")
    for k in range(16):
        a(f"v_mul_f32 v{Tb+k}, s20, v{Tb+k}")
    a("s_waitcnt lgkmcnt(0)")
    a("s_mov_b64 exec, 1")
    a(f"ds_add_u32 v4, v1 offset:{4*SY_PC}")
    a("s_mov_b64 exec, -1")
    stamp(a, 5)
    for k in range(8):
        a(f"v_cvt_pk_bf16_f32 v{Ub+k}, v{Tb+2*k}, v{Tb+2*k+1}")
    for k in range(8):
        a(f"v_lshlrev_b32 v{Tb+2*k}, 16, v{Ub+k}")
        a(f"v_and_b32 v{Tb+2*k+1}, s73, v{Ub+k}")
    a(f"s_mov_b32 s97, {SPIN_MAX}")
    a.label("C_PW")
    a(f"ds_read_b32 v2, v4 offset:{4*SY_PC}")
    for i in range(2):
        for w in range(2):
            for hh in range(2):
                a(f"ds_read_b128 {vr(Pb+16*i+8*w+4*hh,4)}, v6 offset:{2048*i+8192*w+256*hh}")
    a("s_waitcnt lgkmcnt(0)")
    a("v_readfirstlane_b32 s96, v2")
    a("s_cmp_ge_u32 s96, 2")
    a("s_cbranch_scc1 C_PWOK")
    a("s_sub_u32 s97, s97, 1")
    a("s_cbranch_scc0 C_PW")
    a.label("C_PWOK")
    for i in range(2):
        P = Pb + 16*i
        for k in range(8): a(f"v_add_f32 v{P+k}, v{P+k}, v{P+8+k}")
        for k in range(4): a(f"v_cvt_pk_bf16_f32 v{P+8+k}, v{P+2*k}, v{P+2*k+1}")
        for k in range(4):
            a(f"v_lshlrev_b32 v{P+2*k}, 16, v{P+8+k}")
            a(f"v_and_b32 v{P+2*k+1}, s73, v{P+8+k}")
        for k in range(8): a(f"v_add_f32 v{P+k}, v{P+k}, v{Tb+8*i+k}")
        for k in range(4): a(f"v_cvt_pk_bf16_f32 v{Ub+4*i+k}, v{P+2*k}, v{P+2*k+1}")
        a(f"buffer_store_dwordx4 {vr(Ub+4*i,4)}, v8, s[16:19], s{24 if i == 0 else 26} offen sc1")
    get_nonce(a)
    a("s_lshl_b32 s13, s30, 2")
    a("s_sub_u32 s13, s13, 1")
    a("s_lshr_b32 s14, s13, 1")
    a("s_waitcnt vmcnt(0)")
    a("s_mov_b64 exec, 1")
    a(f"ds_add_rtn_u32 v2, v3, v1 offset:{4*SY_CA}")
    a("s_mov_b64 exec, -1")
    a("s_waitcnt lgkmcnt(0)")
    a("v_readfirstlane_b32 s96, v2")
    a("s_cmp_lg_u32 s96, s13")
    a("s_cbranch_scc1 C_END")
    a(f"v_lshlrev_b32 v{Ad}, 7, v0")
    a(f"v_mov_b32 v{Ad+1}, s74")
    a("s_mov_b32 exec_lo, s14")
    a("s_mov_b32 exec_hi, 0")
    a(f"buffer_store_dword v{Ad+1}, v{Ad}, s[16:19], s25 offen sc1")
    a("s_mov_b64 exec, 1")
    a(f"ds_add_u32 v3, v1 offset:{4*SY_WP}")
    a("s_mov_b64 exec, -1")
    a.label("C_END")
    a("v_and_b32 v4, 31, v0")
    a("v_lshrrev_b32 v5, 5, v0")
    a("s_cmp_lt_u32 s3, 8")
    a("s_cbranch_scc1 F_ATTN")
    a("s_cmp_lg_u32 s3, 11")
    a("s_cbranch_scc1 F_FIN")
    a("s_setprio 3")
    a("s_cmp_lt_u32 s2, 192")
    a("s_cbranch_scc1 M_GATE")
    finish(a)

def fetch_nonce(a, tag, first_issued=False, t=20):
    ok = tag + "_NOK"
    for k in range(4):
        if not (first_issued and k == 0):
            a(f"s_load_dword s74, s[{S_DBG}:{S_DBG+1}], {64*k}")
        a("s_waitcnt lgkmcnt(0)")
        a("s_cmp_lg_u32 s74, 0")
        a(f"s_cbranch_scc1 {ok}")
        a("s_sleep 8")
    a(f"s_mov_b32 s97, {SPIN_MAX>>4}")
    a(f"v_mov_b32 v{t}, 0")
    a.label(tag + "_NL")
    a(f"global_load_dword v{t+1}, v{t}, s[{S_DBG}:{S_DBG+1}] sc1")
    a("s_waitcnt vmcnt(0)")
    a(f"v_readfirstlane_b32 s74, v{t+1}")
    a("s_cmp_lg_u32 s74, 0")
    a(f"s_cbranch_scc1 {ok}")
    a("s_sub_u32 s97, s97, 1")
    a(f"s_cbranch_scc0 {tag}_NL")
    a("s_mov_b32 s74, 1")
    a.label(ok)
    a(f"v_mov_b32 v{t+1}, s74")

def gen_free(a):
    a("s_setprio 3")
    a("s_sub_u32 s21, s2, 224")
    a("s_and_b32 s4, s2, 3")
    a("s_lshl_b32 s4, s4, 3")
    a("s_lshr_b32 s5, s21, 2")
    a("s_add_u32 s4, s4, s5")
    a("s_lshl_b32 s4, s4, 2")
    a("s_add_u32 s4, s4, s3")
    a(f"s_mov_b32 s10, {X_BYTES}")
    a("s_mov_b32 s11, 0x20000")
    a("s_mul_i32 s5, s4, 18432")
    a("s_mul_i32 s20, s3, 10240")
    a("v_lshlrev_b32 v6, 4, v0")
    for i in range(5):
        a(f"v_add_u32 v7, {64*i}, v0")
        a("v_mul_u32_u24 v8, 205, v7")
        a("v_lshrrev_b32 v8, 13, v8")
        a("v_lshlrev_b32 v8, 9, v8")
        a(f"v_lshl_add_u32 v{24+i}, v7, 4, v8")
    for o in range(2):
        a(f"s_add_u32 s6, s5, {512 + 9216*o}")
        for i in range(5):
            a(f"s_add_u32 m0, s20, {5120*o + 1024*i}")
            a("s_nop 0")
            a(f"buffer_load_dwordx4 v{24+i}, s[8:11], s6 offen lds")
    UX = 32
    a("s_barrier")
    a("v_bfe_u32 v9, v0, 2, 2")
    a("v_mul_u32_u24 v9, 640, v9")
    a("v_lshrrev_b32 v10, 4, v0")
    a("v_lshl_add_u32 v9, v10, 5, v9")
    a("v_and_b32 v10, 3, v0")
    a("v_lshl_add_u32 v9, v10, 3, v9")
    a("v_add_u32 v9, s20, v9")
    a("s_waitcnt vmcnt(0)")
    stamp(a, 1)
    for o in range(2):
        for i in range(5):
            a(f"ds_read_b64_tr_b16 {vr(UX+20*o+4*i,2)}, v9 offset:{5120*o+128*i}")
            a(f"ds_read_b64_tr_b16 {vr(UX+20*o+4*i+2,2)}, v9 offset:{5120*o+128*i+2560}")
        a(f"s_add_u32 s6, s5, {UT_OFF+4096+9216*o}")
        a("s_waitcnt lgkmcnt(0)")
        for i in range(5):
            a(f"buffer_store_dwordx4 {vr(UX+20*o+4*i,4)}, v6, s[16:19], s6 offen offset:{1024*(i%4)} sc1")
            if i == 3: a("s_add_u32 s6, s6, 4096")
    fetch_nonce(a, "R")
    a(f"ds_write_b32 v3, v21 offset:{4*SY_NONCE}")
    a("s_lshl_b32 s7, s21, 7")
    a(f"s_add_u32 s7, s7, {FL_UT}")
    a("s_waitcnt vmcnt(0)")
    publish(a, SY_UP, 4, "s7", 12)
    lds_add(a, SY_GDONE)
    stamp(a, 2)
    a("s_setprio 0")
    a("s_cmp_eq_u32 s3, 2")
    a("s_cbranch_scc1 F_GATE")
    a("s_cmp_lg_u32 s3, 3")
    a("s_cbranch_scc1 F_ATTN")
    a("s_setprio 3")
    gather_setup(a, 3)
    lds_wait(a, SY_UP, 4, sleep=2)
    flag_wait_multi(a, [16], 12, sleep=2)
    gather_issue(a)
    a("s_waitcnt vmcnt(0)")
    lds_add(a, SY_UREADY)
    stamp(a, 4)
    a("s_setprio 0")
    a(f"s_sleep {os.environ.get('FS','8')}")
    lds_add(a, SY_CQ)
    a("s_branch F_ATTN")

def gen_gate(a):
    GX = 72; GW = 108
    a("s_and_b32 s4, s2, 3")
    a("s_lshl_b32 s4, s4, 6")
    a("s_lshr_b32 s5, s2, 2")
    a("s_add_u32 s4, s4, s5")
    a("s_mul_i32 s5, s4, 9216")
    a("v_and_b32 v8, 7, v0")
    a("v_lshlrev_b32 v8, 4, v8")
    a("v_lshrrev_b32 v11, 3, v0")
    a("v_mul_u32_u24 v10, 1152, v11")
    a("v_add3_u32 v10, v10, v8, s5")
    if GM == "late": lds_wait(a, SY_CQ, 1, sleep=4)
    for i in range(9):
        a(f"global_load_dwordx4 {vr(GX+4*i,4)}, v10, s[{S_X}:{S_X+1}] offset:{128*i}")
    for i in range(9):
        a(f"global_load_dwordx4 {vr(GW+4*i,4)}, v8, s[{S_GW}:{S_GW+1}] offset:{128*i}")
    if GM == "early":
        a("s_cmp_ge_u32 s2, 224")
        a("s_cbranch_scc1 T_NB")
        a("s_waitcnt vmcnt(18)")
        a("s_barrier")
        a.label("T_NB")
    get_nonce(a)
    a("s_waitcnt vmcnt(0)")
    a("s_mov_b32 s73, 0xffff0000")
    for k in range(8): a(f"v_mov_b32 v{16+k}, 0")
    a("s_waitcnt lgkmcnt(0)")
    for i in range(9):
        for k in range(4):
            a(f"v_lshlrev_b32 v{32+2*k}, 16, v{GX+4*i+k}")
            a(f"v_and_b32 v{33+2*k}, s73, v{GX+4*i+k}")
            a(f"v_lshlrev_b32 v{40+2*k}, 16, v{GW+4*i+k}")
            a(f"v_and_b32 v{41+2*k}, s73, v{GW+4*i+k}")
        for k in range(4):
            a(f"v_pk_mul_f32 {vr(32+2*k,2)}, {vr(32+2*k,2)}, {vr(40+2*k,2)}")
        for k in range(4):
            a(f"v_cvt_pk_bf16_f32 v{40+k}, v{32+2*k}, v{33+2*k}")
        for k in range(4):
            a(f"v_lshlrev_b32 v{32+2*k}, 16, v{40+k}")
            a(f"v_and_b32 v{33+2*k}, s73, v{40+k}")
        for k in range(4):
            a(f"v_pk_add_f32 {vr(16+2*k,2)}, {vr(16+2*k,2)}, {vr(32+2*k,2)}")
    a("v_pk_add_f32 v[16:17], v[16:17], v[18:19]")
    a("v_pk_add_f32 v[20:21], v[20:21], v[22:23]")
    a("v_pk_add_f32 v[16:17], v[16:17], v[20:21]")
    a("v_add_f32 v24, v16, v17")
    a("s_nop 1")
    a("v_add_f32_dpp v24, v24, v24 quad_perm:[1,0,3,2] row_mask:0xf bank_mask:0xf")
    a("s_nop 1")
    a("v_add_f32_dpp v24, v24, v24 quad_perm:[2,3,0,1] row_mask:0xf bank_mask:0xf")
    a("s_nop 1")
    a("v_add_f32_dpp v24, v24, v24 row_half_mirror row_mask:0xf bank_mask:0xf")
    a("v_cvt_pk_bf16_f32 v24, v24, v24")
    a("v_and_b32 v24, s73, v24")
    a(f"v_mul_f32 v24, {fhex(-LOG2E)}, v24")
    a("v_exp_f32 v24, v24")
    a("s_nop 0")
    a("v_add_f32 v24, 1.0, v24")
    a("v_rcp_f32 v24, v24")
    a("s_nop 0")
    a("v_cvt_pk_bf16_f32 v24, v24, v24")
    a("v_and_b32 v24, s73, v24")
    a("v_sub_f32 v25, 1.0, v24")
    a("v_cvt_pk_bf16_f32 v25, v25, v25")
    a("v_and_b32 v25, s73, v25")
    a("v_lshlrev_b32 v11, 3, v11")
    a("s_lshl_b32 s7, s4, 6")
    a(f"s_add_u32 s7, s7, {G_OFF}")
    a("s_mov_b32 exec_lo, 0x01010101")
    a("s_mov_b32 exec_hi, 0x01010101")
    a("buffer_store_dwordx2 v[24:25], v11, s[16:19], s7 offen sc1")
    a("s_mov_b64 exec, -1")
    a("s_lshl_b32 s7, s4, 7")
    a(f"s_add_u32 s7, s7, {FL_G}")
    a("s_waitcnt vmcnt(0)")
    flag_set(a, "s7", 12)
    stamp(a, 3)
    a("s_branch F_ATTN")

def gen_misc(a):
    a.label("M_GATE")
    a("v_lshlrev_b32 v6, 4, v0")
    for k in range(3):
        a(f"v_add_u32 v7, {64*k}, v0")
        a("v_mul_u32_u24 v8, 171, v7")
        a("v_lshrrev_b32 v8, 11, v8")
        a("v_mul_u32_u24 v8, 960, v8")
        a(f"v_add_u32 v{20+k}, v8, v6")
    a("s_lshr_b32 s7, s2, 5")
    a("s_mul_i32 s5, s7, 192")
    a(f"s_add_u32 s22, s{S_WO}, s5")
    a(f"s_addc_u32 s23, s{S_WO+1}, 0")
    a("s_bfe_u32 s6, s2, 0x20003")
    a(f"s_mul_i32 s6, s6, {9 if os.environ.get('WOR','0') == '1' else 0}")
    a("s_mov_b32 s24, 36")
    lds_wait(a, SY_WP, 1, sleep=8)
    a.label("M_WL")
    a("s_mul_i32 s5, s6, 3072")
    a("s_mov_b32 m0, s5")
    a("s_mul_i32 s5, s5, 6")
    a("s_add_u32 s20, s22, s5")
    a("s_addc_u32 s21, s23, 0")
    for i in range(3):
        a(f"global_load_lds_dwordx4 v{20+i}, s[20:21] offset:{1024*i}")
    a("s_add_u32 s6, s6, 1")
    a("s_cmp_eq_u32 s6, 36")
    a("s_cselect_b32 s6, 0, s6")
    a(f"s_waitcnt vmcnt({os.environ.get('WOD','6')})")
    if os.environ.get("WOS"): a(f"s_sleep {os.environ['WOS']}")
    a("s_sub_u32 s24, s24, 1")
    a("s_cmp_lg_u32 s24, 0")
    a("s_cbranch_scc1 M_WL")
    a("v_min_u32 v9, 47, v0")
    a("s_mul_i32 s5, s7, 6144")
    a(f"s_add_u32 s5, s5, {FL_A}")
    a("v_lshl_add_u32 v9, v9, 7, s5")
    a("s_and_b32 s4, s2, 7")
    a("s_lshl_b32 s4, s4, 2")
    a("s_bfe_u32 s5, s2, 0x20003")
    a("s_add_u32 s4, s4, s5")
    a("s_lshl_b32 s5, s4, 10")
    a(f"s_add_u32 s5, s5, {FL_G}")
    a("v_and_b32 v10, 7, v0")
    a("v_lshl_add_u32 v10, v10, 7, s5")
    flag_wait_multi(a, [9, 10], 12, sleep=32)
    a(f"s_mul_i32 s5, s4, {2*36864}")
    a("s_mul_i32 s6, s7, 6144")
    a("s_add_u32 s5, s5, s6")
    a(f"s_add_u32 s5, s5, {AF_OFF}")
    for tt in range(2):
        for hf in range(2):
            a(f"s_mov_b32 m0, {L_A + 6144*tt + 3072*hf}")
            a(f"s_add_u32 s6, s5, {36864*tt + 3072*hf}")
            for i in range(3):
                a(f"buffer_load_dwordx4 v6, s[16:19], s6 offen offset:{1024*i} {SC} lds")
    a(f"s_mov_b32 m0, {L_G}")
    a("s_lshl_b32 s5, s4, 9")
    a(f"s_add_u32 s5, s5, {G_OFF}")
    a("s_mov_b32 exec_hi, 0")
    a(f"buffer_load_dwordx4 v6, s[16:19], s5 offen {SC} lds")
    a("s_mov_b64 exec, -1")
    a("s_waitcnt vmcnt(0)")
    lds_add(a, SY_GO3)
```

```python
import math
TILE=110592
VOFF=73728
QKV_OFF=0
QKV_SZ=64*TILE
OF_OFF=QKV_OFF+QKV_SZ
OF_SZ=64*36*1024
WOF_OFF=OF_OFF+OF_SZ
WOF_SZ=18*36*1024
UT_OFF=WOF_OFF+WOF_SZ
UT_SZ=256*9216
AF_OFF=UT_OFF+UT_SZ
AF_SZ=64*576*64
G_OFF=AF_OFF+AF_SZ
G_SZ=2048*8
FL_OFF=G_OFF+G_SZ
FL_UT=FL_OFF
FL_U1=FL_UT+32*128
FL_QKV=FL_U1+128*128
FL_G=FL_QKV+224*128
FL_A=FL_G+256*128
FL_O=FL_A+288*128
FL_ARM=FL_O+1024*128
OX_OFF=FL_ARM+256*128
OX_SZ=64*32*128
WS_USED=OX_OFF+OX_SZ
X_BYTES=2048*576*2
W_BYTES=576*1728*2
WO_BYTES=576*576*2
QSCALE = (18**-0.5)*math.log2(math.e)
S_X=32; S_LOGA=34; S_AIM=36; S_CR=38; S_CI=40; S_LOGDT=42; S_DSKIP=44; S_W=48; S_WO=50; S_GW=52; S_OUT=54; S_DBG=56; S_WS=58
L_RING=0
KC_STRIDE=4416
L_KC=131072
L_KC4=L_KC-4*KC_STRIDE
L_U=32768
L_P=[0, 16384, 51200, 67584]
L_UEND=L_KC+4*KC_STRIDE
L_XCH=131072
L_A=110592
L_G=L_A+12288
L_SYNC=163840-256
LDS_TOTAL=163840
SY_FULL=0
SY_FREE=12
SY_NONCE=24
SY_GO=4
SY_UREADY=0
SY_GDONE=1
SY_KP=12
SY_UP=8
SY_WP=9
SY_KR=2
SY_PD=3
SY_KC=16
SY_PC=20
SY_PR=32
SY_GO3=27
SY_ISS=28
SY_CQ=29
SY_CA=30
SY_CO=31
SY_STG=11
assert L_UEND <= L_SYNC
if __name__=="__main__":
    for k,v in list(globals().items()):
        if k.isupper(): print(k,v)
```

```python
class Asm:
    def __init__(self):
        self.lines = []
        self._lab = 0
    def __call__(self, s=""):
        for ln in s.split("\n"):
            ln = ln.strip()
            if ln == "": continue
            if ln.endswith(":") or ln.startswith(".") or ln.startswith(";"):
                self.lines.append(ln)
            else:
                self.lines.append("    " + ln)
    def label(self, name): self.lines.append(name + ":")
    def newlabel(self, base="L"):
        self._lab += 1
        return f"{base}_{self._lab}"
    def text(self): return "\n".join(self.lines) + "\n"

def vr(b, n=1):
    return f"v{b}" if n == 1 else f"v[{b}:{b+n-1}]"
def sr(b, n=1):
    return f"s{b}" if n == 1 else f"s[{b}:{b+n-1}]"
def ar(b, n=1):
    return f"a{b}" if n == 1 else f"a[{b}:{b+n-1}]"

def srd(a, d, base, nbytes):
    if d != base:
        a(f"s_mov_b32 s{d}, s{base}")
        a(f"s_mov_b32 s{d+1}, s{base+1}")
    a(f"s_mov_b32 s{d+2}, {nbytes}")
    a(f"s_mov_b32 s{d+3}, 0x20000")

import struct
def f2u(x): return struct.unpack("<I", struct.pack("<f", x))[0]
def fhex(x): return "0x%08x" % f2u(x)

def kernel_begin(a, name):
    a(f".globl {name}")
    a(".p2align 8")
    a(f".type {name},@function")
    a.label(name)

def kernel_desc(name, vgpr, sgpr=102, accum=None):
    if accum is None: accum = (vgpr + 3) // 4 * 4
    return f""".p2align 6
.amdhsa_kernel {name}
  .amdhsa_next_free_vgpr {vgpr}
  .amdhsa_next_free_sgpr {sgpr}
  .amdhsa_accum_offset {accum}
  .amdhsa_group_segment_fixed_size 0
  .amdhsa_kernarg_size 112
  .amdhsa_user_sgpr_count 2
  .amdhsa_user_sgpr_kernarg_segment_ptr 1
  .amdhsa_system_sgpr_workgroup_id_x 1
.end_amdhsa_kernel
"""


import os
PROF = bool(int(os.environ.get("PROF", "0")))
PROF_OFF = 18*1024*1024
PROF_SZ = 4*256*16*64
def stamp(a, i):
    if PROF:
        a(f"s_memrealtime s[{80+2*i}:{81+2*i}]")
def stamp_init(a):
    if PROF:
        for i in range(1,8): a(f"s_mov_b64 s[{80+2*i}:{81+2*i}], 0")
        stamp(a, 0)
def stamp_flush(a, kidx, ws_sreg=58):
    if not PROF: return
    if os.environ.get("AMP"):
        w, sa, sb, wg = eval(os.environ["AMP"])
        lab = a.newlabel("AMP"); lp = a.newlabel("AMPL")
        stamp(a, 7)
        a("s_waitcnt lgkmcnt(0)")
        a(f"s_cmp_lg_u32 s3, {w}")
        a(f"s_cbranch_scc1 {lab}")
        a(f"s_cmp_lg_u32 s2, {wg}" if wg >= 0 else "s_cmp_ge_u32 s2, 192")
        a(f"s_cbranch_scc1 {lab}")
        a(f"s_sub_u32 s75, s{80+2*sb}, {'s74' if sa < 0 else 's%d' % (80+2*sa)}")
        a("s_max_i32 s75, s75, 0")
        a("s_lshl_b32 s75, s75, 2")
        a("s_min_u32 s75, s75, 20000")
        a("s_add_u32 s75, s75, s94")
        a.label(lp)
        a("s_memrealtime s[76:77]")
        a("s_waitcnt lgkmcnt(0)")
        a("s_sub_u32 s78, s76, s75")
        a("s_cmp_lt_i32 s78, 0")
        a(f"s_cbranch_scc1 {lp}")
        a.label(lab)
        return
    if os.environ.get("DBGOUT"):
        stamp(a, 7)
        a("s_waitcnt lgkmcnt(0)")
        a("s_mov_b64 exec, 1")
        for (slot, wave, free, st, op) in eval(os.environ["DBGOUT"]):
            lab = a.newlabel("DB")
            a(f"s_cmp_lg_u32 s3, {wave}")
            a(f"s_cbranch_scc1 {lab}")
            a("s_cmp_ge_u32 s2, 224")
            a(f"s_cbranch_scc{0 if free else 1} {lab}")
            a(f"s_sub_u32 s75, s{80+2*st}, s74")
            a("v_mov_b32 v1, s75")
            a(f"v_mov_b32 v2, {4*slot}")
            a(f"global_atomic_{op} v2, v1, s[56:57]")
            a.label(lab)
        return
    if os.environ.get("PROF","0") != "4": stamp(a, 7)
    if os.environ.get("HWID","0") == "1":
        a("s_waitcnt lgkmcnt(0)")
        a("s_getreg_b32 s92, hwreg(HW_REG_HW_ID)")
        a("s_getreg_b32 s93, hwreg(HW_REG_XCC_ID)")
    a("s_mov_b64 exec, -1")
    a(f"s_mov_b32 s76, s{ws_sreg}")
    a(f"s_mov_b32 s77, s{ws_sreg+1}")
    a(f"s_mov_b32 s78, {PROF_OFF+PROF_SZ}")
    a("s_mov_b32 s79, 0x20000")
    a(f"s_add_u32 s75, s2, {kidx*256}")
    a("s_lshl_b32 s75, s75, 4")
    a("s_add_u32 s75, s75, s3")
    a("s_lshl_b32 s75, s75, 6")
    a(f"s_add_u32 s75, s75, {PROF_OFF}")
    a("s_waitcnt lgkmcnt(0)")
    a("v_mov_b32 v1, 0")
    for i in range(16):
        a(f"v_writelane_b32 v1, s{80+i}, {i}")
    a("v_mbcnt_lo_u32_b32 v2, -1, 0")
    a("v_lshlrev_b32 v2, 2, v2")
    a("s_mov_b64 exec, 0xffff")
    a("buffer_store_dword v1, v2, s[76:79], s75 offen")

def cstamp(a, i):
    if PROF:
        a(f"s_memtime s[{80+2*i}:{81+2*i}]")
```
